```python
import torch

def _softmax(x, axis=-1):
    return torch.softmax(x, dim=axis)
def _gelu(x):
    return torch.nn.functional.gelu(x, approximate="tanh")
def _silu(x):
    return torch.nn.functional.silu(x)
def _sigmoid(x):
    return torch.sigmoid(x)
def _layernorm(x, axis=-1, eps=1e-5):
    m = x.mean(dim=axis, keepdim=True)
    v = x.var(dim=axis, keepdim=True, unbiased=False)
    return (x - m) / torch.sqrt(v + eps)
def _scatter_add(tgt, idx, src, axis=0):
    return tgt.clone().index_add_(axis, idx, src)
def _segment_sum(src, seg, n):
    out = torch.zeros((n,) + src.shape[1:], dtype=src.dtype)
    return out.index_add_(0, seg, src)
def _pad(x, pw):
    flat = tuple(v for pair in reversed(pw) for v in pair)
    return torch.nn.functional.pad(x, flat)

kernel_name = 'parallel_sum__sliding_block_cached__glu_gated_glu__decode'

def setup_inputs():

    _w = (lambda a: (lambda t: t.to(torch.bfloat16) if t.is_floating_point() else t)(torch.as_tensor(a)))
    def _A_setup():
        B, Sq, D = 2, 1, 512
        Hq, Hkv, Sk, Dh = 32, 32, 4096, 128
        assert Hq % Hkv == 0, (Hq, Hkv)
        return {
            "x": _w((lambda *s: torch.randn(*s, dtype=torch.bfloat16) * 0.05)(B, Sq, D)),
            "k_cache": _w((lambda *s: torch.randn(*s, dtype=torch.bfloat16) * 3.2)(B, Hkv, Sk, Dh)),
            "v_cache": _w((lambda *s: torch.randn(*s, dtype=torch.bfloat16) * 1.6)(B, Hkv, Sk, Dh)),
            "wq": _w((lambda *s: torch.randn(*s, dtype=torch.bfloat16) * 3.2)(D, Hq * Dh) * (D ** -0.5)),
            "wo": _w((lambda *s: torch.randn(*s, dtype=torch.bfloat16) * 1.6)(Hq * Dh, D) * ((Hq * Dh) ** -0.5)),
        }
    _A_in = _A_setup()

    def _B_setup():
        B, S, D, F = 2, 1, 512, 1376
        return {
            "x": _w((lambda *s: torch.randn(*s, dtype=torch.bfloat16) * 0.05)(B, S, D)),
            "w_gate": _w((lambda *s: torch.randn(*s, dtype=torch.bfloat16) * 0.2)(D, F)),
            "w_up": _w((lambda *s: torch.randn(*s, dtype=torch.bfloat16) * 0.05)(D, F)),
            "w_down": _w((lambda *s: torch.randn(*s, dtype=torch.bfloat16) * 0.05)(F, D)),
        }
    _B_in = _B_setup()

    return {
        "A_x": _A_in["x"],
        "A_k_cache": _A_in["k_cache"],
        "A_v_cache": _A_in["v_cache"],
        "A_wq": _A_in["wq"],
        "A_wo": _A_in["wo"],
        "B_x": _B_in["x"],
        "B_w_gate": _B_in["w_gate"],
        "B_w_up": _B_in["w_up"],
        "B_w_down": _B_in["w_down"],
    }

def reference(A_x, A_k_cache, A_v_cache, A_wq, A_wo, B_x, B_w_gate, B_w_up, B_w_down):
    def _A_ref(x, k_cache, v_cache, wq, wo):
        B, Sq, D = x.shape
        Hq, Dh = 32, 128
        Hkv, Sk = k_cache.shape[1], k_cache.shape[2]
        W = min(4096, max(256, Sk // 4))
        rep = Hq // Hkv
        q = (lambda x, *d: x.permute(*d))((x @ wq).reshape(B, Sq, Hq, Dh), 0, 2, 1, 3)
        k = (lambda x, n, axis: torch.repeat_interleave(x, n, dim=axis))(k_cache[:, :, Sk - W:, :], rep, axis=1)
        v = (lambda x, n, axis: torch.repeat_interleave(x, n, dim=axis))(v_cache[:, :, Sk - W:, :], rep, axis=1)
        scores = torch.einsum("bhqd,bhkd->bhqk", q, k) * (Dh ** -0.5)
        p = _softmax(scores, axis=-1)
        o = torch.einsum("bhqk,bhkd->bhqd", p, v)
        return (lambda x, *d: x.permute(*d))(o, 0, 2, 1, 3).reshape(B, Sq, Hq * Dh) @ wo

    def _B_ref(x, w_gate, w_up, w_down):
        g = torch.einsum("bsd,df->bsf", x, w_gate)
        u = torch.einsum("bsd,df->bsf", x, w_up)
        h = _sigmoid(g) * u
        return torch.einsum("bsf,fd->bsd", h, w_down)

    x = A_x
    xn = _layernorm(x, axis=-1)
    return x + _A_ref(xn, A_k_cache, A_v_cache, A_wq, A_wo) + _B_ref(xn, B_w_gate, B_w_up, B_w_down)
```

```python
import re
TRANS = ("v_exp_", "v_log_", "v_rcp_", "v_rsq_", "v_sqrt_", "v_sin_", "v_cos_")
def regs(tok):
    tok = tok.strip()
    tok = re.sub(r"^-|^abs\(|\)$|^\|", "", tok).rstrip("|")
    m = re.fullmatch(r"v(\d+)", tok)
    if m: return {int(m.group(1))}, set()
    m = re.fullmatch(r"v\[(\d+):(\d+)\]", tok)
    if m: return set(range(int(m.group(1)), int(m.group(2)) + 1)), set()
    m = re.fullmatch(r"s(\d+)", tok)
    if m: return set(), {int(m.group(1))}
    m = re.fullmatch(r"s\[(\d+):(\d+)\]", tok)
    if m: return set(), set(range(int(m.group(1)), int(m.group(2)) + 1))
    if tok == "vcc": return set(), {"vcc"}
    if tok == "exec": return set(), {"exec"}
    return set(), set()
def split_ops(s):
    out = []; depth = 0; cur = ""
    for ch in s:
        if ch == "[": depth += 1
        if ch == "]": depth -= 1
        if ch == "," and depth == 0: out.append(cur.strip()); cur = ""
        else: cur += ch
    if cur.strip(): out.append(cur.strip())
    return out
class Ins:
    pass
class Asm:
    def __init__(self):
        self.lines = []; self.hist = []; self.maxv = 0; self.maxs = 0; self.nnop = 0
    def raw(self, s): self.lines.append(s)
    def label(self, n):
        self.lines.append(n + ":")
    def comment(self, s): self.lines.append("  ; " + s)
    def parse(self, text):
        t = text.split(";")[0].strip()
        mn, _, rest = t.partition(" ")
        ops = split_ops(rest)
        if ops:
            last = ops[-1].split()
            mods = " ".join(last[1:]); ops[-1] = last[0]
        else: mods = ""
        I = Ins(); I.mn = mn; I.vw = set(); I.vr = set(); I.sw = set(); I.sr = set(); I.kind = "other"
        I.dpp = "_dpp" in mn; I.srcC = set(); I.srcAB = set(); I.wide = False
        R = [regs(o) for o in ops]
        for v, s in R:
            if v: self.maxv = max(self.maxv, max(v))
            n = [x for x in s if isinstance(x, int)]
            if n: self.maxs = max(self.maxs, max(n))
        def rd(k0):
            for v, s in R[k0:]: I.vr |= v; I.sr |= s
        if mn.startswith("v_mfma"):
            I.kind = "mfma"; I.vw = R[0][0]; I.srcAB = R[1][0] | R[2][0]; I.srcC = R[3][0]; I.vr = I.srcAB | I.srcC
        elif mn.startswith("v_"):
            I.kind = "valu"
            I.vw = set(R[0][0]); I.sw = set(R[0][1]); rd(1)
            if mn.startswith(TRANS): I.kind = "trans"
            if mn.startswith("v_dot"):
                I.kind = "dot"; I.srcAB = R[1][0] | R[2][0]
                I.srcC = R[3][0] if len(R) > 3 else R[0][0]
            if mn.startswith("v_permlane"):
                I.kind = "perml"; I.vw |= R[1][0]; I.vr |= R[0][0]
            if mn.startswith(("v_fmac", "v_dot2c", "v_pk_fmac")): I.vr |= R[0][0]
            if mn.startswith(("v_add_co", "v_sub_co", "v_addc_co")): I.sw |= R[1][1]
            if mn.startswith(("v_readfirstlane", "v_readlane")): I.kind = "rdlane"
            if mn.startswith("v_cndmask") and len(ops) == 3: I.sr.add("vcc")
        elif mn.startswith(("buffer_load", "global_load")):
            I.kind = "vmem"; I.vw = R[0][0]; rd(1)
        elif mn.startswith("buffer_store"):
            I.kind = "vmem"; rd(0); I.wide = ("x4" in mn or "x3" in mn); I.data = R[0][0]
        elif mn.startswith("global_store"):
            I.kind = "vmem"; rd(0); I.wide = ("x4" in mn or "x3" in mn); I.data = R[1][0]
        elif mn.startswith(("buffer_atomic", "global_atomic")):
            I.kind = "vmem"; rd(0)
        elif mn.startswith("ds_"):
            I.kind = "ds"
            if mn.startswith(("ds_read", "ds_bpermute", "ds_permute", "ds_swizzle")) or "_rtn" in mn:
                I.vw = R[0][0]; rd(1)
            else: rd(0)
        elif mn.startswith("s_"):
            I.kind = "salu"
        I.states = 1
        if mn == "s_nop": I.states = int(ops[0], 0) + 1
        return I
    def need(self, P, C):
        n = 0
        isv = lambda x: x.kind in ("valu", "trans", "dot", "perml", "rdlane")
        if isv(P):
            if C.dpp and (P.vw & C.vr): n = max(n, 2)
            if C.kind == "perml" and (P.vw & C.vr): n = max(n, 2)
            if C.kind == "mfma" and (P.vw & C.vr): n = max(n, 2 if P.kind != "dot" else 3)
            if C.kind == "rdlane" and (P.vw & C.vr): n = max(n, 1)
            if P.sw & C.sr:
                if isv(C): n = max(n, 4 if C.kind == "rdlane" else 2)
                if C.kind == "vmem": n = max(n, 5)
            if P.kind == "trans" and isv(C) and C.kind != "trans" and (P.vw & C.vr): n = max(n, 1)
            if P.kind == "trans" and C.kind == "mfma" and (P.vw & C.vr): n = max(n, 2)
            if P.kind == "dot":
                if C.kind == "dot" and C.mn == P.mn:
                    if P.vw & C.srcAB: n = max(n, 3)
                elif (P.vw & (C.vr | C.vw)): n = max(n, 3)
        if P.kind == "mfma":
            if C.kind == "mfma":
                if P.vw & C.srcAB: n = max(n, 8)
                if (P.vw & C.srcC) and P.vw != C.srcC: n = max(n, 6)
            elif P.vw & (C.vr | C.vw): n = max(n, 8)
            if isv(C) and (P.srcC & C.vw): n = max(n, 3)
        if P.kind == "vmem" and P.wide and (P.data & C.vw): n = max(n, 2)
        return n
    def i(self, text):
        for line in text.strip().split("\n"):
            line = line.strip()
            if not line or line.startswith(";"): continue
            if line.endswith(":"): self.label(line[:-1]); continue
            C = self.parse(line)
            dist = 0; pad = 0
            for P in reversed(self.hist[-12:]):
                pad = max(pad, self.need(P, C) - dist)
                dist += P.states
            if pad > 0:
                self.lines.append(f"  s_nop {pad-1}")
                self.hist.append(self.parse(f"s_nop {pad-1}")); self.nnop += 1
            self.lines.append("  " + line)
            self.hist.append(C)
    def text(self): return "\n".join(self.lines) + "\n"
```

```python
KN = "parallel_sum__sliding_block_cached__glu_gated_glu__decode"
def header(grid, block, lds):
    return f"""; @launch grid=({grid},1,1) block=({block},1,1) lds={lds}
.amdgcn_target "amdgcn-amd-amdhsa--gfx950"
.text
.globl {KN}_kernel
.p2align 8
.type {KN}_kernel,@function
{KN}_kernel:
"""
def footer(vgpr, sgpr=102, accum=None):
    if accum is None: accum = (min(vgpr,256) + 3) // 4 * 4
    return f"""
.section .rodata,"a"
.p2align 6
.amdhsa_kernel {KN}_kernel
  .amdhsa_next_free_vgpr {vgpr}
  .amdhsa_next_free_sgpr {sgpr}
  .amdhsa_accum_offset {accum}
  .amdhsa_group_segment_fixed_size 0
  .amdhsa_kernarg_size 96
  .amdhsa_user_sgpr_count 2
  .amdhsa_user_sgpr_kernarg_segment_ptr 1
  .amdhsa_system_sgpr_workgroup_id_x 1
.end_amdhsa_kernel
"""
```

```python
import sys, struct
from asmlib import Asm
from common import KN
def f2u(x): return struct.unpack("<I", struct.pack("<f", x))[0]

HDR = open("cdna_kernels/" + KN + ".s.ref").read().split("; Override launch")[0]

P0 = 0x10000; H1S = 0x100000; H1O = 0x110000; H2A = 0x140000; H2F = 0x180000
L_Q = 0x000; L_M = 0x100; L_L = 0x110; L_W = 0x120; L_FX = 0x140; L_FQ = 0x160; L_TRIG = 0x164; L_OCNT = 0x168; L_OPUB = 0x16c; L_PART = 0x200
LDS_BYTES = 0xA00

def gen(stamp=False, gu_late=True, wo_late=True, h2layout="A", kvflag="nt", wflag="nt", prio=True):
    a = Asm(); I = a.i
    uid = [0]
    def lab(p):
        uid[0] += 1; return f"L_{p}_{uid[0]}"
    SC = "s34"
    stamps = {}
    sreg = [64]
    def ST(slot):
        if not stamp: return
        r = sreg[0]; sreg[0] += 2
        stamps[slot] = r
        I(f"s_memrealtime s[{r}:{r+1}]")
    def flush_stamps():
        if not stamp: return
        I("s_mov_b64 exec, 1")
        I("s_waitcnt lgkmcnt(0)")
        I("s_lshl_b32 s52, s2, 6")
        I("s_add_u32 s52, s52, 0x8000000")
        for slot, r in stamps.items():
            I(f"v_mov_b32 v6, s{r}")
            I(f"buffer_store_dword v6, v4, s[36:39], s52 offen offset:{4*slot}")
        stamps.clear(); sreg[0] = 64
    def lds_spin(off, n, dst, addr="v4", sleep=0):
        L = lab("spin"); O = lab("spino")
        a.label(L)
        if sleep: I(f"s_sleep {sleep}")
        if n == 1: I(f"ds_read_b32 v{dst}, {addr} offset:{off}")
        elif n == 2: I(f"ds_read_b64 v[{dst}:{dst+1}], {addr} offset:{off}")
        else: I(f"ds_read_b128 v[{dst}:{dst+3}], {addr} offset:{off}")
        I(f"s_sub_u32 {SC}, {SC}, 1")
        I("s_waitcnt lgkmcnt(0)")
        I("s_cbranch_scc1 L_end")
        t = dst
        if n == 2:
            t = dst + 2; I(f"v_max_u32 v{t}, v{dst}, v{dst+1}")
        if n == 4:
            t = dst + 4
            I(f"v_max3_u32 v{t}, v{dst}, v{dst+1}, v{dst+2}")
            I(f"v_max_u32 v{t}, v{t}, v{dst+3}")
        I(f"v_cmp_eq_u32 vcc, -1, v{t}")
        I(f"s_cbranch_vccnz {L}")
        a.label(O)
    def trig_wait(tmp):
        L = lab("trig"); O = lab("trigo")
        a.label(L)
        I("s_sleep 2")
        I(f"ds_read_b32 v{tmp}, v4 offset:{L_TRIG}")
        I(f"s_sub_u32 {SC}, {SC}, 1")
        I("s_waitcnt lgkmcnt(0)")
        I("s_cbranch_scc1 L_end")
        I(f"v_cmp_ne_u32 vcc, 3, v{tmp}")
        I(f"s_cbranch_vccnz {L}")
        a.label(O)
    def gpoll(loads, words, tagmask, acc):
        L = lab("poll"); O = lab("pollo")
        a.label(L)
        for l in loads: I(l)
        I(f"s_sub_u32 {SC}, {SC}, 64")
        I("s_waitcnt vmcnt(0)")
        I("s_cbranch_scc1 L_end")
        I(f"v_xor_b32 v{acc}, s31, v{words[0]}")
        for w in words[1:]:
            I(f"v_bitop3_b32 v{acc}, v{acc}, v{w}, s31 bitop3:0xf6")
        I(f"v_and_b32 v{acc}, {tagmask}, v{acc}")
        I(f"v_cmp_ne_u32 vcc, 0, v{acc}")
        I(f"s_cbranch_vccnz {L}")
        a.label(O)
    def srd(d, lo, n):
        I(f"s_mov_b32 s{d}, s{lo}"); I(f"s_mov_b32 s{d+1}, s{lo+1}")
        I(f"s_mov_b32 s{d+2}, {hex(n)}"); I(f"s_mov_b32 s{d+3}, 0x20000")
    DPP = "row_mask:0xf bank_mask:0xf"
    def make_sel(S, t0):
        I(f"v_and_b32 v{t0}, 1, v2")
        I(f"v_cmp_eq_u32 vcc, 1, v{t0}")
        I(f"v_bfe_u32 v{t0}, v2, 1, 2")
        I(f"v_mov_b32 v{t0+3}, 0x0c0c0c0c")
        for e in range(2):
            ev = 0x0c0c0000 | (2*e+1) << 8 | (2*e)
            od = (2*e+1) << 24 | (2*e) << 16 | 0x0c0c
            I(f"v_mov_b32 v{S}, {hex(ev)}")
            I(f"v_mov_b32 v{S+1}, {hex(od)}")
            I(f"v_cndmask_b32 v{t0+1+e}, v{S}, v{S+1}, vcc")
        for i in range(4):
            I(f"v_cmp_eq_u32 vcc, {i}, v{t0}")
            for e in range(2):
                I(f"v_cndmask_b32 v{S+4*e+i}, v{t0+3}, v{t0+1+e}, vcc")
    def build_mfma(Q, S, TMP, AB, BB, D, npair, waits=None, fuse=True):
        for u in range(npair):
            I(f"v_mov_b32_dpp v{TMP+u}, v{Q} row_newbcast:{u} row_mask:0xf bank_mask:0x3")
            I(f"v_mov_b32_dpp v{TMP+u}, v{Q} row_newbcast:{8+u} row_mask:0xf bank_mask:0xc")
        n = 2 * npair
        def perm(t):
            for i in range(4):
                I(f"v_perm_b32 v{AB+4*t+i}, v{TMP+t//2}, v{TMP+t//2}, v{S+4*(t%2)+i}")
        def mf(t):
            if waits: I(f"s_waitcnt vmcnt({waits(t)})")
            c = "0" if t == 0 else f"v[{D}:{D+3}]"
            I(f"v_mfma_f32_16x16x32_bf16 v[{D}:{D+3}], v[{AB+4*t}:{AB+4*t+3}], v[{BB+4*t}:{BB+4*t+3}], {c}")
        if fuse:
            perm(0)
            for t in range(n):
                if t + 1 < n: perm(t + 1)
                mf(t)
        else:
            for t in range(n): perm(t)
            for t in range(n): mf(t)
    def reduce4(V):
        I(f"v_permlane32_swap_b32 v{V}, v{V+2}")
        I(f"v_permlane32_swap_b32 v{V+1}, v{V+3}")
        I(f"v_add_f32 v{V}, v{V}, v{V+2}")
        I(f"v_add_f32 v{V+1}, v{V+1}, v{V+3}")
        I(f"v_permlane16_swap_b32 v{V}, v{V+1}")
        I(f"v_add_f32 v{V}, v{V}, v{V+1}")
        for r in (8, 4, 2, 1):
            I(f"v_add_f32_dpp v{V}, v{V}, v{V} row_ror:{r} {DPP}")

    ST(0)
    st0 = dict(stamps)
    I("s_load_dwordx16 s[4:19], s[0:1], 0")
    I("s_load_dwordx8 s[20:27], s[0:1], 64")
    I("s_cmp_ge_u32 s2, 256")
    I("s_cbranch_scc1 L_end")
    I("v_lshrrev_b32 v6, 6, v0")
    I("v_and_b32 v1, 63, v0")
    I("v_readfirstlane_b32 s30, v6")
    I("s_and_b32 s28, s2, 7")
    I("s_lshl_b32 s28, s28, 2")
    I("s_lshr_b32 s29, s2, 6")
    I("s_add_u32 s28, s28, s29")
    I("s_bfe_u32 s29, s2, 0x30003")
    I("s_lshr_b32 s32, s29, 2")
    I("s_and_b32 s33, s29, 3")
    I("s_lshl_b32 s35, s28, 3")
    I("s_add_u32 s35, s35, s29")
    I(f"s_mov_b32 {SC}, 0x100000")
    I("v_and_b32 v2, 15, v1")
    I("v_lshrrev_b32 v3, 4, v1")
    I("v_mov_b32 v4, 0")
    I("v_mov_b32 v5, 0xff")
    I("s_cmp_ge_u32 s30, 4")
    I("s_cbranch_scc1 L_special")

    KB, VB, ACC, D = 32, 96, 16, 160
    I("v_lshlrev_b32 v6, 4, v1")
    I("s_lshl_b32 s52, s32, 25")
    I("s_lshl_b32 s53, s28, 20")
    I("s_add_u32 s52, s52, s53")
    I("s_lshl_b32 s53, s33, 16")
    I("s_add_u32 s52, s52, s53")
    I("s_lshl_b32 s53, s30, 14")
    I("s_add_u32 s52, s52, s53")
    I("s_add_u32 s52, s52, 0xC0000")
    I("s_add_u32 s53, s52, 0x1000")
    I("s_add_u32 s54, s52, 0x2000")
    I("s_add_u32 s55, s52, 0x3000")
    I("s_waitcnt lgkmcnt(0)")
    I("s_load_dword s31, s[26:27], 0")
    srd(40, 6, 0x4000000); srd(44, 8, 0x4000000); srd(36, 26, 0x10000000 if stamp else 0x200000)
    I("s_barrier")
    for t in range(16):
        I(f"buffer_load_dwordx4 v[{KB+4*t}:{KB+4*t+3}], v6, s[40:43], s{52+t//4} offen offset:{(t%4)*1024} {kvflag}")
    for t in range(16):
        I(f"buffer_load_dwordx4 v[{VB+4*t}:{VB+4*t+3}], v6, s[44:47], s{52+t//4} offen offset:{(t%4)*1024} {kvflag}")
    I("v_mov_b32 v12, 1")
    I("s_mov_b64 exec, 1")
    I(f"ds_add_u32 v4, v12 offset:{L_TRIG}")
    I("s_mov_b64 exec, -1")
    ST(1)
    I("v_and_b32 v12, 1, v2")
    I("v_lshlrev_b32 v12, 4, v12")
    I("v_mov_b32 v13, 0xffff")
    I("v_lshlrev_b32 v12, v12, v13")
    I("v_lshrrev_b32 v13, 1, v2")
    for i in range(4):
        I(f"v_cmp_eq_u32 vcc, {i}, v13")
        I(f"v_cndmask_b32 v{8+i}, 0, v12, vcc")
    I("v_and_b32 v7, 1, v3")
    I("v_lshlrev_b32 v7, 4, v7")
    I("v_lshl_add_u32 v7, v2, 5, v7")
    I("s_lshl_b32 s56, s30, 9")
    I("v_add_u32 v164, s56, v7")
    I("s_lshl_b32 s56, s30, 2")
    I("v_mov_b32 v165, s56")
    I("v_lshlrev_b32 v166, 4, v2")
    I("s_mov_b32 s60, 0xcccccccc"); I("s_mov_b32 s61, 0xcccccccc")
    I("s_mov_b32 s62, 0xaaaaaaaa"); I("s_mov_b32 s63, 0xaaaaaaaa")
    I("s_waitcnt lgkmcnt(0)")
    I("s_mul_i32 s31, s31, 1664525")
    I("s_add_u32 s31, s31, 1013904223")
    I(f"s_lshl_b32 s57, s35, 9")
    I(f"s_add_u32 s57, s57, {H1O}")
    lds_spin(L_FQ, 1, 12, sleep=1)
    I(f"ds_read_b128 v[12:15], v166 offset:{L_Q}")
    ST(2)
    I("s_waitcnt lgkmcnt(0)")
    for t in range(0, 16, 2):
        I(f"s_waitcnt vmcnt({30-t})")
        for i in range(4):
            for tt in (t, t + 1):
                c = "0" if i == 0 else f"v{ACC+tt}"
                I(f"v_dot2_f32_bf16 v{ACC+tt}, v{KB+4*tt+i}, v{12+i}, {c}")
    for t in range(8):
        I(f"v_add_f32_dpp v{ACC+t}, v{ACC+t}, v{ACC+t} row_ror:8 row_mask:0xf bank_mask:0x3")
    for t in range(8):
        I(f"v_add_f32_dpp v{ACC+t}, v{ACC+t+8}, v{ACC+t+8} row_ror:8 row_mask:0xf bank_mask:0xc")
    for t in range(4):
        I(f"v_add_f32_dpp v{ACC+t}, v{ACC+t}, v{ACC+t} row_shl:4 row_mask:0xf bank_mask:0x5")
    for t in range(4):
        I(f"v_add_f32_dpp v{ACC+t}, v{ACC+t+4}, v{ACC+t+4} row_shr:4 row_mask:0xf bank_mask:0xa")
    for t in range(4):
        I(f"v_add_f32_dpp v{ACC+t}, v{ACC+t}, v{ACC+t} quad_perm:[2,3,0,1] {DPP}")
    I(f"v_cndmask_b32 v{ACC}, v{ACC}, v{ACC+2}, s[60:61]")
    I(f"v_cndmask_b32 v{ACC+1}, v{ACC+1}, v{ACC+3}, s[60:61]")
    for t in range(2):
        I(f"v_add_f32_dpp v{ACC+t}, v{ACC+t}, v{ACC+t} quad_perm:[1,0,3,2] {DPP}")
    I(f"v_cndmask_b32 v16, v16, v17, s[62:63]")
    I("v_cvt_pk_bf16_f32 v16, v16, v16")
    I("v_and_b32 v16, 0xffff0000, v16")
    I(f"v_mul_f32 v16, {hex(f2u(128 ** -0.5))}, v16")
    I("v_cvt_pk_bf16_f32 v16, v16, v16")
    I("v_and_b32 v16, 0xffff0000, v16")
    I(f"v_max_f32_dpp v17, v16, v16 row_ror:8 {DPP}")
    for r in (4, 2, 1):
        I(f"v_max_f32_dpp v17, v17, v17 row_ror:{r} {DPP}")
    I("v_mov_b32 v18, v17")
    I("v_permlane16_swap_b32 v17, v18")
    I("v_max_f32 v17, v17, v18")
    I("v_mov_b32 v18, v17")
    I("v_permlane32_swap_b32 v17, v18")
    I("v_max_f32 v17, v17, v18")
    I(f"ds_write_b32 v165, v17 offset:{L_M}")
    lds_spin(L_M, 4, 20)
    I("v_max3_f32 v17, v20, v21, v22")
    I("v_max_f32 v17, v17, v23")
    I("v_sub_f32 v16, v16, v17")
    I(f"v_mul_f32 v16, {hex(f2u(1.4426950408889634))}, v16")
    I("v_exp_f32 v16, v16")
    I("v_cvt_pk_bf16_f32 v19, v16, v16")
    I(f"v_add_f32_dpp v17, v16, v16 row_ror:8 {DPP}")
    for r in (4, 2, 1):
        I(f"v_add_f32_dpp v17, v17, v17 row_ror:{r} {DPP}")
    I("v_mov_b32 v18, v17")
    I("v_permlane16_swap_b32 v17, v18")
    I("v_add_f32 v17, v17, v18")
    I("v_mov_b32 v18, v17")
    I("v_permlane32_swap_b32 v17, v18")
    I("v_add_f32 v17, v17, v18")
    I(f"ds_write_b32 v165, v17 offset:{L_L}")
    for t in range(16):
        for i in range(4):
            I(f"v_and_b32_dpp v{KB+4*t+i}, v19, v{8+i} row_newbcast:{t} {DPP}")
    ST(3)
    I("v_mov_b32 v12, 1")
    for t in range(16):
        I(f"s_waitcnt vmcnt({15-t})")
        c = "0" if t == 0 else f"v[{D}:{D+3}]"
        I(f"v_mfma_f32_16x16x32_bf16 v[{D}:{D+3}], v[{KB+4*t}:{KB+4*t+3}], v[{VB+4*t}:{VB+4*t+3}], {c}")
    I("s_mov_b64 exec, 0xffffffff")
    I(f"ds_write_b128 v164, v[{D}:{D+3}] offset:{L_PART}")
    I("s_mov_b64 exec, 1")
    I(f"ds_add_rtn_u32 v13, v4, v12 offset:{L_OCNT}")
    I("s_mov_b64 exec, 0xffffffff")
    for w in range(4):
        I(f"ds_read_b128 v[{16+4*w}:{19+4*w}], v7 offset:{L_PART+512*w}")
    I("s_waitcnt lgkmcnt(0)")
    I("v_readfirstlane_b32 s56, v13")
    I("s_cmp_eq_u32 s56, 2")
    I("s_cbranch_scc0 L_s_end")
    I("v_pk_add_f32 v[16:17], v[16:17], v[20:21]")
    I("v_pk_add_f32 v[18:19], v[18:19], v[22:23]")
    I("v_pk_add_f32 v[24:25], v[24:25], v[28:29]")
    I("v_pk_add_f32 v[26:27], v[26:27], v[30:31]")
    I("v_pk_add_f32 v[16:17], v[16:17], v[24:25]")
    I("v_pk_add_f32 v[18:19], v[18:19], v[26:27]")
    for r in range(4):
        I(f"v_bfi_b32 v{16+r}, v5, s31, v{16+r}")
    I("buffer_store_dwordx4 v[16:19], v7, s[36:39], s57 offen sc1")
    I(f"ds_write_b32 v4, v4 offset:{L_OPUB}")
    if stamp:
        keep = dict(stamps); stamps.clear(); ST(4); sv = sreg[0]; flush_stamps(); stamps.update(keep); sreg[0] = sv
    a.label("L_s_end")
    if stamp:
        I("s_cmp_eq_u32 s30, 0")
        I("s_cbranch_scc0 L_end")
        flush_stamps()
    I("s_endpgm")

    a.label("L_special")
    stamps.clear(); sreg[0] = 66
    I("s_cmp_eq_u32 s30, 7")
    I("s_cbranch_scc1 L_T")
    if prio: I("s_setprio 2")
    AB, BB, SEL = 32, 96, 10
    I("s_cmp_eq_u32 s30, 4")
    I("s_movk_i32 s52, 2752"); I("s_movk_i32 s53, 96"); I("s_movk_i32 s55, 172"); I("s_mov_b32 s42, 1409024")
    I("s_cselect_b32 s52, 8192, s52")
    I("s_cselect_b32 s53, 256, s53")
    I("s_cselect_b32 s54, 16, 6")
    I("s_cselect_b32 s55, 512, s55")
    I("s_cselect_b32 s42, 0x400000, s42")
    I("s_mul_i32 s56, s28, s54")
    I("s_sub_i32 s55, s55, s56")
    I("s_min_i32 s54, s54, s55")
    I("s_mul_i32 s53, s53, s28")
    I("s_lshl_b32 s56, s29, 6")
    I("s_mul_i32 s56, s56, s52")
    I("s_add_u32 s53, s53, s56")
    I("s_lshl_b32 s56, s52, 4")
    I("v_mul_lo_u32 v6, v3, s56")
    I("v_lshl_add_u32 v6, v2, 4, v6")
    I("v_cmp_gt_i32 vcc, s54, v2")
    I("v_mov_b32 v7, 0x80000000")
    I("v_cndmask_b32 v6, v7, v6, vcc")
    I("v_lshrrev_b32 v9, 3, v2")
    I("v_and_b32 v26, 7, v2")
    I("v_lshlrev_b32 v9, 10, v9")
    I("v_lshl_add_u32 v7, v3, 8, v9")
    I("v_lshl_add_u32 v7, v26, 5, v7")
    I("v_lshl_add_u32 v8, v3, 5, v9")
    I("v_lshl_add_u32 v8, v26, 2, v8")
    I("s_lshl_b32 s56, s29, 7")
    I("s_waitcnt lgkmcnt(0)")
    I("s_load_dword s31, s[26:27], 0")
    srd(44, 4, 2048)
    I("buffer_load_dwordx4 v[18:21], v7, s[44:47], 0 offen")
    I("buffer_load_dwordx4 v[22:25], v7, s[44:47], 0 offen offset:16")
    I("buffer_load_dword v26, v8, s[44:47], s56 offen")
    I("s_cmp_eq_u32 s30, 5")
    I("s_cselect_b32 s40, s16, s18")
    I("s_cselect_b32 s41, s17, s19")
    I("s_cmp_eq_u32 s30, 4")
    I("s_cselect_b32 s40, s10, s40")
    I("s_cselect_b32 s41, s11, s41")
    I("s_mov_b32 s43, 0x20000")
    srd(36, 26, 0x10000000 if stamp else 0x200000)
    def wloads():
        for t in range(16):
            I(f"buffer_load_dwordx4 v[{BB+4*t}:{BB+4*t+3}], v6, s[40:43], s53 offen {wflag}")
            if t < 15: I("s_add_u32 s53, s53, s52")
    if gu_late:
        I("s_cbranch_scc0 L_p_skip")
        wloads()
        a.label("L_p_skip")
        I("s_barrier")
    else:
        wloads()
        I("s_barrier")
    make_sel(SEL, 27)
    I("v_mov_b32 v27, 0x3f803f80")
    if gu_late:
        I("s_cmp_eq_u32 s30, 4")
        I("s_cbranch_scc1 L_p_w16")
        I("s_waitcnt vmcnt(0)")
        a.label("L_p_w16")
    I("s_waitcnt vmcnt(16)")
    I("v_dot2_f32_bf16 v28, v18, v27, 0")
    I("v_dot2_f32_bf16 v29, v19, v27, 0")
    for k in range(2, 8, 2):
        I(f"v_dot2_f32_bf16 v28, v{18+k}, v27, v28")
        I(f"v_dot2_f32_bf16 v29, v{19+k}, v27, v29")
    for k in range(8):
        I(f"v_lshlrev_b32 v{32+2*k}, 16, v{18+k}")
        I(f"v_and_b32 v{33+2*k}, 0xffff0000, v{18+k}")
    I("v_add_f32 v28, v28, v29")
    def red32(r, t):
        I(f"v_add_f32_dpp v{r}, v{r}, v{r} quad_perm:[1,0,3,2] {DPP}")
        I(f"v_add_f32_dpp v{r}, v{r}, v{r} quad_perm:[2,3,0,1] {DPP}")
        I(f"v_add_f32_dpp v{r}, v{r}, v{r} row_half_mirror {DPP}")
        I(f"v_mov_b32 v{t}, v{r}")
        I(f"v_permlane16_swap_b32 v{r}, v{t}")
        I(f"v_add_f32 v{r}, v{r}, v{t}")
        I(f"v_mov_b32 v{t}, v{r}")
        I(f"v_permlane32_swap_b32 v{r}, v{t}")
        I(f"v_add_f32 v{r}, v{r}, v{t}")
    red32(28, 29)
    I(f"v_mul_f32 v28, {hex(f2u(1/512))}, v28")
    I("v_mov_b32 v29, v28")
    for k in range(8):
        I(f"v_pk_add_f32 v[{32+2*k}:{33+2*k}], v[{32+2*k}:{33+2*k}], v[28:29] neg_lo:[0,1] neg_hi:[0,1]")
    I("v_pk_mul_f32 v[30:31], v[32:33], v[32:33]")
    for k in range(1, 8):
        I(f"v_pk_fma_f32 v[30:31], v[{32+2*k}:{33+2*k}], v[{32+2*k}:{33+2*k}], v[30:31]")
    I("v_add_f32 v30, v30, v31")
    red32(30, 31)
    I(f"v_mul_f32 v30, {hex(f2u(1/512))}, v30")
    I("v_cvt_pk_bf16_f32 v28, v28, v30")
    I("v_and_b32 v30, 0xffff0000, v28")
    I("v_lshlrev_b32 v28, 16, v28")
    I(f"v_add_f32 v30, {hex(f2u(1e-5))}, v30")
    I("v_cvt_pk_bf16_f32 v30, v30, v30")
    I("v_and_b32 v30, 0xffff0000, v30")
    I("v_sqrt_f32 v30, v30")
    I("v_lshlrev_b32 v32, 16, v26")
    I("v_and_b32 v33, 0xffff0000, v26")
    I("v_cvt_pk_bf16_f32 v30, v30, v30")
    I("v_and_b32 v30, 0xffff0000, v30")
    I("v_rcp_f32 v30, v30")
    I("v_sub_f32 v32, v32, v28")
    I("v_sub_f32 v33, v33, v28")
    I("v_cvt_pk_bf16_f32 v26, v32, v33")
    I("v_lshlrev_b32 v32, 16, v26")
    I("v_and_b32 v33, 0xffff0000, v26")
    I("v_mul_f32 v32, v32, v30")
    I("v_mul_f32 v33, v33, v30")
    I("v_cvt_pk_bf16_f32 v26, v32, v33")
    I("s_waitcnt lgkmcnt(0)")
    I("s_mul_i32 s31, s31, 1664525")
    I("s_add_u32 s31, s31, 1013904223")
    I("v_and_b32 v7, 1, v3")
    I("v_lshlrev_b32 v7, 4, v7")
    I("v_lshl_add_u32 v7, v2, 5, v7")
    I("v_lshrrev_b32 v8, 1, v3")
    I("v_lshl_add_u32 v7, v8, 9, v7")
    I("s_sub_u32 s56, s30, 4")
    I("s_lshl_b32 s56, s56, 18")
    I("s_lshl_b32 s57, s35, 10")
    I("s_add_u32 s56, s56, s57")
    I(f"s_add_u32 s56, s56, {P0}")
    for u in range(8):
        I(f"v_mov_b32_dpp v{18+u}, v26 row_newbcast:{u} row_mask:0xf bank_mask:0x3")
        I(f"v_mov_b32_dpp v{18+u}, v26 row_newbcast:{8+u} row_mask:0xf bank_mask:0xc")
    for t in range(16):
        for i in range(4):
            I(f"v_perm_b32 v{AB+4*t+i}, v{18+t//2}, v{18+t//2}, v{SEL+4*(t%2)+i}")
    if gu_late:
        I("s_cmp_eq_u32 s30, 4")
        I("s_cbranch_scc1 L_p_mm")
        trig_wait(27)
        wloads()
        a.label("L_p_mm")
    for t in range(16):
        I(f"s_waitcnt vmcnt({15-t})")
        c = "0" if t == 0 else f"v[{D}:{D+3}]"
        I(f"v_mfma_f32_16x16x32_bf16 v[{D}:{D+3}], v[{AB+4*t}:{AB+4*t+3}], v[{BB+4*t}:{BB+4*t+3}], {c}")
    for r in range(4):
        I(f"v_bfi_b32 v{D+r}, 15, s31, v{D+r}")
    I(f"buffer_store_dwordx4 v[{D}:{D+3}], v7, s[36:39], s56 offen sc1")
    I("s_cmp_eq_u32 s30, 5")
    I("s_cbranch_scc1 L_PG")
    I("s_cmp_eq_u32 s30, 6")
    I("s_cbranch_scc1 L_end")

    ST(5)
    I("v_lshrrev_b32 v6, 5, v1")
    I("v_and_b32 v8, 31, v1")
    I("v_lshlrev_b32 v9, 3, v8")
    I("v_lshl_add_u32 v9, v6, 2, v9")
    I("v_lshlrev_b32 v6, 12, v6")
    I("v_lshl_add_u32 v6, v8, 4, v6")
    I("s_lshl_b32 s56, s28, 13")
    I("s_lshl_b32 s57, s32, 9")
    I("s_add_u32 s56, s56, s57")
    I(f"s_add_u32 s56, s56, {P0}")
    gpoll([f"buffer_load_dwordx4 v[{32+4*k}:{35+4*k}], v6, s[36:39], s56 offen offset:{1024*k} sc1" for k in range(4)],
          list(range(32, 48)), "15", 27)
    I("v_pk_add_f32 v[32:33], v[32:33], v[36:37]")
    I("v_pk_add_f32 v[34:35], v[34:35], v[38:39]")
    I("v_pk_add_f32 v[40:41], v[40:41], v[44:45]")
    I("v_pk_add_f32 v[42:43], v[42:43], v[46:47]")
    I("v_pk_add_f32 v[32:33], v[32:33], v[40:41]")
    I("v_pk_add_f32 v[34:35], v[34:35], v[42:43]")
    I("v_permlane32_swap_b32 v32, v34")
    I("v_permlane32_swap_b32 v33, v35")
    I("v_add_f32 v32, v32, v34")
    I("v_add_f32 v33, v33, v35")
    I("v_cvt_pk_bf16_f32 v32, v32, v33")
    I(f"ds_write_b32 v9, v32 offset:{L_Q}")
    I(f"ds_write_b32 v4, v4 offset:{L_FQ}")
    ST(6)
    I("v_and_b32 v6, 7, v1")
    I("v_lshlrev_b32 v9, 2, v6")
    I("v_lshlrev_b32 v6, 7, v6")
    I("s_lshl_b32 s56, s35, 7")
    I(f"s_add_u32 s56, s56, {H1S}")
    I("s_lshl_b32 s57, s28, 10")
    I(f"s_add_u32 s57, s57, {H1S}")
    lds_spin(L_L, 4, 32, sleep=1)
    I(f"ds_read_b128 v[40:43], v4 offset:{L_M}")
    I("v_add_f32 v33, v32, v33")
    I("v_add_f32 v34, v34, v35")
    I("v_add_f32 v33, v33, v34")
    I("s_waitcnt lgkmcnt(0)")
    I("v_max3_f32 v32, v40, v41, v42")
    I("v_max_f32 v32, v32, v43")
    I("v_bfi_b32 v32, v5, s31, v32")
    I("v_bfi_b32 v33, v5, s31, v33")
    I("v_mov_b32 v34, v32")
    I("v_mov_b32 v35, v33")
    I("s_mov_b64 exec, 1")
    I("buffer_store_dwordx4 v[32:35], v4, s[36:39], s56 offen sc1")
    I("s_mov_b64 exec, -1")
    gpoll(["buffer_load_dwordx4 v[36:39], v6, s[36:39], s57 offen sc1"], [36, 37, 38, 39], "v5", 27)
    I("v_and_b32 v36, 0xffffff00, v36")
    I(f"v_max_f32_dpp v40, v36, v36 quad_perm:[1,0,3,2] {DPP}")
    I(f"v_max_f32_dpp v40, v40, v40 quad_perm:[2,3,0,1] {DPP}")
    I("v_sub_f32 v36, v36, v40")
    I(f"v_mul_f32 v36, {hex(f2u(1.4426950408889634))}, v36")
    I("v_exp_f32 v36, v36")
    I("v_mul_f32 v37, v36, v37")
    I(f"v_add_f32_dpp v37, v37, v37 quad_perm:[1,0,3,2] {DPP}")
    I(f"v_add_f32_dpp v37, v37, v37 quad_perm:[2,3,0,1] {DPP}")
    I("v_rcp_f32 v37, v37")
    I("v_mul_f32 v36, v36, v37")
    I(f"ds_write_b32 v9, v36 offset:{L_W}")
    ST(7)
    flush_stamps()
    I("s_endpgm")

    def h2_addrs(base, vpub, vgat, spub, sgat):
        I("s_lshl_b32 s58, s28, 1")
        I("s_add_u32 s58, s58, s32")
        I("s_lshl_b32 s59, s33, 16")
        I(f"s_add_u32 s59, s59, {base}")
        big, small = f"s_lshl_b32 {{}}, s58, 10", f"s_lshl_b32 {{}}, s58, 4"
        if h2layout == "A":
            I(f"v_lshlrev_b32 v{vpub}, 10, v1"); I(small.format(spub))
            I(f"v_lshlrev_b32 v{vgat}, 4, v1"); I(big.format(sgat))
        else:
            I(f"v_lshlrev_b32 v{vpub}, 4, v1"); I(big.format(spub))
            I(f"v_lshlrev_b32 v{vgat}, 10, v1"); I(small.format(sgat))
        I(f"s_add_u32 {spub}, {spub}, s59")
        I(f"s_add_u32 {sgat}, {sgat}, s59")
    a.label("L_PG")
    stamps.clear(); sreg[0] = 66
    srd(40, 20, 1376 * 1024)
    I("v_mul_u32_u24 v6, 6144, v3")
    I("v_lshl_add_u32 v6, v2, 4, v6")
    I("s_lshl_b32 s52, s28, 1")
    I("s_add_u32 s52, s52, s32")
    I("s_mul_i32 s52, s52, 24576")
    I("s_lshl_b32 s53, s33, 8")
    I("s_add_u32 s52, s52, s53")
    I("s_add_u32 s53, s52, 0x1000")
    if not gu_late and wo_late: trig_wait(27)
    for t in range(6):
        I(f"buffer_load_dwordx4 v[{BB+4*t}:{BB+4*t+3}], v6, s[40:43], s{52+t//4} offen offset:{(t%4)*1024} {wflag}")
    h2_addrs(H2F, 8, 9, "s54", "s55")
    I("s_lshr_b32 s56, s58, 5")
    I("s_lshl_b32 s56, s56, 10")
    I("s_lshl_b32 s57, s33, 8")
    I("s_add_u32 s56, s56, s57")
    I("s_and_b32 s57, s58, 15")
    I("s_lshl_b32 s57, s57, 4")
    I("s_add_u32 s56, s56, s57")
    I("s_bfe_u32 s57, s58, 0x10004")
    I("s_lshl_b32 s57, s57, 3")
    I("s_add_u32 s56, s56, s57")
    I("v_lshlrev_b32 v7, 1, v3")
    I("buffer_load_ushort v124, v7, s[44:47], s56 offen")
    I("v_lshrrev_b32 v7, 3, v2")
    I("v_lshlrev_b32 v7, 9, v7")
    I("v_and_b32 v27, 7, v2")
    I("v_min_u32 v27, 2, v27")
    I("v_lshl_add_u32 v7, v27, 3, v7")
    I("v_mad_u32_u24 v7, v3, 24, v7")
    I("s_lshl_b32 s56, s28, 13")
    I("s_mul_i32 s57, s32, 96")
    I("s_add_u32 s56, s56, s57")
    I(f"s_add_u32 s60, s56, {P0 + 0x40000}")
    I(f"s_add_u32 s61, s56, {P0 + 0x41000}")
    I(f"s_add_u32 s62, s56, {P0 + 0x80000}")
    I(f"s_add_u32 s63, s56, {P0 + 0x81000}")
    G0 = 128
    gpoll([f"buffer_load_dwordx2 v[{G0+2*k}:{G0+1+2*k}], v7, s[36:39], s{60+k//4} offen offset:{1024*(k%4)} sc1" for k in range(16)],
          list(range(G0, G0 + 32)), "15", 27)
    ST(13)
    for base in (G0, G0 + 16):
        for k in range(4):
            I(f"v_pk_add_f32 v[{base+2*k}:{base+2*k+1}], v[{base+2*k}:{base+2*k+1}], v[{base+8+2*k}:{base+9+2*k}]")
        for k in range(2):
            I(f"v_pk_add_f32 v[{base+2*k}:{base+2*k+1}], v[{base+2*k}:{base+2*k+1}], v[{base+4+2*k}:{base+5+2*k}]")
        I(f"v_pk_add_f32 v[{base}:{base+1}], v[{base}:{base+1}], v[{base+2}:{base+3}]")
    I(f"v_cvt_pk_bf16_f32 v28, v{G0}, v{G0+1}")
    I(f"v_cvt_pk_bf16_f32 v29, v{G0+16}, v{G0+17}")
    I("v_lshlrev_b32 v30, 16, v28")
    I("v_and_b32 v31, 0xffff0000, v28")
    I(f"v_mul_f32 v30, {hex(f2u(-1.4426950408889634))}, v30")
    I(f"v_mul_f32 v31, {hex(f2u(-1.4426950408889634))}, v31")
    I("v_exp_f32 v30, v30")
    I("v_exp_f32 v31, v31")
    I("v_add_f32 v30, 1.0, v30")
    I("v_add_f32 v31, 1.0, v31")
    I("v_rcp_f32 v30, v30")
    I("v_rcp_f32 v31, v31")
    I("v_lshlrev_b32 v32, 16, v29")
    I("v_and_b32 v33, 0xffff0000, v29")
    I("v_cvt_pk_bf16_f32 v28, v30, v31")
    I("v_lshlrev_b32 v30, 16, v28")
    I("v_and_b32 v31, 0xffff0000, v28")
    I("v_mul_f32 v30, v30, v32")
    I("v_mul_f32 v31, v31, v33")
    I("v_cvt_pk_bf16_f32 v26, v30, v31")
    build_mfma(26, SEL, 18, AB, BB, D, 3)
    for r in range(4):
        I(f"v_bfi_b32 v{D+r}, v5, s31, v{D+r}")
    I(f"buffer_store_dwordx4 v[{D}:{D+3}], v8, s[36:39], s54 offen sc1")
    ST(14)
    gpoll(["buffer_load_dwordx4 v[32:35], v9, s[36:39], s55 offen sc1"], [32, 33, 34, 35], "v5", 27)
    reduce4(32)
    I("v_cvt_pk_bf16_f32 v33, v32, v32")
    I("v_and_b32 v33, 0xffff0000, v33")
    I("v_lshlrev_b32 v32, 16, v124")
    I("v_lshlrev_b32 v7, 3, v3")
    I(f"ds_write_b64 v7, v[32:33] offset:{L_FX}")
    ST(15)
    flush_stamps()
    I("s_endpgm")

    a.label("L_T")
    stamps.clear(); sreg[0] = 66
    if prio: I("s_setprio 3")
    I("v_lshlrev_b32 v6, 2, v1")
    I("v_mov_b32 v7, -1")
    I(f"ds_write_b32 v6, v7 offset:{L_M}")
    I("s_waitcnt lgkmcnt(0)")
    I("s_load_dword s31, s[26:27], 0")
    I("s_barrier")
    srd(40, 12, 0x400000); srd(36, 26, 0x10000000 if stamp else 0x200000); srd(48, 22, 2048)
    I("v_lshlrev_b32 v6, 14, v3")
    I("v_lshl_add_u32 v6, v2, 4, v6")
    I("s_lshl_b32 s52, s28, 17")
    I("s_lshl_b32 s53, s32, 16")
    I("s_add_u32 s52, s52, s53")
    I("s_lshl_b32 s53, s33, 8")
    I("s_add_u32 s52, s52, s53")
    I("s_add_u32 s53, s52, 0x1000")
    I("s_add_u32 s54, s52, 0x2000")
    I("s_add_u32 s55, s52, 0x3000")
    make_sel(SEL, 27)
    h2_addrs(H2A, 8, 9, "s60", "s61")
    I("s_lshr_b32 s56, s58, 5")
    I("s_lshl_b32 s56, s56, 10")
    I("s_lshl_b32 s57, s33, 8")
    I("s_add_u32 s56, s56, s57")
    I("s_and_b32 s57, s58, 15")
    I("s_lshl_b32 s57, s57, 4")
    I("s_add_u32 s56, s56, s57")
    I("s_bfe_u32 s57, s58, 0x10004")
    I("s_lshl_b32 s57, s57, 3")
    I("s_add_u32 s62, s56, s57")
    I("v_lshlrev_b32 v164, 1, v3")
    I("v_lshlrev_b32 v165, 3, v3")
    I("v_lshrrev_b32 v27, 3, v2")
    I("v_lshlrev_b32 v166, 4, v27")
    I("v_lshlrev_b32 v7, 11, v27")
    I("v_lshl_add_u32 v7, v3, 6, v7")
    I("v_and_b32 v27, 7, v2")
    I("v_lshl_add_u32 v7, v27, 3, v7")
    I("s_lshl_b32 s56, s28, 12")
    I("s_lshl_b32 s57, s32, 8")
    I("s_add_u32 s56, s56, s57")
    I(f"s_add_u32 s56, s56, {H1O}")
    I("s_waitcnt lgkmcnt(0)")
    I("s_mul_i32 s31, s31, 1664525")
    I("s_add_u32 s31, s31, 1013904223")
    if wo_late: trig_wait(27)
    for t in range(16):
        I(f"buffer_load_dwordx4 v[{BB+4*t}:{BB+4*t+3}], v6, s[40:43], s{52+t//4} offen offset:{(t%4)*1024} {wflag}")
    ST(8)
    lds_spin(L_OPUB, 1, 27)
    gpoll([f"buffer_load_dwordx2 v[{32+2*s}:{33+2*s}], v7, s[36:39], s56 offen offset:{512*s} sc1" for s in range(4)],
          list(range(32, 40)), "v5", 27)
    ST(9)
    lds_spin(L_W, 4, 40, addr="v166")
    I("v_mul_f32 v32, v32, v40")
    I("v_mul_f32 v33, v33, v40")
    for s in range(1, 4):
        I(f"v_fmac_f32 v32, v{32+2*s}, v{40+s}")
        I(f"v_fmac_f32 v33, v{33+2*s}, v{40+s}")
    I("v_cvt_pk_bf16_f32 v26, v32, v33")
    build_mfma(26, SEL, 18, AB, BB, D, 8)
    for r in range(4):
        I(f"v_bfi_b32 v{D+r}, v5, s31, v{D+r}")
    I(f"buffer_store_dwordx4 v[{D}:{D+3}], v8, s[36:39], s60 offen sc1")
    ST(10)
    gpoll(["buffer_load_dwordx4 v[32:35], v9, s[36:39], s61 offen sc1"], [32, 33, 34, 35], "v5", 27)
    ST(11)
    reduce4(32)
    lds_spin(L_FX, 2, 36, addr="v165")
    I("v_cvt_pk_bf16_f32 v32, v32, v32")
    I("v_and_b32 v32, 0xffff0000, v32")
    I("v_add_f32 v32, v36, v32")
    I("v_cvt_pk_bf16_f32 v32, v32, v32")
    I("v_and_b32 v32, 0xffff0000, v32")
    I("v_add_f32 v32, v32, v37")
    I("v_cvt_pk_bf16_f32 v32, v32, v32")
    I("s_mov_b32 s56, 0x00010001")
    I("s_mov_b32 s57, 0x00010001")
    I("s_mov_b64 exec, s[56:57]")
    I("buffer_store_short v32, v164, s[48:51], s62 offen")
    I("s_cmp_eq_u32 s2, 0")
    I("s_cbranch_scc0 L_t_end")
    I("s_mov_b64 exec, 1")
    I("v_mov_b32 v33, s31")
    I("buffer_store_dword v33, v4, s[36:39], 0 offen sc1")
    a.label("L_t_end")
    ST(12)
    flush_stamps()
    a.label("L_end")
    I("s_endpgm")

    nv = a.maxv + 1
    head = HDR + f"""; @launch grid=(256,1,1) block=(512,1,1) lds={LDS_BYTES}
.amdgcn_target "amdgcn-amd-amdhsa--gfx950"
.text
.globl {KN}_kernel
.p2align 8
.type {KN}_kernel,@function
{KN}_kernel:
"""
    foot = f""".section .rodata,"a"
.p2align 6
.amdhsa_kernel {KN}_kernel
  .amdhsa_next_free_vgpr {nv}
  .amdhsa_next_free_sgpr {max(a.maxs + 1, 16)}
  .amdhsa_accum_offset {(nv + 3) // 4 * 4}
  .amdhsa_group_segment_fixed_size 0
  .amdhsa_kernarg_size 96
  .amdhsa_user_sgpr_count 2
  .amdhsa_user_sgpr_kernarg_segment_ptr 1
  .amdhsa_system_sgpr_workgroup_id_x 1
  .amdhsa_float_denorm_mode_32 3
.end_amdhsa_kernel
"""
    return head + a.text() + foot

if __name__ == "__main__":
    open("k1.s", "w").write(gen())
    open("k1_st.s", "w").write(gen(stamp=True))
```

```python
import sys, struct
from asmlib import Asm
from common import KN
def f2u(x): return struct.unpack("<I", struct.pack("<f", x))[0]

HDR = open("cdna_kernels/" + KN + ".s.ref").read().split("; Override launch")[0]

P0 = 0x10000; H1S = 0x100000; H1O = 0x110000; H2A = 0x140000; H2F = 0x180000
L_Q = 0x000; L_M = 0x100; L_L = 0x110; L_W = 0x120; L_FX = 0x140; L_FQ = 0x160; L_TRIG = 0x164; L_OCNT = 0x168; L_OPUB = 0x16c; L_PART = 0x200
LDS_BYTES = 0xA00

def gen(stamp=False, gu_late=True, wo_late=True, h2layout="A", kvflag="nt", wflag="nt", prio=True, win=0):
    a = Asm(); I = a.i
    uid = [0]
    def lab(p):
        uid[0] += 1; return f"L_{p}_{uid[0]}"
    SC = "s34"
    stamps = {}
    sreg = [64]
    def ST(slot):
        if not stamp: return
        r = sreg[0]; sreg[0] += 2
        stamps[slot] = r
        I(f"s_memrealtime s[{r}:{r+1}]")
    def flush_stamps():
        if not stamp: return
        I("s_mov_b64 exec, 1")
        I("s_waitcnt lgkmcnt(0)")
        if stamp == "dbg":
            srd(96, 24, 256)
            for slot, r in stamps.items():
                if slot == 0: I(f"s_not_b32 s{r}, s{r}")
                I(f"v_mov_b32 v6, s{r}")
                I(f"buffer_atomic_umax v6, v4, s[96:99], 0 offen offset:{4*slot} sc1")
            stamps.clear(); sreg[0] = 64
            return
        I("s_lshl_b32 s52, s2, 6")
        I("s_add_u32 s52, s52, 0x8000000")
        for slot, r in stamps.items():
            I(f"v_mov_b32 v6, s{r}")
            I(f"buffer_store_dword v6, v4, s[36:39], s52 offen offset:{4*slot}")
        stamps.clear(); sreg[0] = 64
    def lds_spin(off, n, dst, addr="v4", sleep=0):
        L = lab("spin"); O = lab("spino")
        a.label(L)
        if sleep: I(f"s_sleep {sleep}")
        if n == 1: I(f"ds_read_b32 v{dst}, {addr} offset:{off}")
        elif n == 2: I(f"ds_read_b64 v[{dst}:{dst+1}], {addr} offset:{off}")
        else: I(f"ds_read_b128 v[{dst}:{dst+3}], {addr} offset:{off}")
        I(f"s_sub_u32 {SC}, {SC}, 1")
        I("s_waitcnt lgkmcnt(0)")
        I("s_cbranch_scc1 L_end")
        t = dst
        if n == 2:
            t = dst + 2; I(f"v_max_u32 v{t}, v{dst}, v{dst+1}")
        if n == 4:
            t = dst + 4
            I(f"v_max3_u32 v{t}, v{dst}, v{dst+1}, v{dst+2}")
            I(f"v_max_u32 v{t}, v{t}, v{dst+3}")
        I(f"v_cmp_eq_u32 vcc, -1, v{t}")
        I(f"s_cbranch_vccnz {L}")
        a.label(O)
    def trig_wait(tmp):
        L = lab("trig"); O = lab("trigo")
        a.label(L)
        I("s_sleep 2")
        I(f"ds_read_b32 v{tmp}, v4 offset:{L_TRIG}")
        I(f"s_sub_u32 {SC}, {SC}, 1")
        I("s_waitcnt lgkmcnt(0)")
        I("s_cbranch_scc1 L_end")
        I(f"v_cmp_ne_u32 vcc, 3, v{tmp}")
        I(f"s_cbranch_vccnz {L}")
        a.label(O)
    def gpoll(loads, words, tagmask, acc):
        L = lab("poll"); O = lab("pollo")
        a.label(L)
        for l in loads: I(l)
        I(f"s_sub_u32 {SC}, {SC}, 64")
        I("s_waitcnt vmcnt(0)")
        I("s_cbranch_scc1 L_end")
        I(f"v_xor_b32 v{acc}, s31, v{words[0]}")
        for w in words[1:]:
            I(f"v_bitop3_b32 v{acc}, v{acc}, v{w}, s31 bitop3:0xf6")
        I(f"v_and_b32 v{acc}, {tagmask}, v{acc}")
        I(f"v_cmp_ne_u32 vcc, 0, v{acc}")
        I(f"s_cbranch_vccnz {L}")
        a.label(O)
    def srd(d, lo, n):
        I(f"s_mov_b32 s{d}, s{lo}"); I(f"s_mov_b32 s{d+1}, s{lo+1}")
        I(f"s_mov_b32 s{d+2}, {hex(n)}"); I(f"s_mov_b32 s{d+3}, 0x20000")
    DPP = "row_mask:0xf bank_mask:0xf"
    def make_sel(S, t0):
        I(f"v_and_b32 v{t0}, 1, v2")
        I(f"v_cmp_eq_u32 vcc, 1, v{t0}")
        I(f"v_bfe_u32 v{t0}, v2, 1, 2")
        I(f"v_mov_b32 v{t0+3}, 0x0c0c0c0c")
        for e in range(2):
            ev = 0x0c0c0000 | (2*e+1) << 8 | (2*e)
            od = (2*e+1) << 24 | (2*e) << 16 | 0x0c0c
            I(f"v_mov_b32 v{S}, {hex(ev)}")
            I(f"v_mov_b32 v{S+1}, {hex(od)}")
            I(f"v_cndmask_b32 v{t0+1+e}, v{S}, v{S+1}, vcc")
        for i in range(4):
            I(f"v_cmp_eq_u32 vcc, {i}, v{t0}")
            for e in range(2):
                I(f"v_cndmask_b32 v{S+4*e+i}, v{t0+3}, v{t0+1+e}, vcc")
    def build_mfma(Q, S, TMP, AB, BB, D, npair, waits=None, fuse=True):
        for u in range(npair):
            I(f"v_mov_b32_dpp v{TMP+u}, v{Q} row_newbcast:{u} row_mask:0xf bank_mask:0x3")
            I(f"v_mov_b32_dpp v{TMP+u}, v{Q} row_newbcast:{8+u} row_mask:0xf bank_mask:0xc")
        n = 2 * npair
        def perm(t):
            for i in range(4):
                I(f"v_perm_b32 v{AB+4*t+i}, v{TMP+t//2}, v{TMP+t//2}, v{S+4*(t%2)+i}")
        def mf(t):
            if waits: I(f"s_waitcnt vmcnt({waits(t)})")
            c = "0" if t == 0 else f"v[{D}:{D+3}]"
            I(f"v_mfma_f32_16x16x32_bf16 v[{D}:{D+3}], v[{AB+4*t}:{AB+4*t+3}], v[{BB+4*t}:{BB+4*t+3}], {c}")
        if fuse:
            perm(0)
            for t in range(n):
                if t + 1 < n: perm(t + 1)
                mf(t)
        else:
            for t in range(n): perm(t)
            for t in range(n): mf(t)
    def reduce4(V):
        I(f"v_permlane32_swap_b32 v{V}, v{V+2}")
        I(f"v_permlane32_swap_b32 v{V+1}, v{V+3}")
        I(f"v_add_f32 v{V}, v{V}, v{V+2}")
        I(f"v_add_f32 v{V+1}, v{V+1}, v{V+3}")
        I(f"v_permlane16_swap_b32 v{V}, v{V+1}")
        I(f"v_add_f32 v{V}, v{V}, v{V+1}")
        for r in (8, 4, 2, 1):
            I(f"v_add_f32_dpp v{V}, v{V}, v{V} row_ror:{r} {DPP}")

    ST(0)
    st0 = dict(stamps)
    I("s_load_dwordx16 s[4:19], s[0:1], 0")
    I("s_load_dwordx8 s[20:27], s[0:1], 64")
    I("s_cmp_ge_u32 s2, 256")
    I("s_cbranch_scc1 L_end")
    I("v_lshrrev_b32 v6, 6, v0")
    I("v_and_b32 v1, 63, v0")
    I("v_readfirstlane_b32 s30, v6")
    I("s_and_b32 s28, s2, 7")
    I("s_lshl_b32 s28, s28, 2")
    I("s_lshr_b32 s29, s2, 6")
    I("s_add_u32 s28, s28, s29")
    I("s_bfe_u32 s29, s2, 0x30003")
    I("s_lshr_b32 s32, s29, 2")
    I("s_and_b32 s33, s29, 3")
    I("s_lshl_b32 s35, s28, 3")
    I("s_add_u32 s35, s35, s29")
    I(f"s_mov_b32 {SC}, 0x100000")
    I("v_and_b32 v2, 15, v1")
    I("v_lshrrev_b32 v3, 4, v1")
    I("v_mov_b32 v4, 0")
    I("v_mov_b32 v5, 0xff")
    I("s_cmp_ge_u32 s30, 4")
    I("s_cbranch_scc1 L_special")

    KB, VB, ACC, D = 32, 96, 16, 160
    I("v_lshlrev_b32 v6, 4, v1")
    I("s_lshl_b32 s52, s32, 25")
    I("s_lshl_b32 s53, s28, 20")
    I("s_add_u32 s52, s52, s53")
    I("s_lshl_b32 s53, s33, 16")
    I("s_add_u32 s52, s52, s53")
    I("s_lshl_b32 s53, s30, 14")
    I("s_add_u32 s52, s52, s53")
    I("s_add_u32 s52, s52, 0xC0000")
    I("s_add_u32 s53, s52, 0x1000")
    I("s_add_u32 s54, s52, 0x2000")
    I("s_add_u32 s55, s52, 0x3000")
    I("s_waitcnt lgkmcnt(0)")
    I("s_load_dword s31, s[26:27], 0")
    srd(40, 6, 0x4000000); srd(44, 8, 0x4000000); srd(36, 26, 0x10000000 if stamp else 0x200000)
    I("s_barrier")
    for t in range(16):
        if win and t >= win: I(f"s_waitcnt vmcnt({win-1})")
        I(f"buffer_load_dwordx4 v[{KB+4*t}:{KB+4*t+3}], v6, s[40:43], s{52+t//4} offen offset:{(t%4)*1024} {kvflag}")
    for t in range(16):
        if win and t + 16 >= win: I(f"s_waitcnt vmcnt({win-1})")
        I(f"buffer_load_dwordx4 v[{VB+4*t}:{VB+4*t+3}], v6, s[44:47], s{52+t//4} offen offset:{(t%4)*1024} {kvflag}")
    I("v_mov_b32 v12, 1")
    I("s_mov_b64 exec, 1")
    I(f"ds_add_u32 v4, v12 offset:{L_TRIG}")
    I("s_mov_b64 exec, -1")
    ST(1)
    I("v_and_b32 v12, 1, v2")
    I("v_lshlrev_b32 v12, 4, v12")
    I("v_mov_b32 v13, 0xffff")
    I("v_lshlrev_b32 v12, v12, v13")
    I("v_lshrrev_b32 v13, 1, v2")
    for i in range(4):
        I(f"v_cmp_eq_u32 vcc, {i}, v13")
        I(f"v_cndmask_b32 v{8+i}, 0, v12, vcc")
    I("v_and_b32 v7, 1, v3")
    I("v_lshlrev_b32 v7, 4, v7")
    I("v_lshl_add_u32 v7, v2, 5, v7")
    I("s_lshl_b32 s56, s30, 9")
    I("v_add_u32 v164, s56, v7")
    I("s_lshl_b32 s56, s30, 2")
    I("v_mov_b32 v165, s56")
    I("v_lshlrev_b32 v166, 4, v2")
    I("s_mov_b32 s60, 0xcccccccc"); I("s_mov_b32 s61, 0xcccccccc")
    I("s_mov_b32 s62, 0xaaaaaaaa"); I("s_mov_b32 s63, 0xaaaaaaaa")
    I("s_waitcnt lgkmcnt(0)")
    I("s_mul_i32 s31, s31, 1664525")
    I("s_add_u32 s31, s31, 1013904223")
    I(f"s_lshl_b32 s57, s35, 9")
    I(f"s_add_u32 s57, s57, {H1O}")
    lds_spin(L_FQ, 1, 12, sleep=1)
    I(f"ds_read_b128 v[12:15], v166 offset:{L_Q}")
    ST(2)
    I("s_waitcnt lgkmcnt(0)")
    for t in range(0, 16, 2):
        I(f"s_waitcnt vmcnt({30-t})")
        for i in range(4):
            for tt in (t, t + 1):
                c = "0" if i == 0 else f"v{ACC+tt}"
                I(f"v_dot2_f32_bf16 v{ACC+tt}, v{KB+4*tt+i}, v{12+i}, {c}")
    for t in range(8):
        I(f"v_add_f32_dpp v{ACC+t}, v{ACC+t}, v{ACC+t} row_ror:8 row_mask:0xf bank_mask:0x3")
    for t in range(8):
        I(f"v_add_f32_dpp v{ACC+t}, v{ACC+t+8}, v{ACC+t+8} row_ror:8 row_mask:0xf bank_mask:0xc")
    for t in range(4):
        I(f"v_add_f32_dpp v{ACC+t}, v{ACC+t}, v{ACC+t} row_shl:4 row_mask:0xf bank_mask:0x5")
    for t in range(4):
        I(f"v_add_f32_dpp v{ACC+t}, v{ACC+t+4}, v{ACC+t+4} row_shr:4 row_mask:0xf bank_mask:0xa")
    for t in range(4):
        I(f"v_add_f32_dpp v{ACC+t}, v{ACC+t}, v{ACC+t} quad_perm:[2,3,0,1] {DPP}")
    I(f"v_cndmask_b32 v{ACC}, v{ACC}, v{ACC+2}, s[60:61]")
    I(f"v_cndmask_b32 v{ACC+1}, v{ACC+1}, v{ACC+3}, s[60:61]")
    for t in range(2):
        I(f"v_add_f32_dpp v{ACC+t}, v{ACC+t}, v{ACC+t} quad_perm:[1,0,3,2] {DPP}")
    I(f"v_cndmask_b32 v16, v16, v17, s[62:63]")
    I("v_cvt_pk_bf16_f32 v16, v16, v16")
    I("v_and_b32 v16, 0xffff0000, v16")
    I(f"v_mul_f32 v16, {hex(f2u(128 ** -0.5))}, v16")
    I("v_cvt_pk_bf16_f32 v16, v16, v16")
    I("v_and_b32 v16, 0xffff0000, v16")
    I(f"v_max_f32_dpp v17, v16, v16 row_ror:8 {DPP}")
    for r in (4, 2, 1):
        I(f"v_max_f32_dpp v17, v17, v17 row_ror:{r} {DPP}")
    I("v_mov_b32 v18, v17")
    I("v_permlane16_swap_b32 v17, v18")
    I("v_max_f32 v17, v17, v18")
    I("v_mov_b32 v18, v17")
    I("v_permlane32_swap_b32 v17, v18")
    I("v_max_f32 v17, v17, v18")
    I(f"ds_write_b32 v165, v17 offset:{L_M}")
    lds_spin(L_M, 4, 20)
    I("v_max3_f32 v17, v20, v21, v22")
    I("v_max_f32 v17, v17, v23")
    I("v_sub_f32 v16, v16, v17")
    I(f"v_mul_f32 v16, {hex(f2u(1.4426950408889634))}, v16")
    I("v_exp_f32 v16, v16")
    I("v_cvt_pk_bf16_f32 v19, v16, v16")
    I(f"v_add_f32_dpp v17, v16, v16 row_ror:8 {DPP}")
    for r in (4, 2, 1):
        I(f"v_add_f32_dpp v17, v17, v17 row_ror:{r} {DPP}")
    I("v_mov_b32 v18, v17")
    I("v_permlane16_swap_b32 v17, v18")
    I("v_add_f32 v17, v17, v18")
    I("v_mov_b32 v18, v17")
    I("v_permlane32_swap_b32 v17, v18")
    I("v_add_f32 v17, v17, v18")
    I(f"ds_write_b32 v165, v17 offset:{L_L}")
    for t in range(16):
        for i in range(4):
            I(f"v_and_b32_dpp v{KB+4*t+i}, v19, v{8+i} row_newbcast:{t} {DPP}")
    ST(3)
    I("v_mov_b32 v12, 1")
    for t in range(16):
        I(f"s_waitcnt vmcnt({15-t})")
        c = "0" if t == 0 else f"v[{D}:{D+3}]"
        I(f"v_mfma_f32_16x16x32_bf16 v[{D}:{D+3}], v[{KB+4*t}:{KB+4*t+3}], v[{VB+4*t}:{VB+4*t+3}], {c}")
    I("s_mov_b64 exec, 0xffffffff")
    I(f"ds_write_b128 v164, v[{D}:{D+3}] offset:{L_PART}")
    I("s_mov_b64 exec, 1")
    I(f"ds_add_rtn_u32 v13, v4, v12 offset:{L_OCNT}")
    I("s_mov_b64 exec, 0xffffffff")
    for w in range(4):
        I(f"ds_read_b128 v[{16+4*w}:{19+4*w}], v7 offset:{L_PART+512*w}")
    I("s_waitcnt lgkmcnt(0)")
    I("v_readfirstlane_b32 s56, v13")
    I("s_cmp_eq_u32 s56, 2")
    I("s_cbranch_scc0 L_s_end")
    I("v_pk_add_f32 v[16:17], v[16:17], v[20:21]")
    I("v_pk_add_f32 v[18:19], v[18:19], v[22:23]")
    I("v_pk_add_f32 v[24:25], v[24:25], v[28:29]")
    I("v_pk_add_f32 v[26:27], v[26:27], v[30:31]")
    I("v_pk_add_f32 v[16:17], v[16:17], v[24:25]")
    I("v_pk_add_f32 v[18:19], v[18:19], v[26:27]")
    for r in range(4):
        I(f"v_bfi_b32 v{16+r}, v5, s31, v{16+r}")
    I("buffer_store_dwordx4 v[16:19], v7, s[36:39], s57 offen sc1")
    I(f"ds_write_b32 v4, v4 offset:{L_OPUB}")
    if stamp:
        keep = dict(stamps); stamps.clear(); ST(4); sv = sreg[0]; flush_stamps(); stamps.update(keep); sreg[0] = sv
    a.label("L_s_end")
    if stamp:
        I("s_cmp_eq_u32 s30, 0")
        I("s_cbranch_scc0 L_end")
        flush_stamps()
    I("s_endpgm")

    a.label("L_special")
    stamps.clear(); sreg[0] = 66
    I("s_cmp_eq_u32 s30, 7")
    I("s_cbranch_scc1 L_T")
    if prio: I("s_setprio 2")
    AB, BB, SEL = 32, 96, 10
    I("s_cmp_eq_u32 s30, 4")
    I("s_movk_i32 s52, 2752"); I("s_movk_i32 s53, 96"); I("s_movk_i32 s55, 172"); I("s_mov_b32 s42, 1409024")
    I("s_cselect_b32 s52, 8192, s52")
    I("s_cselect_b32 s53, 256, s53")
    I("s_cselect_b32 s54, 16, 6")
    I("s_cselect_b32 s55, 512, s55")
    I("s_cselect_b32 s42, 0x400000, s42")
    I("s_mul_i32 s56, s28, s54")
    I("s_sub_i32 s55, s55, s56")
    I("s_min_i32 s54, s54, s55")
    I("s_mul_i32 s53, s53, s28")
    I("s_lshl_b32 s56, s29, 6")
    I("s_mul_i32 s56, s56, s52")
    I("s_add_u32 s53, s53, s56")
    I("s_lshl_b32 s56, s52, 4")
    I("v_mul_lo_u32 v6, v3, s56")
    I("v_lshl_add_u32 v6, v2, 4, v6")
    I("v_cmp_gt_i32 vcc, s54, v2")
    I("v_mov_b32 v7, 0x80000000")
    I("v_cndmask_b32 v6, v7, v6, vcc")
    I("v_lshrrev_b32 v9, 3, v2")
    I("v_and_b32 v26, 7, v2")
    I("v_lshlrev_b32 v9, 10, v9")
    I("v_lshl_add_u32 v7, v3, 8, v9")
    I("v_lshl_add_u32 v7, v26, 5, v7")
    I("v_lshl_add_u32 v8, v3, 5, v9")
    I("v_lshl_add_u32 v8, v26, 2, v8")
    I("s_lshl_b32 s56, s29, 7")
    I("s_waitcnt lgkmcnt(0)")
    I("s_load_dword s31, s[26:27], 0")
    srd(44, 4, 2048)
    I("buffer_load_dwordx4 v[18:21], v7, s[44:47], 0 offen")
    I("buffer_load_dwordx4 v[22:25], v7, s[44:47], 0 offen offset:16")
    I("buffer_load_dword v26, v8, s[44:47], s56 offen")
    I("s_cmp_eq_u32 s30, 5")
    I("s_cselect_b32 s40, s16, s18")
    I("s_cselect_b32 s41, s17, s19")
    I("s_cmp_eq_u32 s30, 4")
    I("s_cselect_b32 s40, s10, s40")
    I("s_cselect_b32 s41, s11, s41")
    I("s_mov_b32 s43, 0x20000")
    srd(36, 26, 0x10000000 if stamp else 0x200000)
    def wloads():
        for t in range(16):
            I(f"buffer_load_dwordx4 v[{BB+4*t}:{BB+4*t+3}], v6, s[40:43], s53 offen {wflag}")
            if t < 15: I("s_add_u32 s53, s53, s52")
    if gu_late:
        I("s_cbranch_scc0 L_p_skip")
        wloads()
        a.label("L_p_skip")
        I("s_barrier")
    else:
        wloads()
        I("s_barrier")
    make_sel(SEL, 27)
    I("v_mov_b32 v27, 0x3f803f80")
    if gu_late:
        I("s_cmp_eq_u32 s30, 4")
        I("s_cbranch_scc1 L_p_w16")
        I("s_waitcnt vmcnt(0)")
        a.label("L_p_w16")
    I("s_waitcnt vmcnt(16)")
    I("v_dot2_f32_bf16 v28, v18, v27, 0")
    I("v_dot2_f32_bf16 v29, v19, v27, 0")
    for k in range(2, 8, 2):
        I(f"v_dot2_f32_bf16 v28, v{18+k}, v27, v28")
        I(f"v_dot2_f32_bf16 v29, v{19+k}, v27, v29")
    for k in range(8):
        I(f"v_lshlrev_b32 v{32+2*k}, 16, v{18+k}")
        I(f"v_and_b32 v{33+2*k}, 0xffff0000, v{18+k}")
    I("v_add_f32 v28, v28, v29")
    def red32(r, t):
        I(f"v_add_f32_dpp v{r}, v{r}, v{r} quad_perm:[1,0,3,2] {DPP}")
        I(f"v_add_f32_dpp v{r}, v{r}, v{r} quad_perm:[2,3,0,1] {DPP}")
        I(f"v_add_f32_dpp v{r}, v{r}, v{r} row_half_mirror {DPP}")
        I(f"v_mov_b32 v{t}, v{r}")
        I(f"v_permlane16_swap_b32 v{r}, v{t}")
        I(f"v_add_f32 v{r}, v{r}, v{t}")
        I(f"v_mov_b32 v{t}, v{r}")
        I(f"v_permlane32_swap_b32 v{r}, v{t}")
        I(f"v_add_f32 v{r}, v{r}, v{t}")
    red32(28, 29)
    I(f"v_mul_f32 v28, {hex(f2u(1/512))}, v28")
    I("v_mov_b32 v29, v28")
    for k in range(8):
        I(f"v_pk_add_f32 v[{32+2*k}:{33+2*k}], v[{32+2*k}:{33+2*k}], v[28:29] neg_lo:[0,1] neg_hi:[0,1]")
    I("v_pk_mul_f32 v[30:31], v[32:33], v[32:33]")
    for k in range(1, 8):
        I(f"v_pk_fma_f32 v[30:31], v[{32+2*k}:{33+2*k}], v[{32+2*k}:{33+2*k}], v[30:31]")
    I("v_add_f32 v30, v30, v31")
    red32(30, 31)
    I(f"v_mul_f32 v30, {hex(f2u(1/512))}, v30")
    I("v_cvt_pk_bf16_f32 v28, v28, v30")
    I("v_and_b32 v30, 0xffff0000, v28")
    I("v_lshlrev_b32 v28, 16, v28")
    I(f"v_add_f32 v30, {hex(f2u(1e-5))}, v30")
    I("v_cvt_pk_bf16_f32 v30, v30, v30")
    I("v_and_b32 v30, 0xffff0000, v30")
    I("v_sqrt_f32 v30, v30")
    I("v_lshlrev_b32 v32, 16, v26")
    I("v_and_b32 v33, 0xffff0000, v26")
    I("v_cvt_pk_bf16_f32 v30, v30, v30")
    I("v_and_b32 v30, 0xffff0000, v30")
    I("v_rcp_f32 v30, v30")
    I("v_sub_f32 v32, v32, v28")
    I("v_sub_f32 v33, v33, v28")
    I("v_cvt_pk_bf16_f32 v26, v32, v33")
    I("v_lshlrev_b32 v32, 16, v26")
    I("v_and_b32 v33, 0xffff0000, v26")
    I("v_mul_f32 v32, v32, v30")
    I("v_mul_f32 v33, v33, v30")
    I("v_cvt_pk_bf16_f32 v26, v32, v33")
    I("s_waitcnt lgkmcnt(0)")
    I("s_mul_i32 s31, s31, 1664525")
    I("s_add_u32 s31, s31, 1013904223")
    I("v_and_b32 v7, 1, v3")
    I("v_lshlrev_b32 v7, 4, v7")
    I("v_lshl_add_u32 v7, v2, 5, v7")
    I("v_lshrrev_b32 v8, 1, v3")
    I("v_lshl_add_u32 v7, v8, 9, v7")
    I("s_sub_u32 s56, s30, 4")
    I("s_lshl_b32 s56, s56, 18")
    I("s_lshl_b32 s57, s35, 10")
    I("s_add_u32 s56, s56, s57")
    I(f"s_add_u32 s56, s56, {P0}")
    for u in range(8):
        I(f"v_mov_b32_dpp v{18+u}, v26 row_newbcast:{u} row_mask:0xf bank_mask:0x3")
        I(f"v_mov_b32_dpp v{18+u}, v26 row_newbcast:{8+u} row_mask:0xf bank_mask:0xc")
    for t in range(16):
        for i in range(4):
            I(f"v_perm_b32 v{AB+4*t+i}, v{18+t//2}, v{18+t//2}, v{SEL+4*(t%2)+i}")
    if gu_late:
        I("s_cmp_eq_u32 s30, 4")
        I("s_cbranch_scc1 L_p_mm")
        trig_wait(27)
        wloads()
        a.label("L_p_mm")
    for t in range(16):
        I(f"s_waitcnt vmcnt({15-t})")
        c = "0" if t == 0 else f"v[{D}:{D+3}]"
        I(f"v_mfma_f32_16x16x32_bf16 v[{D}:{D+3}], v[{AB+4*t}:{AB+4*t+3}], v[{BB+4*t}:{BB+4*t+3}], {c}")
    for r in range(4):
        I(f"v_bfi_b32 v{D+r}, 15, s31, v{D+r}")
    I(f"buffer_store_dwordx4 v[{D}:{D+3}], v7, s[36:39], s56 offen sc1")
    I("s_cmp_eq_u32 s30, 5")
    I("s_cbranch_scc1 L_PG")
    I("s_cmp_eq_u32 s30, 6")
    I("s_cbranch_scc1 L_end")

    ST(5)
    I("v_lshrrev_b32 v6, 5, v1")
    I("v_and_b32 v8, 31, v1")
    I("v_lshlrev_b32 v9, 3, v8")
    I("v_lshl_add_u32 v9, v6, 2, v9")
    I("v_lshlrev_b32 v6, 12, v6")
    I("v_lshl_add_u32 v6, v8, 4, v6")
    I("s_lshl_b32 s56, s28, 13")
    I("s_lshl_b32 s57, s32, 9")
    I("s_add_u32 s56, s56, s57")
    I(f"s_add_u32 s56, s56, {P0}")
    gpoll([f"buffer_load_dwordx4 v[{32+4*k}:{35+4*k}], v6, s[36:39], s56 offen offset:{1024*k} sc1" for k in range(4)],
          list(range(32, 48)), "15", 27)
    I("v_pk_add_f32 v[32:33], v[32:33], v[36:37]")
    I("v_pk_add_f32 v[34:35], v[34:35], v[38:39]")
    I("v_pk_add_f32 v[40:41], v[40:41], v[44:45]")
    I("v_pk_add_f32 v[42:43], v[42:43], v[46:47]")
    I("v_pk_add_f32 v[32:33], v[32:33], v[40:41]")
    I("v_pk_add_f32 v[34:35], v[34:35], v[42:43]")
    I("v_permlane32_swap_b32 v32, v34")
    I("v_permlane32_swap_b32 v33, v35")
    I("v_add_f32 v32, v32, v34")
    I("v_add_f32 v33, v33, v35")
    I("v_cvt_pk_bf16_f32 v32, v32, v33")
    I(f"ds_write_b32 v9, v32 offset:{L_Q}")
    I(f"ds_write_b32 v4, v4 offset:{L_FQ}")
    ST(6)
    I("v_and_b32 v6, 7, v1")
    I("v_lshlrev_b32 v9, 2, v6")
    I("v_lshlrev_b32 v6, 7, v6")
    I("s_lshl_b32 s56, s35, 7")
    I(f"s_add_u32 s56, s56, {H1S}")
    I("s_lshl_b32 s57, s28, 10")
    I(f"s_add_u32 s57, s57, {H1S}")
    lds_spin(L_L, 4, 32, sleep=1)
    I(f"ds_read_b128 v[40:43], v4 offset:{L_M}")
    I("v_add_f32 v33, v32, v33")
    I("v_add_f32 v34, v34, v35")
    I("v_add_f32 v33, v33, v34")
    I("s_waitcnt lgkmcnt(0)")
    I("v_max3_f32 v32, v40, v41, v42")
    I("v_max_f32 v32, v32, v43")
    I("v_bfi_b32 v32, v5, s31, v32")
    I("v_bfi_b32 v33, v5, s31, v33")
    I("v_mov_b32 v34, v32")
    I("v_mov_b32 v35, v33")
    I("s_mov_b64 exec, 1")
    I("buffer_store_dwordx4 v[32:35], v4, s[36:39], s56 offen sc1")
    I("s_mov_b64 exec, -1")
    gpoll(["buffer_load_dwordx4 v[36:39], v6, s[36:39], s57 offen sc1"], [36, 37, 38, 39], "v5", 27)
    I("v_and_b32 v36, 0xffffff00, v36")
    I(f"v_max_f32_dpp v40, v36, v36 quad_perm:[1,0,3,2] {DPP}")
    I(f"v_max_f32_dpp v40, v40, v40 quad_perm:[2,3,0,1] {DPP}")
    I("v_sub_f32 v36, v36, v40")
    I(f"v_mul_f32 v36, {hex(f2u(1.4426950408889634))}, v36")
    I("v_exp_f32 v36, v36")
    I("v_mul_f32 v37, v36, v37")
    I(f"v_add_f32_dpp v37, v37, v37 quad_perm:[1,0,3,2] {DPP}")
    I(f"v_add_f32_dpp v37, v37, v37 quad_perm:[2,3,0,1] {DPP}")
    I("v_rcp_f32 v37, v37")
    I("v_mul_f32 v36, v36, v37")
    I(f"ds_write_b32 v9, v36 offset:{L_W}")
    ST(7)
    flush_stamps()
    I("s_endpgm")

    def h2_addrs(base, vpub, vgat, spub, sgat):
        I("s_lshl_b32 s58, s28, 1")
        I("s_add_u32 s58, s58, s32")
        I("s_lshl_b32 s59, s33, 16")
        I(f"s_add_u32 s59, s59, {base}")
        big, small = f"s_lshl_b32 {{}}, s58, 10", f"s_lshl_b32 {{}}, s58, 4"
        if h2layout == "A":
            I(f"v_lshlrev_b32 v{vpub}, 10, v1"); I(small.format(spub))
            I(f"v_lshlrev_b32 v{vgat}, 4, v1"); I(big.format(sgat))
        else:
            I(f"v_lshlrev_b32 v{vpub}, 4, v1"); I(big.format(spub))
            I(f"v_lshlrev_b32 v{vgat}, 10, v1"); I(small.format(sgat))
        I(f"s_add_u32 {spub}, {spub}, s59")
        I(f"s_add_u32 {sgat}, {sgat}, s59")
    a.label("L_PG")
    stamps.clear(); sreg[0] = 66
    srd(40, 20, 1376 * 1024)
    I("v_mul_u32_u24 v6, 6144, v3")
    I("v_lshl_add_u32 v6, v2, 4, v6")
    I("s_lshl_b32 s52, s28, 1")
    I("s_add_u32 s52, s52, s32")
    I("s_mul_i32 s52, s52, 24576")
    I("s_lshl_b32 s53, s33, 8")
    I("s_add_u32 s52, s52, s53")
    I("s_add_u32 s53, s52, 0x1000")
    if not gu_late and wo_late: trig_wait(27)
    for t in range(6):
        I(f"buffer_load_dwordx4 v[{BB+4*t}:{BB+4*t+3}], v6, s[40:43], s{52+t//4} offen offset:{(t%4)*1024} {wflag}")
    h2_addrs(H2F, 8, 9, "s54", "s55")
    I("s_lshr_b32 s56, s58, 5")
    I("s_lshl_b32 s56, s56, 10")
    I("s_lshl_b32 s57, s33, 8")
    I("s_add_u32 s56, s56, s57")
    I("s_and_b32 s57, s58, 15")
    I("s_lshl_b32 s57, s57, 4")
    I("s_add_u32 s56, s56, s57")
    I("s_bfe_u32 s57, s58, 0x10004")
    I("s_lshl_b32 s57, s57, 3")
    I("s_add_u32 s56, s56, s57")
    I("v_lshlrev_b32 v7, 1, v3")
    I("buffer_load_ushort v124, v7, s[44:47], s56 offen")
    I("v_lshrrev_b32 v7, 3, v2")
    I("v_lshlrev_b32 v7, 9, v7")
    I("v_and_b32 v27, 7, v2")
    I("v_min_u32 v27, 2, v27")
    I("v_lshl_add_u32 v7, v27, 3, v7")
    I("v_mad_u32_u24 v7, v3, 24, v7")
    I("s_lshl_b32 s56, s28, 13")
    I("s_mul_i32 s57, s32, 96")
    I("s_add_u32 s56, s56, s57")
    I(f"s_add_u32 s60, s56, {P0 + 0x40000}")
    I(f"s_add_u32 s61, s56, {P0 + 0x41000}")
    I(f"s_add_u32 s62, s56, {P0 + 0x80000}")
    I(f"s_add_u32 s63, s56, {P0 + 0x81000}")
    G0 = 128
    gpoll([f"buffer_load_dwordx2 v[{G0+2*k}:{G0+1+2*k}], v7, s[36:39], s{60+k//4} offen offset:{1024*(k%4)} sc1" for k in range(16)],
          list(range(G0, G0 + 32)), "15", 27)
    ST(13)
    for base in (G0, G0 + 16):
        for k in range(4):
            I(f"v_pk_add_f32 v[{base+2*k}:{base+2*k+1}], v[{base+2*k}:{base+2*k+1}], v[{base+8+2*k}:{base+9+2*k}]")
        for k in range(2):
            I(f"v_pk_add_f32 v[{base+2*k}:{base+2*k+1}], v[{base+2*k}:{base+2*k+1}], v[{base+4+2*k}:{base+5+2*k}]")
        I(f"v_pk_add_f32 v[{base}:{base+1}], v[{base}:{base+1}], v[{base+2}:{base+3}]")
    I(f"v_cvt_pk_bf16_f32 v28, v{G0}, v{G0+1}")
    I(f"v_cvt_pk_bf16_f32 v29, v{G0+16}, v{G0+17}")
    I("v_lshlrev_b32 v30, 16, v28")
    I("v_and_b32 v31, 0xffff0000, v28")
    I(f"v_mul_f32 v30, {hex(f2u(-1.4426950408889634))}, v30")
    I(f"v_mul_f32 v31, {hex(f2u(-1.4426950408889634))}, v31")
    I("v_exp_f32 v30, v30")
    I("v_exp_f32 v31, v31")
    I("v_add_f32 v30, 1.0, v30")
    I("v_add_f32 v31, 1.0, v31")
    I("v_rcp_f32 v30, v30")
    I("v_rcp_f32 v31, v31")
    I("v_lshlrev_b32 v32, 16, v29")
    I("v_and_b32 v33, 0xffff0000, v29")
    I("v_cvt_pk_bf16_f32 v28, v30, v31")
    I("v_lshlrev_b32 v30, 16, v28")
    I("v_and_b32 v31, 0xffff0000, v28")
    I("v_mul_f32 v30, v30, v32")
    I("v_mul_f32 v31, v31, v33")
    I("v_cvt_pk_bf16_f32 v26, v30, v31")
    build_mfma(26, SEL, 18, AB, BB, D, 3)
    for r in range(4):
        I(f"v_bfi_b32 v{D+r}, v5, s31, v{D+r}")
    I(f"buffer_store_dwordx4 v[{D}:{D+3}], v8, s[36:39], s54 offen sc1")
    ST(14)
    gpoll(["buffer_load_dwordx4 v[32:35], v9, s[36:39], s55 offen sc1"], [32, 33, 34, 35], "v5", 27)
    reduce4(32)
    I("v_cvt_pk_bf16_f32 v33, v32, v32")
    I("v_and_b32 v33, 0xffff0000, v33")
    I("v_lshlrev_b32 v32, 16, v124")
    I("v_lshlrev_b32 v7, 3, v3")
    I(f"ds_write_b64 v7, v[32:33] offset:{L_FX}")
    ST(15)
    flush_stamps()
    I("s_endpgm")

    a.label("L_T")
    stamps.clear(); sreg[0] = 66
    if prio: I("s_setprio 3")
    I("v_lshlrev_b32 v6, 2, v1")
    I("v_mov_b32 v7, -1")
    I(f"ds_write_b32 v6, v7 offset:{L_M}")
    I("s_waitcnt lgkmcnt(0)")
    I("s_load_dword s31, s[26:27], 0")
    I("s_barrier")
    srd(40, 12, 0x400000); srd(36, 26, 0x10000000 if stamp else 0x200000); srd(48, 22, 2048)
    I("v_lshlrev_b32 v6, 14, v3")
    I("v_lshl_add_u32 v6, v2, 4, v6")
    I("s_lshl_b32 s52, s28, 17")
    I("s_lshl_b32 s53, s32, 16")
    I("s_add_u32 s52, s52, s53")
    I("s_lshl_b32 s53, s33, 8")
    I("s_add_u32 s52, s52, s53")
    I("s_add_u32 s53, s52, 0x1000")
    I("s_add_u32 s54, s52, 0x2000")
    I("s_add_u32 s55, s52, 0x3000")
    make_sel(SEL, 27)
    h2_addrs(H2A, 8, 9, "s60", "s61")
    I("s_lshr_b32 s56, s58, 5")
    I("s_lshl_b32 s56, s56, 10")
    I("s_lshl_b32 s57, s33, 8")
    I("s_add_u32 s56, s56, s57")
    I("s_and_b32 s57, s58, 15")
    I("s_lshl_b32 s57, s57, 4")
    I("s_add_u32 s56, s56, s57")
    I("s_bfe_u32 s57, s58, 0x10004")
    I("s_lshl_b32 s57, s57, 3")
    I("s_add_u32 s62, s56, s57")
    I("v_lshlrev_b32 v164, 1, v3")
    I("v_lshlrev_b32 v165, 3, v3")
    I("v_lshrrev_b32 v27, 3, v2")
    I("v_lshlrev_b32 v166, 4, v27")
    I("v_lshlrev_b32 v7, 11, v27")
    I("v_lshl_add_u32 v7, v3, 6, v7")
    I("v_and_b32 v27, 7, v2")
    I("v_lshl_add_u32 v7, v27, 3, v7")
    I("s_lshl_b32 s56, s28, 12")
    I("s_lshl_b32 s57, s32, 8")
    I("s_add_u32 s56, s56, s57")
    I(f"s_add_u32 s56, s56, {H1O}")
    I("s_waitcnt lgkmcnt(0)")
    I("s_mul_i32 s31, s31, 1664525")
    I("s_add_u32 s31, s31, 1013904223")
    if wo_late: trig_wait(27)
    for t in range(16):
        I(f"buffer_load_dwordx4 v[{BB+4*t}:{BB+4*t+3}], v6, s[40:43], s{52+t//4} offen offset:{(t%4)*1024} {wflag}")
    ST(8)
    lds_spin(L_OPUB, 1, 27)
    gpoll([f"buffer_load_dwordx2 v[{32+2*s}:{33+2*s}], v7, s[36:39], s56 offen offset:{512*s} sc1" for s in range(4)],
          list(range(32, 40)), "v5", 27)
    ST(9)
    lds_spin(L_W, 4, 40, addr="v166")
    I("v_mul_f32 v32, v32, v40")
    I("v_mul_f32 v33, v33, v40")
    for s in range(1, 4):
        I(f"v_fmac_f32 v32, v{32+2*s}, v{40+s}")
        I(f"v_fmac_f32 v33, v{33+2*s}, v{40+s}")
    I("v_cvt_pk_bf16_f32 v26, v32, v33")
    build_mfma(26, SEL, 18, AB, BB, D, 8)
    for r in range(4):
        I(f"v_bfi_b32 v{D+r}, v5, s31, v{D+r}")
    I(f"buffer_store_dwordx4 v[{D}:{D+3}], v8, s[36:39], s60 offen sc1")
    ST(10)
    gpoll(["buffer_load_dwordx4 v[32:35], v9, s[36:39], s61 offen sc1"], [32, 33, 34, 35], "v5", 27)
    ST(11)
    reduce4(32)
    lds_spin(L_FX, 2, 36, addr="v165")
    I("v_cvt_pk_bf16_f32 v32, v32, v32")
    I("v_and_b32 v32, 0xffff0000, v32")
    I("v_add_f32 v32, v36, v32")
    I("v_cvt_pk_bf16_f32 v32, v32, v32")
    I("v_and_b32 v32, 0xffff0000, v32")
    I("v_add_f32 v32, v32, v37")
    I("v_cvt_pk_bf16_f32 v32, v32, v32")
    I("s_mov_b32 s56, 0x00010001")
    I("s_mov_b32 s57, 0x00010001")
    I("s_mov_b64 exec, s[56:57]")
    I("buffer_store_short v32, v164, s[48:51], s62 offen")
    I("s_cmp_eq_u32 s2, 0")
    I("s_cbranch_scc0 L_t_end")
    I("s_mov_b64 exec, 1")
    I("v_mov_b32 v33, s31")
    I("buffer_store_dword v33, v4, s[36:39], 0 offen sc1")
    a.label("L_t_end")
    ST(12)
    flush_stamps()
    a.label("L_end")
    I("s_endpgm")

    nv = a.maxv + 1
    head = HDR + f"""; @launch grid=(256,1,1) block=(512,1,1) lds={LDS_BYTES}
.amdgcn_target "amdgcn-amd-amdhsa--gfx950"
.text
.globl {KN}_kernel
.p2align 8
.type {KN}_kernel,@function
{KN}_kernel:
"""
    foot = f""".section .rodata,"a"
.p2align 6
.amdhsa_kernel {KN}_kernel
  .amdhsa_next_free_vgpr {nv}
  .amdhsa_next_free_sgpr {max(a.maxs + 1, 16)}
  .amdhsa_accum_offset {(nv + 3) // 4 * 4}
  .amdhsa_group_segment_fixed_size 0
  .amdhsa_kernarg_size 96
  .amdhsa_user_sgpr_count 2
  .amdhsa_user_sgpr_kernarg_segment_ptr 1
  .amdhsa_system_sgpr_workgroup_id_x 1
  .amdhsa_float_denorm_mode_32 3
.end_amdhsa_kernel
"""
    return head + a.text() + foot

if __name__ == "__main__":
    open("k1.s", "w").write(gen())
    open("k1_st.s", "w").write(gen(stamp=True))
    open("k1_dbg.s", "w").write(gen(stamp="dbg", gu_late=False, win=12))
    open("k1_a.s", "w").write(gen(stamp=True, gu_late=False))
    for w in (4, 6, 8, 12):
        open(f"k1_w{w}.s", "w").write(gen(stamp=True, gu_late=False, win=w))
```

```python
import sys, struct
from asmlib import Asm
from common import KN
def f2u(x): return struct.unpack("<I", struct.pack("<f", x))[0]

HDR = open("cdna_kernels/" + KN + ".s.ref").read().split("; Override launch")[0]

PX = 0x140000; P0 = 0x10000; P1 = 0x50000; H1S = 0x90000; H1O = 0xA0000; H2F = 0xC0000; H2A = 0x100000
L_Q = 0x000; L_M = 0x100; L_L = 0x110; L_W = 0x120; L_FX = 0x140; L_FQ = 0x160; L_TRIG = 0x164; L_OCNT = 0x168; L_OPUB = 0x16c; L_PART = 0x200
LDS_BYTES = 0xA00

def gen(stamp=False, kvflag="nt", wflag="nt", prio=True, win=0, R=64, trigs=(20, 26), pre=(), fast=True, wopre=1, warm=True, qfast=True, winend=32, sw=0, abl=0):
    a = Asm(); I = a.i
    uid = [0]
    def lab(p):
        uid[0] += 1; return f"L_{p}_{uid[0]}"
    SC = "s34"
    stamps = {}
    sreg = [64]
    def ST(slot):
        if not stamp: return
        r = sreg[0]; sreg[0] += 2
        stamps[slot] = r
        I(f"s_memrealtime s[{r}:{r+1}]")
    def flush_stamps():
        if not stamp: return
        I("s_mov_b64 exec, 1")
        I("s_waitcnt lgkmcnt(0)")
        if stamp == "dbg":
            srd(96, 24, 256)
            for slot, r in stamps.items():
                if slot == 0: I(f"s_not_b32 s{r}, s{r}")
                I(f"v_mov_b32 v6, s{r}")
                I(f"buffer_atomic_umax v6, v4, s[96:99], 0 offen offset:{4*slot} sc1")
            stamps.clear(); sreg[0] = 64
            return
        I("s_lshl_b32 s52, s2, 7")
        I("s_add_u32 s52, s52, 0x8000000")
        for slot, r in stamps.items():
            I(f"v_mov_b32 v6, s{r}")
            I(f"buffer_store_dword v6, v4, s[36:39], s52 offen offset:{4*slot}")
        stamps.clear(); sreg[0] = 64
    def lds_spin(off, n, dst, addr="v4", sleep=0):
        L = lab("spin"); O = lab("spino")
        a.label(L)
        if sleep: I(f"s_sleep {sleep}")
        if n == 1: I(f"ds_read_b32 v{dst}, {addr} offset:{off}")
        elif n == 2: I(f"ds_read_b64 v[{dst}:{dst+1}], {addr} offset:{off}")
        else: I(f"ds_read_b128 v[{dst}:{dst+3}], {addr} offset:{off}")
        I(f"s_sub_u32 {SC}, {SC}, 1")
        I("s_waitcnt lgkmcnt(0)")
        I("s_cbranch_scc1 L_end")
        t = dst
        if n == 2:
            t = dst + 2; I(f"v_max_u32 v{t}, v{dst}, v{dst+1}")
        if n == 4:
            t = dst + 4
            I(f"v_max3_u32 v{t}, v{dst}, v{dst+1}, v{dst+2}")
            I(f"v_max_u32 v{t}, v{t}, v{dst+3}")
        I(f"v_cmp_eq_u32 vcc, -1, v{t}")
        I(f"s_cbranch_vccnz {L}")
        a.label(O)
    def trig_wait(tmp, k):
        L = lab("trig"); O = lab("trigo")
        a.label(L)
        I("s_sleep 1")
        I(f"ds_read_b32 v{tmp}, v4 offset:{L_TRIG}")
        I(f"s_sub_u32 {SC}, {SC}, 1")
        I("s_waitcnt lgkmcnt(0)")
        I("s_cbranch_scc1 L_end")
        I(f"v_cmp_gt_i32 vcc, {4*k-1}, v{tmp}")
        I(f"s_cbranch_vccnz {L}")
        a.label(O)
    def gpoll(loads, words, tagmask, acc):
        L = lab("poll"); O = lab("pollo")
        a.label(L)
        for l in loads: I(l)
        I(f"s_sub_u32 {SC}, {SC}, 64")
        I("s_waitcnt vmcnt(0)")
        I("s_cbranch_scc1 L_end")
        I(f"v_xor_b32 v{acc}, s31, v{words[0]}")
        for w in words[1:]:
            I(f"v_bitop3_b32 v{acc}, v{acc}, v{w}, s31 bitop3:0xf6")
        I(f"v_and_b32 v{acc}, {tagmask}, v{acc}")
        I(f"v_cmp_ne_u32 vcc, 0, v{acc}")
        I(f"s_cbranch_vccnz {L}")
        a.label(O)
    def srd(d, lo, n):
        I(f"s_mov_b32 s{d}, s{lo}"); I(f"s_mov_b32 s{d+1}, s{lo+1}")
        I(f"s_mov_b32 s{d+2}, {hex(n)}"); I(f"s_mov_b32 s{d+3}, 0x20000")
    DPP = "row_mask:0xf bank_mask:0xf"
    def make_sel(S, t0):
        I(f"v_and_b32 v{t0}, 1, v2")
        I(f"v_cmp_eq_u32 vcc, 1, v{t0}")
        I(f"v_bfe_u32 v{t0}, v2, 1, 2")
        I(f"v_mov_b32 v{t0+3}, 0x0c0c0c0c")
        for e in range(2):
            ev = 0x0c0c0000 | (2*e+1) << 8 | (2*e)
            od = (2*e+1) << 24 | (2*e) << 16 | 0x0c0c
            I(f"v_mov_b32 v{S}, {hex(ev)}")
            I(f"v_mov_b32 v{S+1}, {hex(od)}")
            I(f"v_cndmask_b32 v{t0+1+e}, v{S}, v{S+1}, vcc")
        for i in range(4):
            I(f"v_cmp_eq_u32 vcc, {i}, v{t0}")
            for e in range(2):
                I(f"v_cndmask_b32 v{S+4*e+i}, v{t0+3}, v{t0+1+e}, vcc")
    def build_mfma(Q, S, TMP, AB, BB, D, npair, nch=1):
        for u in range(npair):
            I(f"v_mov_b32_dpp v{TMP+u}, v{Q} row_newbcast:{u} row_mask:0xf bank_mask:0x3")
            I(f"v_mov_b32_dpp v{TMP+u}, v{Q} row_newbcast:{8+u} row_mask:0xf bank_mask:0xc")
        n = 2 * npair
        def perm(t):
            for i in range(4):
                I(f"v_perm_b32 v{AB+4*t+i}, v{TMP+t//2}, v{TMP+t//2}, v{S+4*(t%2)+i}")
        def mf(t):
            for cb in range(nch):
                d = D + 4 * cb; bb = BB + 4 * (t * nch + cb)
                c = "0" if t == 0 else f"v[{d}:{d+3}]"
                I(f"v_mfma_f32_16x16x32_bf16 v[{d}:{d+3}], v[{AB+4*t}:{AB+4*t+3}], v[{bb}:{bb+3}], {c}")
        perm(0)
        for t in range(n):
            if t + 1 < n: perm(t + 1)
            mf(t)
    def tagcheck(words, tagmask, acc):
        I(f"v_xor_b32 v{acc}, s31, v{words[0]}")
        for w in words[1:]:
            I(f"v_bitop3_b32 v{acc}, v{acc}, v{w}, s31 bitop3:0xf6")
        I(f"v_and_b32 v{acc}, {tagmask}, v{acc}")
        I(f"v_cmp_ne_u32 vcc, 0, v{acc}")
    def reduce4(V):
        I(f"v_permlane32_swap_b32 v{V}, v{V+2}")
        I(f"v_permlane32_swap_b32 v{V+1}, v{V+3}")
        I(f"v_add_f32 v{V}, v{V}, v{V+2}")
        I(f"v_add_f32 v{V+1}, v{V+1}, v{V+3}")
        I(f"v_permlane16_swap_b32 v{V}, v{V+1}")
        I(f"v_add_f32 v{V}, v{V}, v{V+1}")
        for r in (8, 4, 2, 1):
            I(f"v_add_f32_dpp v{V}, v{V}, v{V} row_ror:{r} {DPP}")


    WSN = 0x10000000 if stamp else 0x200000
    nch = 64 // R; ncg = 4 // nch; nrb = 128 // R; nt = R // 4
    NTRIG = len(trigs) + 1
    def EX(m):
        if m == -1: I("s_mov_b64 exec, s[86:87]")
        else: I(f"s_and_b64 exec, {m}, s[86:87]")
    def dry_next(lbl):
        I("s_cmp_eq_u64 s[86:87], 0")
        I(f"s_cbranch_scc1 {lbl}")
    ST(0)
    I("s_load_dwordx16 s[4:19], s[0:1], 0")
    I("s_load_dwordx8 s[20:27], s[0:1], 64")
    I("v_lshrrev_b32 v6, 6, v0")
    I("s_cmp_ge_u32 s2, 256")
    I("v_readfirstlane_b32 s30, v6")
    I("s_cbranch_scc1 L_end")
    I("v_and_b32 v1, 63, v0")
    I("s_cmp_eq_u32 s30, 7")
    I("s_cbranch_scc1 L_W")
    I("s_mov_b64 s[86:87], -1")
    I("s_and_b32 s28, s2, 7")
    I("s_lshl_b32 s28, s28, 2")
    I("s_lshr_b32 s29, s2, 6")
    I("s_add_u32 s28, s28, s29")
    I("s_bfe_u32 s29, s2, 0x30003")
    I("s_lshr_b32 s32, s29, 2")
    I("s_and_b32 s33, s29, 3")
    I("s_lshl_b32 s35, s28, 3")
    I("s_add_u32 s35, s35, s29")
    I(f"s_mov_b32 {SC}, 0x100000")
    I("v_and_b32 v2, 15, v1")
    I("v_lshrrev_b32 v3, 4, v1")
    I("v_mov_b32 v4, 0")
    I("v_mov_b32 v5, 0xff")
    I("s_cmp_eq_u32 s30, 6")
    I("s_cbranch_scc1 L_T")
    I("s_cmp_ge_u32 s30, 2")
    I("s_cbranch_scc1 L_S")
    a.raw("@@P@@")

    a.label("L_S")
    KB, VB, ACC, D = 32, 96, 16, 160
    I("s_sub_u32 s30, s30, 2")
    I("v_lshlrev_b32 v6, 4, v1")
    I("s_lshl_b32 s52, s32, 25")
    I("s_lshl_b32 s53, s28, 20")
    I("s_add_u32 s52, s52, s53")
    I("s_lshl_b32 s53, s33, 16")
    I("s_add_u32 s52, s52, s53")
    I("s_lshl_b32 s53, s30, 14")
    I("s_add_u32 s52, s52, s53")
    I("s_add_u32 s52, s52, 0xC0000")
    I("s_add_u32 s53, s52, 0x1000")
    I("s_add_u32 s54, s52, 0x2000")
    I("s_add_u32 s55, s52, 0x3000")
    I("v_mov_b32 v12, 1")
    I("s_mov_b32 s42, 0x4000000"); I("s_mov_b32 s43, 0x20000")
    I("s_mov_b32 s46, 0x4000000"); I("s_mov_b32 s47, 0x20000")
    I("s_waitcnt lgkmcnt(0)")
    I("s_mov_b32 s40, s6"); I("s_mov_b32 s41, s7"); I("s_mov_b32 s44, s8"); I("s_mov_b32 s45, s9")
    order = list(pre) + [t for t in range(32) if t not in pre]
    pos = {t: k for k, t in enumerate(order)}
    def kvload(t):
        base = KB + 4 * t; tt = t % 16
        I(f"buffer_load_dwordx4 v[{base}:{base+3}], v6, s[{40 if t < 16 else 44}:{43 if t < 16 else 47}], s{52+tt//4} offen offset:{(tt%4)*1024} {kvflag}")
    def trig():
        I("s_mov_b64 exec, 1")
        I(f"ds_add_u32 v4, v12 offset:{L_TRIG}")
        I("s_mov_b64 exec, -1")
    for k, t in enumerate(order):
        if k == len(pre):
            I("s_load_dword s31, s[26:27], 0")
            I("s_barrier")
            ST(22)
        if k in trigs: trig()
        if win and k >= win and k < winend: I(f"s_waitcnt vmcnt({win-1})")
        kvload(t)
    trig()
    ST(1)
    a.label("L_S_tail")
    srd(36, 26, WSN)
    if abl:
        I("s_waitcnt vmcnt(16)"); ST(2); I("s_waitcnt vmcnt(0)"); ST(21)
        I(f"s_cmp_eq_u32 s30, {sw}")
        I("s_cbranch_scc0 L_end")
        flush_stamps()
        I("s_endpgm")
    I("v_and_b32 v12, 1, v2")
    I("v_lshlrev_b32 v12, 4, v12")
    I("v_mov_b32 v13, 0xffff")
    I("v_lshlrev_b32 v12, v12, v13")
    I("v_lshrrev_b32 v13, 1, v2")
    for i in range(4):
        I(f"v_cmp_eq_u32 vcc, {i}, v13")
        I(f"v_cndmask_b32 v{8+i}, 0, v12, vcc")
    I("v_and_b32 v7, 1, v3")
    I("v_lshlrev_b32 v7, 4, v7")
    I("v_lshl_add_u32 v7, v2, 5, v7")
    I("s_lshl_b32 s56, s30, 9")
    I("v_add_u32 v164, s56, v7")
    I("s_lshl_b32 s56, s30, 2")
    I("v_mov_b32 v165, s56")
    I("v_lshlrev_b32 v166, 4, v2")
    I("s_mov_b32 s88, 0xcccccccc"); I("s_mov_b32 s89, 0xcccccccc")
    I("s_mov_b32 s90, 0xaaaaaaaa"); I("s_mov_b32 s91, 0xaaaaaaaa")
    I("s_waitcnt lgkmcnt(0)")
    I("s_mul_i32 s31, s31, 1664525")
    I("s_add_u32 s31, s31, 1013904223")
    I(f"s_lshl_b32 s57, s35, 9")
    I(f"s_add_u32 s57, s57, {H1O}")
    lds_spin(L_FQ, 1, 16, sleep=1)
    I(f"ds_read_b128 v[12:15], v166 offset:{L_Q}")
    I("v_readfirstlane_b32 s58, v16")
    ST(2)
    I("s_waitcnt lgkmcnt(0)")
    lastw = 99
    def wait_for(ts):
        nonlocal lastw
        n = 31 - max(pos[t] for t in ts)
        if n < lastw:
            I(f"s_waitcnt vmcnt({n})"); lastw = n
    for t in range(0, 16, 2):
        wait_for((t, t + 1))
        for i in range(4):
            for tt in (t, t + 1):
                c = "0" if i == 0 else f"v{ACC+tt}"
                I(f"v_dot2_f32_bf16 v{ACC+tt}, v{KB+4*tt+i}, v{12+i}, {c}")
    for t in range(8):
        I(f"v_add_f32_dpp v{ACC+t}, v{ACC+t}, v{ACC+t} row_ror:8 row_mask:0xf bank_mask:0x3")
    for t in range(8):
        I(f"v_add_f32_dpp v{ACC+t}, v{ACC+t+8}, v{ACC+t+8} row_ror:8 row_mask:0xf bank_mask:0xc")
    for t in range(4):
        I(f"v_add_f32_dpp v{ACC+t}, v{ACC+t}, v{ACC+t} row_shl:4 row_mask:0xf bank_mask:0x5")
    for t in range(4):
        I(f"v_add_f32_dpp v{ACC+t}, v{ACC+t+4}, v{ACC+t+4} row_shr:4 row_mask:0xf bank_mask:0xa")
    for t in range(4):
        I(f"v_add_f32_dpp v{ACC+t}, v{ACC+t}, v{ACC+t} quad_perm:[2,3,0,1] {DPP}")
    I(f"v_cndmask_b32 v{ACC}, v{ACC}, v{ACC+2}, s[88:89]")
    I(f"v_cndmask_b32 v{ACC+1}, v{ACC+1}, v{ACC+3}, s[88:89]")
    for t in range(2):
        I(f"v_add_f32_dpp v{ACC+t}, v{ACC+t}, v{ACC+t} quad_perm:[1,0,3,2] {DPP}")
    I(f"v_cndmask_b32 v16, v16, v17, s[90:91]")
    I("v_cvt_pk_bf16_f32 v16, v16, v16")
    I("v_and_b32 v16, 0xffff0000, v16")
    I(f"v_mul_f32 v16, {hex(f2u(128 ** -0.5))}, v16")
    I("v_cvt_pk_bf16_f32 v16, v16, v16")
    I("v_and_b32 v16, 0xffff0000, v16")
    I(f"v_max_f32_dpp v17, v16, v16 row_ror:8 {DPP}")
    for r in (4, 2, 1):
        I(f"v_max_f32_dpp v17, v17, v17 row_ror:{r} {DPP}")
    I("v_mov_b32 v18, v17")
    I("v_permlane16_swap_b32 v17, v18")
    I("v_max_f32 v17, v17, v18")
    I("v_mov_b32 v18, v17")
    I("v_permlane32_swap_b32 v17, v18")
    I("v_max_f32 v17, v17, v18")
    I(f"ds_write_b32 v165, v17 offset:{L_M}")
    ST(23)
    lds_spin(L_M, 4, 20)
    I("v_max3_f32 v17, v20, v21, v22")
    I("v_max_f32 v17, v17, v23")
    I("v_sub_f32 v16, v16, v17")
    I(f"v_mul_f32 v16, {hex(f2u(1.4426950408889634))}, v16")
    I("v_exp_f32 v16, v16")
    I("v_cvt_pk_bf16_f32 v19, v16, v16")
    I(f"v_add_f32_dpp v17, v16, v16 row_ror:8 {DPP}")
    for r in (4, 2, 1):
        I(f"v_add_f32_dpp v17, v17, v17 row_ror:{r} {DPP}")
    I("v_mov_b32 v18, v17")
    I("v_permlane16_swap_b32 v17, v18")
    I("v_add_f32 v17, v17, v18")
    I("v_mov_b32 v18, v17")
    I("v_permlane32_swap_b32 v17, v18")
    I("v_add_f32 v17, v17, v18")
    I(f"ds_write_b32 v165, v17 offset:{L_L}")
    for t in range(16):
        for i in range(4):
            I(f"v_and_b32_dpp v{KB+4*t+i}, v19, v{8+i} row_newbcast:{t} {DPP}")
    ST(3)
    I("v_mov_b32 v12, 1")
    for t in range(16):
        wait_for((16 + t,))
        if t == 15: ST(21)
        c = "0" if t == 0 else f"v[{D}:{D+3}]"
        I(f"v_mfma_f32_16x16x32_bf16 v[{D}:{D+3}], v[{KB+4*t}:{KB+4*t+3}], v[{VB+4*t}:{VB+4*t+3}], {c}")
    EX("0xffffffff")
    I(f"ds_write_b128 v164, v[{D}:{D+3}] offset:{L_PART}")
    EX(1)
    I(f"ds_add_rtn_u32 v13, v4, v12 offset:{L_OCNT}")
    EX("0xffffffff")
    for w in range(4):
        I(f"ds_read_b128 v[{16+4*w}:{19+4*w}], v7 offset:{L_PART+512*w}")
    I("s_waitcnt lgkmcnt(0)")
    I("v_readfirstlane_b32 s56, v13")
    I("v_pk_add_f32 v[16:17], v[16:17], v[20:21]")
    I("v_pk_add_f32 v[18:19], v[18:19], v[22:23]")
    I("s_cmp_eq_u32 s56, 2")
    I("s_cbranch_scc0 L_s_end")
    I("v_pk_add_f32 v[24:25], v[24:25], v[28:29]")
    I("v_pk_add_f32 v[26:27], v[26:27], v[30:31]")
    I("v_pk_add_f32 v[16:17], v[16:17], v[24:25]")
    I("v_pk_add_f32 v[18:19], v[18:19], v[26:27]")
    I("s_cmp_eq_u32 s58, 1")
    for r in range(4):
        I(f"v_bfi_b32 v{16+r}, v5, s31, v{16+r}")
    I("s_cbranch_scc1 L_s_fast")
    I("buffer_store_dwordx4 v[16:19], v7, s[36:39], s57 offen sc1")
    I("s_branch L_s_pub")
    a.label("L_s_fast")
    I("buffer_store_dwordx4 v[16:19], v7, s[36:39], s57 offen")
    a.label("L_s_pub")
    I(f"ds_write_b32 v4, v4 offset:{L_OPUB}")
    dry_next("L_T_tail")
    if stamp:
        keep = dict(stamps); stamps.clear(); ST(4); sv = sreg[0]; flush_stamps(); stamps.update(keep); sreg[0] = sv
    a.label("L_s_end")
    if stamp:
        I(f"s_cmp_eq_u32 s30, {sw}")
        I("s_cbranch_scc0 L_end")
        flush_stamps()
    I("s_endpgm")

    a.raw("@@PBEG@@")
    stamps.clear(); sreg[0] = 66
    if prio: I("s_setprio 2")
    AB, BB, SEL = 32, 96, 10
    I("s_lshr_b32 s56, s28, 1")
    I("s_cmp_eq_u32 s30, 0")
    I("s_movk_i32 s52, 2752"); I("s_movk_i32 s53, 192"); I("s_movk_i32 s55, 172"); I("s_mov_b32 s42, 1409024")
    I("s_cselect_b32 s52, 8192, s52")
    I("s_cselect_b32 s53, 256, s53")
    I("s_cselect_b32 s54, 16, 12")
    I("s_cselect_b32 s55, 512, s55")
    I("s_cselect_b32 s42, 0x400000, s42")
    I("s_cselect_b32 s56, s28, s56")
    I("s_mul_i32 s57, s56, s54")
    I("s_sub_i32 s55, s55, s57")
    I("s_min_i32 s54, s54, s55")
    I("s_mul_i32 s53, s53, s56")
    I("s_lshl_b32 s56, s29, 6")
    I("s_mul_i32 s56, s56, s52")
    I("s_add_u32 s53, s53, s56")
    I("s_lshl_b32 s56, s52, 4")
    I("v_mul_lo_u32 v6, v3, s56")
    I("v_lshl_add_u32 v6, v2, 4, v6")
    I("v_cmp_gt_i32 vcc, s54, v2")
    I("v_mov_b32 v7, 0x80000000")
    I("v_cndmask_b32 v6, v7, v6, vcc")
    I("v_lshrrev_b32 v9, 3, v2")
    I("v_and_b32 v26, 7, v2")
    I("v_lshlrev_b32 v9, 10, v9")
    I("v_lshl_add_u32 v7, v3, 8, v9")
    I("v_lshl_add_u32 v7, v26, 5, v7")
    I("v_lshl_add_u32 v8, v3, 5, v9")
    I("v_lshl_add_u32 v8, v26, 2, v8")
    I("s_lshl_b32 s56, s29, 7")
    I("s_mov_b32 s46, 2048"); I("s_mov_b32 s47, 0x20000"); I("s_mov_b32 s43, 0x20000")
    I("s_bitcmp1_b32 s28, 0")
    I("s_waitcnt lgkmcnt(0)")
    ST(16)
    I("s_mov_b32 s44, s4"); I("s_mov_b32 s45, s5")
    I("buffer_load_dwordx4 v[18:21], v7, s[44:47], 0 offen")
    I("buffer_load_dwordx4 v[22:25], v7, s[44:47], 0 offen offset:16")
    I("buffer_load_dword v26, v8, s[44:47], s56 offen")
    I("s_cselect_b32 s40, s18, s16")
    I("s_cselect_b32 s41, s19, s17")
    I("s_cmp_eq_u32 s30, 0")
    I("s_cselect_b32 s40, s10, s40")
    I("s_cselect_b32 s41, s11, s41")
    for t in range(16):
        I(f"buffer_load_dwordx4 v[{BB+4*t}:{BB+4*t+3}], v6, s[40:43], s53 offen {wflag}")
        if t < 15: I("s_add_u32 s53, s53, s52")
    I("s_barrier")
    I("s_load_dword s31, s[26:27], 0")
    srd(36, 26, WSN)
    I("s_getreg_b32 s59, hwreg(HW_REG_XCC_ID, 0, 4)")
    make_sel(SEL, 27)
    I("v_mov_b32 v27, 0x3f803f80")
    I("s_waitcnt vmcnt(16)")
    ST(17)
    I("v_dot2_f32_bf16 v28, v18, v27, 0")
    I("v_dot2_f32_bf16 v29, v19, v27, 0")
    for k in range(2, 8, 2):
        I(f"v_dot2_f32_bf16 v28, v{18+k}, v27, v28")
        I(f"v_dot2_f32_bf16 v29, v{19+k}, v27, v29")
    for k in range(8):
        I(f"v_lshlrev_b32 v{32+2*k}, 16, v{18+k}")
        I(f"v_and_b32 v{33+2*k}, 0xffff0000, v{18+k}")
    I("v_add_f32 v28, v28, v29")
    def red32(r, t):
        I(f"v_add_f32_dpp v{r}, v{r}, v{r} quad_perm:[1,0,3,2] {DPP}")
        I(f"v_add_f32_dpp v{r}, v{r}, v{r} quad_perm:[2,3,0,1] {DPP}")
        I(f"v_add_f32_dpp v{r}, v{r}, v{r} row_half_mirror {DPP}")
        I(f"v_mov_b32 v{t}, v{r}")
        I(f"v_permlane16_swap_b32 v{r}, v{t}")
        I(f"v_add_f32 v{r}, v{r}, v{t}")
        I(f"v_mov_b32 v{t}, v{r}")
        I(f"v_permlane32_swap_b32 v{r}, v{t}")
        I(f"v_add_f32 v{r}, v{r}, v{t}")
    red32(28, 29)
    I(f"v_mul_f32 v28, {hex(f2u(1/512))}, v28")
    I("v_mov_b32 v29, v28")
    for k in range(8):
        I(f"v_pk_add_f32 v[{32+2*k}:{33+2*k}], v[{32+2*k}:{33+2*k}], v[28:29] neg_lo:[0,1] neg_hi:[0,1]")
    I("v_pk_mul_f32 v[30:31], v[32:33], v[32:33]")
    for k in range(1, 8):
        I(f"v_pk_fma_f32 v[30:31], v[{32+2*k}:{33+2*k}], v[{32+2*k}:{33+2*k}], v[30:31]")
    I("v_add_f32 v30, v30, v31")
    red32(30, 31)
    I(f"v_mul_f32 v30, {hex(f2u(1/512))}, v30")
    I("v_cvt_pk_bf16_f32 v28, v28, v30")
    I("v_and_b32 v30, 0xffff0000, v28")
    I("v_lshlrev_b32 v28, 16, v28")
    I(f"v_add_f32 v30, {hex(f2u(1e-5))}, v30")
    I("v_cvt_pk_bf16_f32 v30, v30, v30")
    I("v_and_b32 v30, 0xffff0000, v30")
    I("v_sqrt_f32 v30, v30")
    I("v_lshlrev_b32 v32, 16, v26")
    I("v_and_b32 v33, 0xffff0000, v26")
    I("v_cvt_pk_bf16_f32 v30, v30, v30")
    I("v_and_b32 v30, 0xffff0000, v30")
    I("v_rcp_f32 v30, v30")
    I("v_sub_f32 v32, v32, v28")
    I("v_sub_f32 v33, v33, v28")
    I("v_cvt_pk_bf16_f32 v26, v32, v33")
    I("v_lshlrev_b32 v32, 16, v26")
    I("v_and_b32 v33, 0xffff0000, v26")
    I("v_mul_f32 v32, v32, v30")
    I("v_mul_f32 v33, v33, v30")
    I("v_cvt_pk_bf16_f32 v26, v32, v33")
    ST(18)
    for u in range(8):
        I(f"v_mov_b32_dpp v{18+u}, v26 row_newbcast:{u} row_mask:0xf bank_mask:0x3")
        I(f"v_mov_b32_dpp v{18+u}, v26 row_newbcast:{8+u} row_mask:0xf bank_mask:0xc")
    def pperm(t):
        for i in range(4):
            I(f"v_perm_b32 v{AB+4*t+i}, v{18+t//2}, v{18+t//2}, v{SEL+4*(t%2)+i}")
    pperm(0)
    for t in range(16):
        if t < 15: pperm(t + 1)
        I(f"s_waitcnt vmcnt({15-t})")
        c = "0" if t == 0 else f"v[{D}:{D+3}]"
        I(f"v_mfma_f32_16x16x32_bf16 v[{D}:{D+3}], v[{AB+4*t}:{AB+4*t+3}], v[{BB+4*t}:{BB+4*t+3}], {c}")
    I("s_waitcnt lgkmcnt(0)")
    I("s_mul_i32 s31, s31, 1664525")
    I("s_add_u32 s31, s31, 1013904223")
    I("v_and_b32 v7, 1, v3")
    I("v_lshlrev_b32 v7, 4, v7")
    I("v_lshl_add_u32 v7, v2, 5, v7")
    I("v_lshrrev_b32 v8, 1, v3")
    I("v_lshl_add_u32 v7, v8, 9, v7")
    I("s_lshl_b32 s56, s30, 18")
    I("s_lshl_b32 s57, s35, 10")
    I("s_add_u32 s56, s56, s57")
    I(f"s_add_u32 s56, s56, {P0}")
    I("s_lshl_b32 s59, s59, 4")
    I("s_and_b32 s57, s31, 15")
    I("s_or_b32 s59, s59, s57")
    I(f"v_bfi_b32 v{D}, v5, s59, v{D}")
    for r in range(1, 4):
        I(f"v_bfi_b32 v{D+r}, 15, s31, v{D+r}")
    I("s_cmp_eq_u32 s30, 1")
    I("s_cbranch_scc1 L_PG")
    if qfast:
        I(f"s_add_u32 s57, s56, {PX - P0}")
        I(f"buffer_store_dwordx4 v[{D}:{D+3}], v7, s[36:39], s57 offen")
    I(f"buffer_store_dwordx4 v[{D}:{D+3}], v7, s[36:39], s56 offen sc1")

    ST(5)
    a.label("L_PQ_tail")
    if abl:
        flush_stamps()
        I("s_endpgm")
    I("v_lshrrev_b32 v6, 5, v1")
    I("v_and_b32 v8, 31, v1")
    I("v_lshlrev_b32 v9, 3, v8")
    I("v_lshl_add_u32 v9, v6, 2, v9")
    I("v_lshlrev_b32 v6, 12, v6")
    I("v_lshl_add_u32 v6, v8, 4, v6")
    I("s_lshl_b32 s56, s28, 13")
    I("s_lshl_b32 s57, s32, 9")
    I("s_add_u32 s56, s56, s57")
    I(f"s_add_u32 s56, s56, {P0}")
    I(f"s_add_u32 s57, s56, {PX - P0 if qfast else 0}")
    def qloads(base, so="s56"):
        return [f"buffer_load_dwordx4 v[{base+4*k}:{base+3+4*k}], v6, s[36:39], {so} offen offset:{1024*k} sc1" for k in range(4)]
    def qsum(base):
        I(f"v_xor_b32 v28, s59, v{base}")
        for k in range(1, 4):
            I(f"v_bitop3_b32 v28, v28, v{base+4*k}, s59 bitop3:0xf6")
        I(f"v_pk_add_f32 v[32:33], v[{base}:{base+1}], v[{base+4}:{base+5}]")
        I(f"v_pk_add_f32 v[34:35], v[{base+2}:{base+3}], v[{base+6}:{base+7}]")
        I(f"v_pk_add_f32 v[40:41], v[{base+8}:{base+9}], v[{base+12}:{base+13}]")
        I(f"v_pk_add_f32 v[42:43], v[{base+10}:{base+11}], v[{base+14}:{base+15}]")
    ns = len(trigs)
    for k in range(ns):
        trig_wait(27, k + 1)
        if k == 0: ST(20)
        for l in qloads(48 + 16 * k, "s57"): I(l)
    for k in range(ns):
        I(f"s_waitcnt vmcnt({4*(ns-1-k)})")
        tagcheck(list(range(48 + 16 * k, 64 + 16 * k)), "15", 27)
        nx = lab("qn")
        I(f"s_cbranch_vccnz {nx}")
        qsum(48 + 16 * k)
        I("s_branch L_q_ok")
        a.label(nx)
    gpoll(qloads(32), list(range(32, 48)), "15", 27)
    qsum(32)
    a.label("L_q_ok")
    I("v_pk_add_f32 v[32:33], v[32:33], v[40:41]")
    I("v_pk_add_f32 v[34:35], v[34:35], v[42:43]")
    I("v_and_b32 v28, v5, v28")
    I("v_cmp_ne_u32 vcc, 0, v28")
    I("v_permlane32_swap_b32 v32, v34")
    I("v_permlane32_swap_b32 v33, v35")
    I("v_add_f32 v32, v32, v34")
    I("v_add_f32 v33, v33, v35")
    I("v_cvt_pk_bf16_f32 v32, v32, v33")
    I("s_cmp_eq_u64 vcc, 0")
    I(f"s_cselect_b32 s58, {1 if fast else 0}, 0")
    I(f"ds_write_b32 v9, v32 offset:{L_Q}")
    I("v_mov_b32 v33, s58")
    I(f"ds_write_b32 v4, v33 offset:{L_FQ}")
    ST(6)
    I("v_and_b32 v6, 7, v1")
    I("v_lshlrev_b32 v9, 2, v6")
    I("v_lshlrev_b32 v6, 7, v6")
    I("s_lshl_b32 s56, s35, 7")
    I(f"s_add_u32 s56, s56, {H1S}")
    I("s_lshl_b32 s57, s28, 10")
    I(f"s_add_u32 s57, s57, {H1S}")
    I("v_lshlrev_b32 v7, 4, v1")
    lds_spin(L_L, 4, 32, sleep=1)
    I(f"ds_read_b128 v[40:43], v4 offset:{L_M}")
    I("v_add_f32 v33, v32, v33")
    I("v_add_f32 v34, v34, v35")
    I("v_add_f32 v33, v33, v34")
    I("s_waitcnt lgkmcnt(0)")
    I("v_max3_f32 v32, v40, v41, v42")
    I("v_max_f32 v32, v32, v43")
    I("v_bfi_b32 v32, v5, s31, v32")
    I("v_bfi_b32 v33, v5, s31, v33")
    I("v_mov_b32 v34, v32")
    I("v_mov_b32 v35, v33")
    EX("0xff")
    I("s_cmp_eq_u32 s58, 1")
    I("s_cbranch_scc1 L_st_fast")
    I("buffer_store_dwordx4 v[32:35], v7, s[36:39], s56 offen sc1")
    I("s_branch L_st_pub")
    a.label("L_st_fast")
    I("buffer_store_dwordx4 v[32:35], v7, s[36:39], s56 offen")
    a.label("L_st_pub")
    EX(-1)
    ST(19)
    gpoll(["buffer_load_dwordx4 v[36:39], v6, s[36:39], s57 offen sc1"], [36, 37, 38, 39], "v5", 27)
    I("v_and_b32 v36, 0xffffff00, v36")
    I(f"v_max_f32_dpp v40, v36, v36 quad_perm:[1,0,3,2] {DPP}")
    I(f"v_max_f32_dpp v40, v40, v40 quad_perm:[2,3,0,1] {DPP}")
    I("v_sub_f32 v36, v36, v40")
    I(f"v_mul_f32 v36, {hex(f2u(1.4426950408889634))}, v36")
    I("v_exp_f32 v36, v36")
    I("v_mul_f32 v37, v36, v37")
    I(f"v_add_f32_dpp v37, v37, v37 quad_perm:[1,0,3,2] {DPP}")
    I(f"v_add_f32_dpp v37, v37, v37 quad_perm:[2,3,0,1] {DPP}")
    I("v_rcp_f32 v37, v37")
    I("v_mul_f32 v36, v36, v37")
    I(f"ds_write_b32 v9, v36 offset:{L_W}")
    dry_next("L_S_tail")
    ST(7)
    flush_stamps()
    I("s_endpgm")

    lg = {1: 0, 2: 1, 4: 2, 8: 3}
    def my_piece(sp, spc):
        I(f"s_lshr_b32 {sp}, s29, {lg[ncg]}")
        I(f"s_lshl_b32 {spc}, s28, {lg[nrb]}")
        I(f"s_add_u32 {sp}, {sp}, {spc}")
        I(f"s_and_b32 {spc}, s29, {ncg-1}")
        I(f"s_lshl_b32 {spc}, {spc}, {lg[nch]+6}")
        I(f"s_add_u32 {spc}, {spc}, {sp}")
    def out_off(dst, spc, tmp):
        I(f"s_lshr_b32 {dst}, {spc}, 6"); I(f"s_lshl_b32 {dst}, {dst}, 8")
        I(f"s_bfe_u32 {tmp}, {spc}, 0x10005"); I(f"s_lshl_b32 {tmp}, {tmp}, 10"); I(f"s_add_u32 {dst}, {dst}, {tmp}")
        I(f"s_and_b32 {tmp}, {spc}, 15"); I(f"s_lshl_b32 {tmp}, {tmp}, 4"); I(f"s_add_u32 {dst}, {dst}, {tmp}")
        I(f"s_bfe_u32 {tmp}, {spc}, 0x10004"); I(f"s_lshl_b32 {tmp}, {tmp}, 3"); I(f"s_add_u32 {dst}, {dst}, {tmp}")

    a.label("L_PG")
    stamps.clear(); sreg[0] = 80
    I(f"buffer_store_dwordx4 v[{D}:{D+3}], v7, s[36:39], s56 offen sc1")
    srd(40, 20, 1376 * 1024)
    I("v_mul_u32_u24 v6, 6144, v3")
    I("v_lshl_add_u32 v6, v2, 4, v6")
    I("s_lshl_b32 s58, s28, 1")
    I("s_add_u32 s58, s58, s32")
    I("s_mul_i32 s52, s58, 24576")
    I("s_lshl_b32 s53, s33, 8")
    I("s_add_u32 s52, s52, s53")
    I("s_add_u32 s53, s52, 0x1000")
    for t in range(6):
        I(f"buffer_load_dwordx4 v[{BB+4*t}:{BB+4*t+3}], v6, s[40:43], s{52+t//4} offen offset:{(t%4)*1024} {wflag}")
    I("v_lshlrev_b32 v8, 10, v1")
    I("s_lshl_b32 s54, s33, 16")
    I("s_lshl_b32 s55, s58, 4")
    I("s_add_u32 s54, s54, s55")
    I(f"s_add_u32 s54, s54, {H2F}")
    my_piece("s56", "s57")
    I("v_lshlrev_b32 v9, 4, v1")
    I("s_lshl_b32 s55, s57, 10")
    I(f"s_add_u32 s55, s55, {H2F}")
    out_off("s56", "s57", "s58")
    I("v_lshlrev_b32 v7, 1, v3")
    I("buffer_load_ushort v124, v7, s[44:47], s56 offen")
    I("v_lshrrev_b32 v7, 3, v2")
    I("v_lshlrev_b32 v7, 9, v7")
    I("v_and_b32 v27, 7, v2")
    I("v_min_u32 v27, 2, v27")
    I("v_lshl_add_u32 v7, v27, 3, v7")
    I("v_mad_u32_u24 v7, v3, 24, v7")
    I("s_and_b32 s56, s28, 30")
    I("s_lshl_b32 s56, s56, 13")
    I("s_and_b32 s57, s28, 1")
    I("s_lshl_b32 s57, s57, 1")
    I("s_add_u32 s57, s57, s32")
    I("s_mul_i32 s57, s57, 96")
    I("s_add_u32 s56, s56, s57")
    for k in range(4):
        I(f"s_add_u32 s{60+k}, s56, {P1 + 0x1000*k}")
    G0 = 128
    a.label("L_PG_tail")
    if abl:
        I("s_waitcnt vmcnt(0)"); ST(13)
        flush_stamps()
        I("s_endpgm")
    trig_wait(27, 1)
    gpoll([f"buffer_load_dwordx2 v[{G0+2*k}:{G0+1+2*k}], v7, s[36:39], s{60+k//4} offen offset:{1024*(k%4)} sc1" for k in range(16)],
          list(range(G0, G0 + 32)), "15", 27)
    ST(13)
    for base in (G0, G0 + 16):
        for k in range(4):
            I(f"v_pk_add_f32 v[{base+2*k}:{base+2*k+1}], v[{base+2*k}:{base+2*k+1}], v[{base+8+2*k}:{base+9+2*k}]")
        for k in range(2):
            I(f"v_pk_add_f32 v[{base+2*k}:{base+2*k+1}], v[{base+2*k}:{base+2*k+1}], v[{base+4+2*k}:{base+5+2*k}]")
        I(f"v_pk_add_f32 v[{base}:{base+1}], v[{base}:{base+1}], v[{base+2}:{base+3}]")
    I(f"v_cvt_pk_bf16_f32 v28, v{G0}, v{G0+1}")
    I(f"v_cvt_pk_bf16_f32 v29, v{G0+16}, v{G0+17}")
    I("v_lshlrev_b32 v30, 16, v28")
    I("v_and_b32 v31, 0xffff0000, v28")
    I(f"v_mul_f32 v30, {hex(f2u(-1.4426950408889634))}, v30")
    I(f"v_mul_f32 v31, {hex(f2u(-1.4426950408889634))}, v31")
    I("v_exp_f32 v30, v30")
    I("v_exp_f32 v31, v31")
    I("v_add_f32 v30, 1.0, v30")
    I("v_add_f32 v31, 1.0, v31")
    I("v_rcp_f32 v30, v30")
    I("v_rcp_f32 v31, v31")
    I("v_lshlrev_b32 v32, 16, v29")
    I("v_and_b32 v33, 0xffff0000, v29")
    I("v_cvt_pk_bf16_f32 v28, v30, v31")
    I("v_lshlrev_b32 v30, 16, v28")
    I("v_and_b32 v31, 0xffff0000, v28")
    I("v_mul_f32 v30, v30, v32")
    I("v_mul_f32 v31, v31, v33")
    I("v_cvt_pk_bf16_f32 v26, v30, v31")
    build_mfma(26, SEL, 18, AB, BB, D, 3)
    for r in range(4):
        I(f"v_bfi_b32 v{D+r}, v5, s31, v{D+r}")
    I(f"buffer_store_dwordx4 v[{D}:{D+3}], v8, s[36:39], s54 offen sc1")
    ST(14)
    gpoll(["buffer_load_dwordx4 v[32:35], v9, s[36:39], s55 offen sc1"], [32, 33, 34, 35], "v5", 27)
    reduce4(32)
    I("v_cvt_pk_bf16_f32 v33, v32, v32")
    I("v_and_b32 v33, 0xffff0000, v33")
    I("v_lshlrev_b32 v32, 16, v124")
    I("v_lshlrev_b32 v7, 3, v3")
    I(f"ds_write_b64 v7, v[32:33] offset:{L_FX}")
    dry_next("L_end")
    ST(15)
    flush_stamps()
    I("s_endpgm")

    a.raw("@@PEND@@")
    a.label("L_T")
    stamps.clear(); sreg[0] = 66
    if prio: I("s_setprio 3")
    DT = 80 if nch > 1 else D
    I(f"v_lshlrev_b32 v6, {10 + lg[nch == 4 and 4 or 1] * 0 + {16:4, 8:3, 4:2}[nt]}, v3")
    I("v_lshl_add_u32 v6, v2, 4, v6")
    my_piece("s58", "s59")
    I(f"s_lshl_b32 s52, s58, {10 + {64:6, 32:5, 16:4}[R]}")
    I(f"s_and_b32 s53, s29, {ncg-1}")
    I(f"s_lshl_b32 s53, s53, {8 + lg[nch]}")
    I("s_add_u32 s52, s52, s53")
    I("s_add_u32 s53, s52, 0x1000")
    I("s_add_u32 s54, s52, 0x2000")
    I("s_add_u32 s55, s52, 0x3000")
    I("s_mov_b32 s42, 0x400000"); I("s_mov_b32 s43, 0x20000")
    I("s_waitcnt lgkmcnt(0)")
    I("s_load_dword s31, s[26:27], 0")
    I("s_mov_b32 s40, s12"); I("s_mov_b32 s41, s13")
    def woload(k):
        t, cb = k // nch, k % nch
        I(f"buffer_load_dwordx4 v[{BB+4*k}:{BB+4*k+3}], v6, s[40:43], s{52+t//4} offen offset:{(t%4)*1024 + cb*256} {wflag}")
    I("s_barrier")
    for k in range(wopre): woload(k)
    srd(36, 26, WSN); srd(48, 22, 2048)
    make_sel(SEL, 27)
    I(f"v_lshlrev_b32 v8, {10 + lg[nch]}, v1")
    I(f"s_and_b32 s60, s29, {ncg-1}")
    I(f"s_lshl_b32 s60, s60, {16 + 2*lg[nch]}")
    I("s_lshl_b32 s61, s58, 4")
    I("s_add_u32 s60, s60, s61")
    I(f"s_add_u32 s60, s60, {H2A}")
    for cb in range(1, nch):
        I(f"s_add_u32 s{44+cb}, s60, {cb << (16 + lg[nch])}")
    I("v_lshlrev_b32 v9, 4, v1")
    I(f"s_lshl_b32 s61, s59, {10 + lg[nch]}")
    I(f"s_add_u32 s61, s61, {H2A}")
    out_off("s62", "s59", "s57")
    I("v_lshlrev_b32 v164, 1, v3")
    I("v_lshlrev_b32 v165, 3, v3")
    I("v_lshrrev_b32 v27, 3, v2")
    I("v_lshlrev_b32 v166, 4, v27")
    I("v_lshlrev_b32 v7, 11, v27")
    I(f"v_lshl_add_u32 v7, v3, {2 + {16:4, 8:3, 4:2}[nt]}, v7")
    I("v_and_b32 v27, 7, v2")
    if nt < 16: I(f"v_min_u32 v27, {nt//2 - 1}, v27")
    I("v_lshl_add_u32 v7, v27, 3, v7")
    I("s_lshl_b32 s56, s28, 12")
    I(f"s_lshr_b32 s57, s29, {lg[ncg]}")
    I(f"s_lshl_b32 s57, s57, {2 + {64:6, 32:5, 16:4}[R]}")
    I("s_add_u32 s56, s56, s57")
    I(f"s_add_u32 s56, s56, {H1O}")
    I("s_waitcnt lgkmcnt(0)")
    I("s_mul_i32 s31, s31, 1664525")
    I("s_add_u32 s31, s31, 1013904223")
    a.label("L_T_tail")
    I("s_mov_b32 s88, 0x00010001")
    I("s_mov_b32 s89, 0x00010001")
    trig_wait(27, NTRIG)
    ST(24)
    for k in range(wopre, 16): woload(k)
    ST(8)
    if abl:
        I("s_waitcnt vmcnt(0)"); ST(9)
        flush_stamps()
        I("s_endpgm")
    lds_spin(L_OPUB, 1, 27)
    gpoll([f"buffer_load_dwordx2 v[{32+2*s}:{33+2*s}], v7, s[36:39], s56 offen offset:{512*s} sc1" for s in range(4)],
          list(range(32, 40)), "v5", 27)
    ST(9)
    lds_spin(L_W, 4, 40, addr="v166")
    I("v_mul_f32 v32, v32, v40")
    I("v_mul_f32 v33, v33, v40")
    for s in range(1, 4):
        I(f"v_fmac_f32 v32, v{32+2*s}, v{40+s}")
        I(f"v_fmac_f32 v33, v{33+2*s}, v{40+s}")
    I("v_cvt_pk_bf16_f32 v26, v32, v33")
    build_mfma(26, SEL, 18, AB, BB, DT, nt // 2, nch)
    for cb in range(nch):
        for r in range(4):
            I(f"v_bfi_b32 v{DT+4*cb+r}, v5, s31, v{DT+4*cb+r}")
        I(f"buffer_store_dwordx4 v[{DT+4*cb}:{DT+4*cb+3}], v8, s[36:39], s{60 if cb == 0 else 44+cb} offen sc1")
    ST(10)
    gpoll([f"buffer_load_dwordx4 v[{32+4*k}:{35+4*k}], v9, s[36:39], s61 offen offset:{1024*k} sc1" for k in range(nch)],
          list(range(32, 32 + 4 * nch)), "v5", 27)
    ST(11)
    if nch == 4:
        I("v_pk_add_f32 v[40:41], v[40:41], v[44:45]")
        I("v_pk_add_f32 v[42:43], v[42:43], v[46:47]")
    if nch >= 2:
        I("v_pk_add_f32 v[32:33], v[32:33], v[36:37]")
        I("v_pk_add_f32 v[34:35], v[34:35], v[38:39]")
    if nch == 4:
        I("v_pk_add_f32 v[32:33], v[32:33], v[40:41]")
        I("v_pk_add_f32 v[34:35], v[34:35], v[42:43]")
    reduce4(32)
    lds_spin(L_FX, 2, 36, addr="v165")
    I("v_cvt_pk_bf16_f32 v32, v32, v32")
    I("v_and_b32 v32, 0xffff0000, v32")
    I("v_add_f32 v32, v36, v32")
    I("v_cvt_pk_bf16_f32 v32, v32, v32")
    I("v_and_b32 v32, 0xffff0000, v32")
    I("v_add_f32 v32, v32, v37")
    I("v_cvt_pk_bf16_f32 v32, v32, v32")
    I("s_and_b64 exec, s[88:89], s[86:87]")
    I("buffer_store_short v32, v164, s[48:51], s62 offen")
    I("s_cmp_eq_u32 s2, 0")
    I("s_cbranch_scc0 L_t_end")
    EX(1)
    I("v_mov_b32 v33, s31")
    I("buffer_store_dword v33, v4, s[36:39], 0 offen sc1")
    a.label("L_t_end")
    dry_next("L_PG_tail")
    ST(12)
    flush_stamps()
    I("s_endpgm")
    a.label("L_W")
    I("v_lshlrev_b32 v6, 2, v1")
    I("v_mov_b32 v7, -1")
    I(f"ds_write_b32 v6, v7 offset:{L_M}")
    if not warm:
        I("s_waitcnt lgkmcnt(0)")
        I("s_barrier")
    if warm:
        I("s_mov_b64 s[86:87], 0")
        I("v_mov_b32 v13, 2"); I("v_mov_b32 v16, 1")
        for r in (4, 6, 7, 8, 9, 164, 165, 166): I(f"v_mov_b32 v{r}, 0")
        for r in [28, 29, 30, 31, 32, 33, 35] + list(range(52, 64)): I(f"s_mov_b32 s{r}, 0")
        I(f"s_mov_b32 {SC}, 0x100000")
        I("s_mov_b64 exec, 0")
        I("s_waitcnt lgkmcnt(0)")
        for d in (36, 40, 44, 48): srd(d, 26, 0x200000)
        I("s_barrier")
        I("s_branch L_PQ_tail")
    a.label("L_end")
    I("s_endpgm")

    nv = a.maxv + 1
    head = HDR + f"""; @launch grid=(256,1,1) block=(512,1,1) lds={LDS_BYTES}
.amdgcn_target "amdgcn-amd-amdhsa--gfx950"
.text
.globl {KN}_kernel
.p2align 8
.type {KN}_kernel,@function
{KN}_kernel:
"""
    foot = f""".section .rodata,"a"
.p2align 6
.amdhsa_kernel {KN}_kernel
  .amdhsa_next_free_vgpr {nv}
  .amdhsa_next_free_sgpr {max(a.maxs + 1, 16)}
  .amdhsa_accum_offset {(nv + 3) // 4 * 4}
  .amdhsa_group_segment_fixed_size 0
  .amdhsa_kernarg_size 96
  .amdhsa_user_sgpr_count 2
  .amdhsa_user_sgpr_kernarg_segment_ptr 1
  .amdhsa_system_sgpr_workgroup_id_x 1
  .amdhsa_float_denorm_mode_32 3
.end_amdhsa_kernel
"""
    txt = a.text()
    i0 = txt.index("@@PBEG@@\n"); i1 = txt.index("@@PEND@@\n")
    P = txt[i0 + 9:i1]
    txt = txt[:i0] + txt[i1 + 9:]
    txt = txt.replace("@@P@@\n", P)
    return head + txt + foot

if __name__ == "__main__":
    import json
    name = sys.argv[1]; kw = {}
    for x in sys.argv[2:]:
        k, v = x.split("="); kw[k] = eval(v)
    open(name, "w").write(gen(**kw))
```

```python
import sys, struct
from asmlib import Asm
from common import KN
def f2u(x): return struct.unpack("<I", struct.pack("<f", x))[0]

HDR = open("cdna_kernels/" + KN + ".s.ref").read().split("; Override launch")[0]

PX = 0x140000; P0 = 0x10000; P1 = 0x50000; H1S = 0x90000; H1O = 0xA0000; H2F = 0xC0000; H2A = 0x100000
L_Q = 0x000; L_M = 0x100; L_L = 0x110; L_W = 0x120; L_FX = 0x140; L_FQ = 0x160; L_TRIG = 0x164; L_OCNT = 0x168; L_OPUB = 0x16c; L_KS = 0x170; L_P2 = 0x200; L_PART = 0x600
LDS_BYTES = 0xE00

def gen(stamp=False, kvflag="nt", wflag="nt", prio=True, R=64, fast=True, wopre=0, qfast=True, sw=0, abl=0, gran=4, lag=0, qlev=(2,), glev=2, kwin=0, vwin=0, rot=0, noffn=0, noy=0, ysleep=0):
    a = Asm(); I = a.i
    uid = [0]
    def lab(p):
        uid[0] += 1; return f"L_{p}_{uid[0]}"
    SC = "s34"
    stamps = {}
    sreg = [64]
    def ST(slot):
        if not stamp: return
        r = sreg[0]; sreg[0] += 2
        stamps[slot] = r
        I(f"s_memrealtime s[{r}:{r+1}]")
    def flush_stamps():
        if not stamp: return
        I("s_mov_b64 exec, 1")
        I("s_waitcnt lgkmcnt(0)")
        if stamp == "dbg":
            srd(96, 24, 256)
            for slot, r in stamps.items():
                if slot == 0: I(f"s_not_b32 s{r}, s{r}")
                I(f"v_mov_b32 v6, s{r}")
                I(f"buffer_atomic_umax v6, v4, s[96:99], 0 offen offset:{4*slot} sc1")
            stamps.clear(); sreg[0] = 64
            return
        I("s_lshl_b32 s52, s2, 7")
        I("s_add_u32 s52, s52, 0x8000000")
        for slot, r in stamps.items():
            I(f"v_mov_b32 v6, s{r}")
            I(f"buffer_store_dword v6, v4, s[36:39], s52 offen offset:{4*slot}")
        stamps.clear(); sreg[0] = 64
    def lds_spin(off, n, dst, addr="v4", sleep=0):
        L = lab("spin"); O = lab("spino")
        a.label(L)
        if sleep: I(f"s_sleep {sleep}")
        if n == 1: I(f"ds_read_b32 v{dst}, {addr} offset:{off}")
        elif n == 2: I(f"ds_read_b64 v[{dst}:{dst+1}], {addr} offset:{off}")
        else: I(f"ds_read_b128 v[{dst}:{dst+3}], {addr} offset:{off}")
        I(f"s_sub_u32 {SC}, {SC}, 1")
        I("s_waitcnt lgkmcnt(0)")
        I("s_cbranch_scc1 L_end")
        t = dst
        if n == 2:
            t = dst + 2; I(f"v_max_u32 v{t}, v{dst}, v{dst+1}")
        if n == 4:
            t = dst + 4
            I(f"v_max3_u32 v{t}, v{dst}, v{dst+1}, v{dst+2}")
            I(f"v_max_u32 v{t}, v{t}, v{dst+3}")
        I(f"v_cmp_eq_u32 vcc, -1, v{t}")
        I(f"s_cbranch_vccnz {L}")
        a.label(O)
    def trig_wait(tmp, k):
        L = lab("trig"); O = lab("trigo")
        a.label(L)
        I("s_sleep 1")
        I(f"ds_read_b32 v{tmp}, v4 offset:{L_TRIG}")
        I(f"s_sub_u32 {SC}, {SC}, 1")
        I("s_waitcnt lgkmcnt(0)")
        I("s_cbranch_scc1 L_end")
        I(f"v_cmp_gt_i32 vcc, {4*k-1}, v{tmp}")
        I(f"s_cbranch_vccnz {L}")
        a.label(O)
    def ks_wait(tmp, lev, one=None):
        L = lab("ks")
        a.label(L)
        I("s_sleep 1")
        if one: I(f"ds_read_b32 v{tmp}, {one} offset:{L_KS}")
        else: I(f"ds_read_b128 v[{tmp}:{tmp+3}], v4 offset:{L_KS}")
        I(f"s_sub_u32 {SC}, {SC}, 1")
        I("s_waitcnt lgkmcnt(0)")
        I("s_cbranch_scc1 L_end")
        if not one:
            I(f"v_min3_i32 v{tmp}, v{tmp}, v{tmp+1}, v{tmp+2}")
            I(f"v_min_i32 v{tmp}, v{tmp}, v{tmp+3}")
        I(f"v_cmp_gt_i32 vcc, {lev}, v{tmp}")
        I(f"s_cbranch_vccnz {L}")
    def gpoll(loads, words, tagmask, acc):
        L = lab("poll"); O = lab("pollo")
        a.label(L)
        for l in loads: I(l)
        I(f"s_sub_u32 {SC}, {SC}, 64")
        I("s_waitcnt vmcnt(0)")
        I("s_cbranch_scc1 L_end")
        I(f"v_xor_b32 v{acc}, s31, v{words[0]}")
        for w in words[1:]:
            I(f"v_bitop3_b32 v{acc}, v{acc}, v{w}, s31 bitop3:0xf6")
        I(f"v_and_b32 v{acc}, {tagmask}, v{acc}")
        I(f"v_cmp_ne_u32 vcc, 0, v{acc}")
        I(f"s_cbranch_vccnz {L}")
        a.label(O)
    def srd(d, lo, n):
        I(f"s_mov_b32 s{d}, s{lo}"); I(f"s_mov_b32 s{d+1}, s{lo+1}")
        I(f"s_mov_b32 s{d+2}, {hex(n)}"); I(f"s_mov_b32 s{d+3}, 0x20000")
    DPP = "row_mask:0xf bank_mask:0xf"
    def make_sel(S, t0):
        I(f"v_and_b32 v{t0}, 1, v2")
        I(f"v_cmp_eq_u32 vcc, 1, v{t0}")
        I(f"v_bfe_u32 v{t0}, v2, 1, 2")
        I(f"v_mov_b32 v{t0+3}, 0x0c0c0c0c")
        for e in range(2):
            ev = 0x0c0c0000 | (2*e+1) << 8 | (2*e)
            od = (2*e+1) << 24 | (2*e) << 16 | 0x0c0c
            I(f"v_mov_b32 v{S}, {hex(ev)}")
            I(f"v_mov_b32 v{S+1}, {hex(od)}")
            I(f"v_cndmask_b32 v{t0+1+e}, v{S}, v{S+1}, vcc")
        for i in range(4):
            I(f"v_cmp_eq_u32 vcc, {i}, v{t0}")
            for e in range(2):
                I(f"v_cndmask_b32 v{S+4*e+i}, v{t0+3}, v{t0+1+e}, vcc")
    def build_mfma(Q, S, TMP, AB, BB, D, npair, nch=1):
        for u in range(npair):
            I(f"v_mov_b32_dpp v{TMP+u}, v{Q} row_newbcast:{u} row_mask:0xf bank_mask:0x3")
            I(f"v_mov_b32_dpp v{TMP+u}, v{Q} row_newbcast:{8+u} row_mask:0xf bank_mask:0xc")
        n = 2 * npair
        def perm(t):
            for i in range(4):
                I(f"v_perm_b32 v{AB+4*t+i}, v{TMP+t//2}, v{TMP+t//2}, v{S+4*(t%2)+i}")
        def mf(t):
            for cb in range(nch):
                d = D + 4 * cb; bb = BB + 4 * (t * nch + cb)
                c = "0" if t == 0 else f"v[{d}:{d+3}]"
                I(f"v_mfma_f32_16x16x32_bf16 v[{d}:{d+3}], v[{AB+4*t}:{AB+4*t+3}], v[{bb}:{bb+3}], {c}")
        perm(0)
        for t in range(n):
            if t + 1 < n: perm(t + 1)
            mf(t)
    def tagcheck(words, tagmask, acc):
        I(f"v_xor_b32 v{acc}, s31, v{words[0]}")
        for w in words[1:]:
            I(f"v_bitop3_b32 v{acc}, v{acc}, v{w}, s31 bitop3:0xf6")
        I(f"v_and_b32 v{acc}, {tagmask}, v{acc}")
        I(f"v_cmp_ne_u32 vcc, 0, v{acc}")
    def reduce4(V):
        I(f"v_permlane32_swap_b32 v{V}, v{V+2}")
        I(f"v_permlane32_swap_b32 v{V+1}, v{V+3}")
        I(f"v_add_f32 v{V}, v{V}, v{V+2}")
        I(f"v_add_f32 v{V+1}, v{V+1}, v{V+3}")
        I(f"v_permlane16_swap_b32 v{V}, v{V+1}")
        I(f"v_add_f32 v{V}, v{V}, v{V+1}")
        for r in (8, 4, 2, 1):
            I(f"v_add_f32_dpp v{V}, v{V}, v{V} row_ror:{r} {DPP}")


    WSN = 0x10000000 if stamp else 0x200000
    nch = 64 // R; ncg = 4 // nch; nrb = 128 // R; nt = R // 4
    def EX(m): I(f"s_mov_b64 exec, {m}")
    def dry_next(lbl): pass
    ST(0)
    I("s_load_dwordx16 s[4:19], s[0:1], 0")
    I("s_load_dwordx8 s[20:27], s[0:1], 64")
    I("v_lshrrev_b32 v6, 6, v0")
    I("s_cmp_ge_u32 s2, 256")
    I("v_readfirstlane_b32 s30, v6")
    I("s_cbranch_scc1 L_end")
    I("v_and_b32 v1, 63, v0")
    I("s_and_b32 s28, s2, 7")
    I("s_lshl_b32 s28, s28, 2")
    I("s_lshr_b32 s29, s2, 6")
    I("s_add_u32 s28, s28, s29")
    I("s_bfe_u32 s29, s2, 0x30003")
    I("s_lshr_b32 s32, s29, 2")
    I("s_and_b32 s33, s29, 3")
    I("s_lshl_b32 s35, s28, 3")
    I("s_add_u32 s35, s35, s29")
    I(f"s_mov_b32 {SC}, 0x100000")
    I("v_and_b32 v2, 15, v1")
    I("v_lshrrev_b32 v3, 4, v1")
    I("v_mov_b32 v4, 0")
    I("v_mov_b32 v5, 0xff")
    I("s_cmp_eq_u32 s30, 10")
    I("s_cbranch_scc1 L_T")
    I("s_cmp_ge_u32 s30, 2")
    I("s_cbranch_scc1 L_S")
    a.raw("@@P@@")

    a.label("L_S")
    KB, VB, ACC, D = 32, 96, 16, 160
    I("s_sub_u32 s30, s30, 2")
    I("s_lshr_b32 s59, s30, 2")
    I("s_and_b32 s30, s30, 3")
    I("v_lshlrev_b32 v6, 4, v1")
    I("s_lshl_b32 s52, s32, 25")
    I("s_lshl_b32 s53, s28, 20")
    I("s_add_u32 s52, s52, s53")
    I("s_lshl_b32 s53, s33, 16")
    I("s_add_u32 s52, s52, s53")
    I("s_lshl_b32 s53, s30, 14")
    I("s_add_u32 s52, s52, s53")
    I("s_add_u32 s52, s52, 0xC0000")
    if rot == 1:
        I("s_add_u32 s60, s28, s29")
        for k in (3, 2, 1, 0):
            I(f"s_add_u32 s61, s60, {k}"); I("s_and_b32 s61, s61, 3"); I("s_lshl_b32 s61, s61, 12")
            I(f"s_add_u32 s{52+k}, s52, s61")
    elif rot == 2:
        I("s_lshl_b32 s60, s29, 1"); I("s_xor_b32 s60, s60, s28"); I("s_and_b32 s60, s60, 15"); I("s_lshl_b32 s60, s60, 10")
        for k in range(16):
            I(f"s_xor_b32 s{96-16-12+k if False else 44+k if k < 8 else 72+k}, s60, {k << 10}")
            r = 44 + k if k < 8 else 72 + k
            I(f"s_add_u32 s{r}, s{r}, s52")
    else:
        I("s_add_u32 s53, s52, 0x1000")
        I("s_add_u32 s54, s52, 0x2000")
        I("s_add_u32 s55, s52, 0x3000")
    I("s_mov_b32 s42, 0x4000000"); I("s_mov_b32 s43, 0x20000")
    I("s_lshl_b32 s56, s30, 2")
    I("v_mov_b32 v165, s56")
    I("s_lshl_b32 s56, s30, 8")
    I("v_lshl_add_u32 v167, v1, 2, s56")
    I("v_lshlrev_b32 v166, 4, v2")
    I("s_waitcnt lgkmcnt(0)")
    I("s_mov_b32 s40, s6"); I("s_mov_b32 s41, s7")
    I("s_cmp_eq_u32 s59, 1")
    I("s_barrier")
    I("s_cbranch_scc1 L_V")
    def tload(base, t):
        if rot == 2:
            r = 44 + t if t < 8 else 72 + t
            I(f"buffer_load_dwordx4 v[{base+4*t}:{base+4*t+3}], v6, s[40:43], s{r} offen {kvflag}")
            return
        I(f"buffer_load_dwordx4 v[{base+4*t}:{base+4*t+3}], v6, s[40:43], s{52+t//4} offen offset:{(t%4)*1024} {kvflag}")
    ST(22)
    nlev = 16 // gran
    lev = 0
    for t in range(16):
        if kwin and t >= kwin:
            I(f"s_waitcnt vmcnt({kwin-1})")
        tload(KB, t)
        if kwin and t >= kwin and (t - kwin + 1) % gran == 0:
            lev = (t - kwin + 1) // gran
            I(f"v_mov_b32 v12, {lev}")
            I(f"ds_write_b32 v165, v12 offset:{L_KS}")
    ST(25)
    I("s_mov_b32 s88, 0xcccccccc"); I("s_mov_b32 s89, 0xcccccccc")
    I("s_mov_b32 s90, 0xaaaaaaaa"); I("s_mov_b32 s91, 0xaaaaaaaa")
    if stamp: srd(36, 26, WSN)
    for k in range(lev + 1, nlev + 1):
        I(f"v_mov_b32 v12, {k}")
        I(f"s_waitcnt vmcnt({16 - k*gran})")
        I(f"ds_write_b32 v165, v12 offset:{L_KS}")
    ST(26)
    if abl:
        I(f"s_cmp_eq_u32 s30, {sw}")
        I("s_cbranch_scc0 L_end")
        flush_stamps()
        I("s_endpgm")
    lds_spin(L_FQ, 1, 16, sleep=1)
    I(f"ds_read_b128 v[12:15], v166 offset:{L_Q}")
    ST(2)
    I("s_waitcnt lgkmcnt(0)")
    for t in range(0, 16, 2):
        for i in range(4):
            for tt in (t, t + 1):
                c = "0" if i == 0 else f"v{ACC+tt}"
                I(f"v_dot2_f32_bf16 v{ACC+tt}, v{KB+4*tt+i}, v{12+i}, {c}")
    for t in range(8):
        I(f"v_add_f32_dpp v{ACC+t}, v{ACC+t}, v{ACC+t} row_ror:8 row_mask:0xf bank_mask:0x3")
    for t in range(8):
        I(f"v_add_f32_dpp v{ACC+t}, v{ACC+t+8}, v{ACC+t+8} row_ror:8 row_mask:0xf bank_mask:0xc")
    for t in range(4):
        I(f"v_add_f32_dpp v{ACC+t}, v{ACC+t}, v{ACC+t} row_shl:4 row_mask:0xf bank_mask:0x5")
    for t in range(4):
        I(f"v_add_f32_dpp v{ACC+t}, v{ACC+t+4}, v{ACC+t+4} row_shr:4 row_mask:0xf bank_mask:0xa")
    for t in range(4):
        I(f"v_add_f32_dpp v{ACC+t}, v{ACC+t}, v{ACC+t} quad_perm:[2,3,0,1] {DPP}")
    I(f"v_cndmask_b32 v{ACC}, v{ACC}, v{ACC+2}, s[88:89]")
    I(f"v_cndmask_b32 v{ACC+1}, v{ACC+1}, v{ACC+3}, s[88:89]")
    for t in range(2):
        I(f"v_add_f32_dpp v{ACC+t}, v{ACC+t}, v{ACC+t} quad_perm:[1,0,3,2] {DPP}")
    I(f"v_cndmask_b32 v16, v16, v17, s[90:91]")
    I("v_cvt_pk_bf16_f32 v16, v16, v16")
    I("v_and_b32 v16, 0xffff0000, v16")
    I(f"v_mul_f32 v16, {hex(f2u(128 ** -0.5))}, v16")
    I("v_cvt_pk_bf16_f32 v16, v16, v16")
    I("v_and_b32 v16, 0xffff0000, v16")
    I(f"v_max_f32_dpp v17, v16, v16 row_ror:8 {DPP}")
    for r in (4, 2, 1):
        I(f"v_max_f32_dpp v17, v17, v17 row_ror:{r} {DPP}")
    I("v_mov_b32 v18, v17")
    I("v_permlane16_swap_b32 v17, v18")
    I("v_max_f32 v17, v17, v18")
    I("v_mov_b32 v18, v17")
    I("v_permlane32_swap_b32 v17, v18")
    I("v_max_f32 v17, v17, v18")
    I(f"ds_write_b32 v165, v17 offset:{L_M}")
    ST(23)
    lds_spin(L_M, 4, 20)
    I("v_max3_f32 v17, v20, v21, v22")
    I("v_max_f32 v17, v17, v23")
    I("v_sub_f32 v16, v16, v17")
    I(f"v_mul_f32 v16, {hex(f2u(1.4426950408889634))}, v16")
    I("v_exp_f32 v16, v16")
    I("v_cvt_pk_bf16_f32 v19, v16, v16")
    I(f"ds_write_b32 v167, v19 offset:{L_P2}")
    I(f"v_add_f32_dpp v17, v16, v16 row_ror:8 {DPP}")
    for r in (4, 2, 1):
        I(f"v_add_f32_dpp v17, v17, v17 row_ror:{r} {DPP}")
    I("v_mov_b32 v18, v17")
    I("v_permlane16_swap_b32 v17, v18")
    I("v_add_f32 v17, v17, v18")
    I("v_mov_b32 v18, v17")
    I("v_permlane32_swap_b32 v17, v18")
    I("v_add_f32 v17, v17, v18")
    I(f"ds_write_b32 v165, v17 offset:{L_L}")
    ST(27)
    if stamp:
        I(f"s_cmp_eq_u32 s30, {sw}")
        I("s_cbranch_scc0 L_end")
        flush_stamps()
    I("s_endpgm")

    a.label("L_V")
    stamps.clear(); sreg[0] = 66
    I("v_and_b32 v12, 1, v2")
    I("v_lshlrev_b32 v12, 4, v12")
    I("v_mov_b32 v13, 0xffff")
    I("v_lshlrev_b32 v12, v12, v13")
    I("v_lshrrev_b32 v13, 1, v2")
    for i in range(4):
        I(f"v_cmp_eq_u32 vcc, {i}, v13")
        I(f"v_cndmask_b32 v{8+i}, 0, v12, vcc")
    I("v_and_b32 v7, 1, v3")
    I("v_lshlrev_b32 v7, 4, v7")
    I("v_lshl_add_u32 v7, v2, 5, v7")
    I("s_lshl_b32 s56, s30, 9")
    I("v_add_u32 v164, s56, v7")
    I(f"s_lshl_b32 s57, s35, 9")
    I(f"s_add_u32 s57, s57, {H1O}")
    I("v_mov_b32 v12, 1")
    I("s_load_dword s31, s[26:27], 0")
    I("s_mov_b32 s40, s8"); I("s_mov_b32 s41, s9")
    srd(36, 26, WSN)
    I("s_waitcnt lgkmcnt(0)")
    I("s_mul_i32 s31, s31, 1664525")
    I("s_add_u32 s31, s31, 1013904223")
    for t in range(16):
        if t % gran == 0:
            lev = t // gran + 1 + lag
            if 1 <= lev <= nlev: ks_wait(13, lev, one="v165")
        if vwin and t >= vwin: I(f"s_waitcnt vmcnt({vwin-1})")
        tload(VB, t)
    I("s_mov_b64 exec, 1")
    I(f"ds_add_u32 v4, v12 offset:{L_TRIG}")
    I("s_mov_b64 exec, -1")
    ST(1)
    if abl:
        I("s_waitcnt vmcnt(0)"); ST(21)
        I(f"s_cmp_eq_u32 s30, {sw}")
        I("s_cbranch_scc0 L_end")
        flush_stamps()
        I("s_endpgm")
    lds_spin(L_P2, 1, 19, addr="v167")
    I(f"ds_read_b32 v16, v4 offset:{L_FQ}")
    for t in range(16):
        for i in range(4):
            I(f"v_and_b32_dpp v{KB+4*t+i}, v19, v{8+i} row_newbcast:{t} {DPP}")
    I("s_waitcnt lgkmcnt(0)")
    I("v_readfirstlane_b32 s58, v16")
    ST(3)
    for t in range(16):
        I(f"s_waitcnt vmcnt({15-t})")
        if t == 15: ST(21)
        c = "0" if t == 0 else f"v[{D}:{D+3}]"
        I(f"v_mfma_f32_16x16x32_bf16 v[{D}:{D+3}], v[{KB+4*t}:{KB+4*t+3}], v[{VB+4*t}:{VB+4*t+3}], {c}")
    EX("0xffffffff")
    I(f"ds_write_b128 v164, v[{D}:{D+3}] offset:{L_PART}")
    EX(1)
    I(f"ds_add_rtn_u32 v13, v4, v12 offset:{L_OCNT}")
    EX("0xffffffff")
    for w in range(4):
        I(f"ds_read_b128 v[{16+4*w}:{19+4*w}], v7 offset:{L_PART+512*w}")
    I("s_waitcnt lgkmcnt(0)")
    I("v_readfirstlane_b32 s56, v13")
    I("v_pk_add_f32 v[16:17], v[16:17], v[20:21]")
    I("v_pk_add_f32 v[18:19], v[18:19], v[22:23]")
    I("s_cmp_eq_u32 s56, 2")
    I("s_cbranch_scc0 L_s_end")
    I("v_pk_add_f32 v[24:25], v[24:25], v[28:29]")
    I("v_pk_add_f32 v[26:27], v[26:27], v[30:31]")
    I("v_pk_add_f32 v[16:17], v[16:17], v[24:25]")
    I("v_pk_add_f32 v[18:19], v[18:19], v[26:27]")
    I("s_cmp_eq_u32 s58, 1")
    for r in range(4):
        I(f"v_bfi_b32 v{16+r}, v5, s31, v{16+r}")
    I("s_cbranch_scc1 L_s_fast")
    I("buffer_store_dwordx4 v[16:19], v7, s[36:39], s57 offen sc1")
    I("s_branch L_s_pub")
    a.label("L_s_fast")
    I("buffer_store_dwordx4 v[16:19], v7, s[36:39], s57 offen")
    a.label("L_s_pub")
    I(f"ds_write_b32 v4, v4 offset:{L_OPUB}")
    if stamp:
        keep = dict(stamps); stamps.clear(); ST(4); sv = sreg[0]; flush_stamps(); stamps.update(keep); sreg[0] = sv
    a.label("L_s_end")
    if stamp:
        I(f"s_cmp_eq_u32 s30, {sw}")
        I("s_cbranch_scc0 L_end")
        flush_stamps()
    I("s_endpgm")

    a.raw("@@PBEG@@")
    stamps.clear(); sreg[0] = 66
    if prio: I("s_setprio 2")
    AB, BB, SEL = 32, 96, 10
    I("s_lshr_b32 s56, s28, 1")
    I("s_cmp_eq_u32 s30, 0")
    I("s_movk_i32 s52, 2752"); I("s_movk_i32 s53, 192"); I("s_movk_i32 s55, 172"); I("s_mov_b32 s42, 1409024")
    I("s_cselect_b32 s52, 8192, s52")
    I("s_cselect_b32 s53, 256, s53")
    I("s_cselect_b32 s54, 16, 12")
    I("s_cselect_b32 s55, 512, s55")
    I("s_cselect_b32 s42, 0x400000, s42")
    I("s_cselect_b32 s56, s28, s56")
    I("s_mul_i32 s57, s56, s54")
    I("s_sub_i32 s55, s55, s57")
    I("s_min_i32 s54, s54, s55")
    I("s_mul_i32 s53, s53, s56")
    I("s_lshl_b32 s56, s29, 6")
    I("s_mul_i32 s56, s56, s52")
    I("s_add_u32 s53, s53, s56")
    I("s_lshl_b32 s56, s52, 4")
    I("v_mul_lo_u32 v6, v3, s56")
    I("v_lshl_add_u32 v6, v2, 4, v6")
    I("v_cmp_gt_i32 vcc, s54, v2")
    I("v_mov_b32 v7, 0x80000000")
    I("v_cndmask_b32 v6, v7, v6, vcc")
    I("v_lshrrev_b32 v9, 3, v2")
    I("v_and_b32 v26, 7, v2")
    I("v_lshlrev_b32 v9, 10, v9")
    I("v_lshl_add_u32 v7, v3, 8, v9")
    I("v_lshl_add_u32 v7, v26, 5, v7")
    I("v_lshl_add_u32 v8, v3, 5, v9")
    I("v_lshl_add_u32 v8, v26, 2, v8")
    I("s_lshl_b32 s56, s29, 7")
    I("s_mov_b32 s46, 2048"); I("s_mov_b32 s47, 0x20000"); I("s_mov_b32 s43, 0x20000")
    I("s_bitcmp1_b32 s28, 0")
    I("s_waitcnt lgkmcnt(0)")
    ST(16)
    I("s_mov_b32 s44, s4"); I("s_mov_b32 s45, s5")
    I("buffer_load_dwordx4 v[18:21], v7, s[44:47], 0 offen")
    I("buffer_load_dwordx4 v[22:25], v7, s[44:47], 0 offen offset:16")
    I("buffer_load_dword v26, v8, s[44:47], s56 offen")
    I("s_cselect_b32 s40, s18, s16")
    I("s_cselect_b32 s41, s19, s17")
    I("s_cmp_eq_u32 s30, 0")
    I("s_cselect_b32 s40, s10, s40")
    I("s_cselect_b32 s41, s11, s41")
    for t in range(16):
        I(f"buffer_load_dwordx4 v[{BB+4*t}:{BB+4*t+3}], v6, s[40:43], s53 offen {wflag}")
        if t < 15: I("s_add_u32 s53, s53, s52")
    I("s_barrier")
    I("s_load_dword s31, s[26:27], 0")
    srd(36, 26, WSN)
    I("s_getreg_b32 s59, hwreg(HW_REG_XCC_ID, 0, 4)")
    make_sel(SEL, 27)
    I("v_mov_b32 v27, 0x3f803f80")
    I("s_waitcnt vmcnt(16)")
    ST(17)
    I("v_dot2_f32_bf16 v28, v18, v27, 0")
    I("v_dot2_f32_bf16 v29, v19, v27, 0")
    for k in range(2, 8, 2):
        I(f"v_dot2_f32_bf16 v28, v{18+k}, v27, v28")
        I(f"v_dot2_f32_bf16 v29, v{19+k}, v27, v29")
    for k in range(8):
        I(f"v_lshlrev_b32 v{32+2*k}, 16, v{18+k}")
        I(f"v_and_b32 v{33+2*k}, 0xffff0000, v{18+k}")
    I("v_add_f32 v28, v28, v29")
    def red32(r, t):
        I(f"v_add_f32_dpp v{r}, v{r}, v{r} quad_perm:[1,0,3,2] {DPP}")
        I(f"v_add_f32_dpp v{r}, v{r}, v{r} quad_perm:[2,3,0,1] {DPP}")
        I(f"v_add_f32_dpp v{r}, v{r}, v{r} row_half_mirror {DPP}")
        I(f"v_mov_b32 v{t}, v{r}")
        I(f"v_permlane16_swap_b32 v{r}, v{t}")
        I(f"v_add_f32 v{r}, v{r}, v{t}")
        I(f"v_mov_b32 v{t}, v{r}")
        I(f"v_permlane32_swap_b32 v{r}, v{t}")
        I(f"v_add_f32 v{r}, v{r}, v{t}")
    red32(28, 29)
    I(f"v_mul_f32 v28, {hex(f2u(1/512))}, v28")
    I("v_mov_b32 v29, v28")
    for k in range(8):
        I(f"v_pk_add_f32 v[{32+2*k}:{33+2*k}], v[{32+2*k}:{33+2*k}], v[28:29] neg_lo:[0,1] neg_hi:[0,1]")
    I("v_pk_mul_f32 v[30:31], v[32:33], v[32:33]")
    for k in range(1, 8):
        I(f"v_pk_fma_f32 v[30:31], v[{32+2*k}:{33+2*k}], v[{32+2*k}:{33+2*k}], v[30:31]")
    I("v_add_f32 v30, v30, v31")
    red32(30, 31)
    I(f"v_mul_f32 v30, {hex(f2u(1/512))}, v30")
    I("v_cvt_pk_bf16_f32 v28, v28, v30")
    I("v_and_b32 v30, 0xffff0000, v28")
    I("v_lshlrev_b32 v28, 16, v28")
    I(f"v_add_f32 v30, {hex(f2u(1e-5))}, v30")
    I("v_cvt_pk_bf16_f32 v30, v30, v30")
    I("v_and_b32 v30, 0xffff0000, v30")
    I("v_sqrt_f32 v30, v30")
    I("v_lshlrev_b32 v32, 16, v26")
    I("v_and_b32 v33, 0xffff0000, v26")
    I("v_cvt_pk_bf16_f32 v30, v30, v30")
    I("v_and_b32 v30, 0xffff0000, v30")
    I("v_rcp_f32 v30, v30")
    I("v_sub_f32 v32, v32, v28")
    I("v_sub_f32 v33, v33, v28")
    I("v_cvt_pk_bf16_f32 v26, v32, v33")
    I("v_lshlrev_b32 v32, 16, v26")
    I("v_and_b32 v33, 0xffff0000, v26")
    I("v_mul_f32 v32, v32, v30")
    I("v_mul_f32 v33, v33, v30")
    I("v_cvt_pk_bf16_f32 v26, v32, v33")
    ST(18)
    for u in range(8):
        I(f"v_mov_b32_dpp v{18+u}, v26 row_newbcast:{u} row_mask:0xf bank_mask:0x3")
        I(f"v_mov_b32_dpp v{18+u}, v26 row_newbcast:{8+u} row_mask:0xf bank_mask:0xc")
    def pperm(t):
        for i in range(4):
            I(f"v_perm_b32 v{AB+4*t+i}, v{18+t//2}, v{18+t//2}, v{SEL+4*(t%2)+i}")
    pperm(0)
    for t in range(16):
        if t < 15: pperm(t + 1)
        I(f"s_waitcnt vmcnt({15-t})")
        c = "0" if t == 0 else f"v[{D}:{D+3}]"
        I(f"v_mfma_f32_16x16x32_bf16 v[{D}:{D+3}], v[{AB+4*t}:{AB+4*t+3}], v[{BB+4*t}:{BB+4*t+3}], {c}")
    I("s_waitcnt lgkmcnt(0)")
    I("s_mul_i32 s31, s31, 1664525")
    I("s_add_u32 s31, s31, 1013904223")
    I("v_and_b32 v7, 1, v3")
    I("v_lshlrev_b32 v7, 4, v7")
    I("v_lshl_add_u32 v7, v2, 5, v7")
    I("v_lshrrev_b32 v8, 1, v3")
    I("v_lshl_add_u32 v7, v8, 9, v7")
    I("s_lshl_b32 s56, s30, 18")
    I("s_lshl_b32 s57, s35, 10")
    I("s_add_u32 s56, s56, s57")
    I(f"s_add_u32 s56, s56, {P0}")
    I("s_and_b32 s57, s31, 15")
    for r in range(3):
        I(f"s_bfe_u32 s{92+r}, s59, {hex(0x10000 + r)}")
        I(f"s_lshl_b32 s{92+r}, s{92+r}, 4")
        I(f"s_or_b32 s{92+r}, s{92+r}, s57")
    for r in range(3):
        I(f"v_bfi_b32 v{D+r}, 31, s{92+r}, v{D+r}")
    I(f"v_bfi_b32 v{D+3}, 15, s31, v{D+3}")
    I("s_cmp_eq_u32 s30, 1")
    I("s_cbranch_scc1 L_PG")
    if qfast:
        I(f"s_add_u32 s57, s56, {PX - P0}")
        I(f"buffer_store_dwordx4 v[{D}:{D+3}], v7, s[36:39], s57 offen")
    I(f"buffer_store_dwordx4 v[{D}:{D+3}], v7, s[36:39], s56 offen sc1")

    ST(5)
    a.label("L_PQ_tail")
    if abl:
        flush_stamps()
        I("s_endpgm")
    I("v_lshrrev_b32 v6, 5, v1")
    I("v_and_b32 v8, 31, v1")
    I("v_lshlrev_b32 v9, 3, v8")
    I("v_lshl_add_u32 v9, v6, 2, v9")
    I("v_lshlrev_b32 v6, 12, v6")
    I("v_lshl_add_u32 v6, v8, 4, v6")
    I("s_lshl_b32 s56, s28, 13")
    I("s_lshl_b32 s57, s32, 9")
    I("s_add_u32 s56, s56, s57")
    I(f"s_add_u32 s56, s56, {P0}")
    I(f"s_add_u32 s57, s56, {PX - P0 if qfast else 0}")
    def qloads(base, so="s56"):
        return [f"buffer_load_dwordx4 v[{base+4*k}:{base+3+4*k}], v6, s[36:39], {so} offen offset:{1024*k} sc1" for k in range(4)]
    def qsum(base):
        I(f"v_xor_b32 v28, s92, v{base}")
        for k in range(4):
            for r in range(3):
                if k or r: I(f"v_bitop3_b32 v28, v28, v{base+4*k+r}, s{92+r} bitop3:0xf6")
        I(f"v_pk_add_f32 v[32:33], v[{base}:{base+1}], v[{base+4}:{base+5}]")
        I(f"v_pk_add_f32 v[34:35], v[{base+2}:{base+3}], v[{base+6}:{base+7}]")
        I(f"v_pk_add_f32 v[40:41], v[{base+8}:{base+9}], v[{base+12}:{base+13}]")
        I(f"v_pk_add_f32 v[42:43], v[{base+10}:{base+11}], v[{base+14}:{base+15}]")
    ns = len(qlev)
    for k in range(ns):
        if qlev[k]: ks_wait(28, qlev[k])
        if k == 0: ST(20)
        for l in qloads(48 + 16 * k, "s57"): I(l)
    for k in range(ns):
        I(f"s_waitcnt vmcnt({4*(ns-1-k)})")
        tagcheck(list(range(48 + 16 * k, 64 + 16 * k)), "15", 27)
        nx = lab("qn")
        I(f"s_cbranch_vccnz {nx}")
        qsum(48 + 16 * k)
        I("s_branch L_q_ok")
        a.label(nx)
    gpoll(qloads(32), list(range(32, 48)), "15", 27)
    qsum(32)
    a.label("L_q_ok")
    I("v_pk_add_f32 v[32:33], v[32:33], v[40:41]")
    I("v_pk_add_f32 v[34:35], v[34:35], v[42:43]")
    I("v_and_b32 v28, 31, v28")
    I("v_cmp_ne_u32 vcc, 0, v28")
    I("v_permlane32_swap_b32 v32, v34")
    I("v_permlane32_swap_b32 v33, v35")
    I("v_add_f32 v32, v32, v34")
    I("v_add_f32 v33, v33, v35")
    I("v_cvt_pk_bf16_f32 v32, v32, v33")
    I("s_cmp_eq_u64 vcc, 0")
    I(f"s_cselect_b32 s58, {1 if fast else 0}, 0")
    I(f"ds_write_b32 v9, v32 offset:{L_Q}")
    I("v_mov_b32 v33, s58")
    I(f"ds_write_b32 v4, v33 offset:{L_FQ}")
    ST(6)
    I("v_and_b32 v6, 7, v1")
    I("v_lshlrev_b32 v9, 2, v6")
    I("v_lshlrev_b32 v6, 7, v6")
    I("s_lshl_b32 s56, s35, 7")
    I(f"s_add_u32 s56, s56, {H1S}")
    I("s_lshl_b32 s57, s28, 10")
    I(f"s_add_u32 s57, s57, {H1S}")
    I("v_lshlrev_b32 v7, 4, v1")
    lds_spin(L_L, 4, 32, sleep=1)
    I(f"ds_read_b128 v[40:43], v4 offset:{L_M}")
    I("v_add_f32 v33, v32, v33")
    I("v_add_f32 v34, v34, v35")
    I("v_add_f32 v33, v33, v34")
    I("s_waitcnt lgkmcnt(0)")
    I("v_max3_f32 v32, v40, v41, v42")
    I("v_max_f32 v32, v32, v43")
    I("v_bfi_b32 v32, v5, s31, v32")
    I("v_bfi_b32 v33, v5, s31, v33")
    I("v_mov_b32 v34, v32")
    I("v_mov_b32 v35, v33")
    EX("0xff")
    I("s_cmp_eq_u32 s58, 1")
    I("s_cbranch_scc1 L_st_fast")
    I("buffer_store_dwordx4 v[32:35], v7, s[36:39], s56 offen sc1")
    I("s_branch L_st_pub")
    a.label("L_st_fast")
    I("buffer_store_dwordx4 v[32:35], v7, s[36:39], s56 offen")
    a.label("L_st_pub")
    EX(-1)
    ST(19)
    gpoll(["buffer_load_dwordx4 v[36:39], v6, s[36:39], s57 offen sc1"], [36, 37, 38, 39], "v5", 27)
    I("v_and_b32 v36, 0xffffff00, v36")
    I(f"v_max_f32_dpp v40, v36, v36 quad_perm:[1,0,3,2] {DPP}")
    I(f"v_max_f32_dpp v40, v40, v40 quad_perm:[2,3,0,1] {DPP}")
    I("v_sub_f32 v36, v36, v40")
    I(f"v_mul_f32 v36, {hex(f2u(1.4426950408889634))}, v36")
    I("v_exp_f32 v36, v36")
    I("v_mul_f32 v37, v36, v37")
    I(f"v_add_f32_dpp v37, v37, v37 quad_perm:[1,0,3,2] {DPP}")
    I(f"v_add_f32_dpp v37, v37, v37 quad_perm:[2,3,0,1] {DPP}")
    I("v_rcp_f32 v37, v37")
    I("v_mul_f32 v36, v36, v37")
    I(f"ds_write_b32 v9, v36 offset:{L_W}")
    dry_next("L_S_tail")
    ST(7)
    flush_stamps()
    I("s_endpgm")

    lg = {1: 0, 2: 1, 4: 2, 8: 3}
    def my_piece(sp, spc):
        I(f"s_lshr_b32 {sp}, s29, {lg[ncg]}")
        I(f"s_lshl_b32 {spc}, s28, {lg[nrb]}")
        I(f"s_add_u32 {sp}, {sp}, {spc}")
        I(f"s_and_b32 {spc}, s29, {ncg-1}")
        I(f"s_lshl_b32 {spc}, {spc}, {lg[nch]+6}")
        I(f"s_add_u32 {spc}, {spc}, {sp}")
    def out_off(dst, spc, tmp):
        I(f"s_lshr_b32 {dst}, {spc}, 6"); I(f"s_lshl_b32 {dst}, {dst}, 8")
        I(f"s_bfe_u32 {tmp}, {spc}, 0x10005"); I(f"s_lshl_b32 {tmp}, {tmp}, 10"); I(f"s_add_u32 {dst}, {dst}, {tmp}")
        I(f"s_and_b32 {tmp}, {spc}, 15"); I(f"s_lshl_b32 {tmp}, {tmp}, 4"); I(f"s_add_u32 {dst}, {dst}, {tmp}")
        I(f"s_bfe_u32 {tmp}, {spc}, 0x10004"); I(f"s_lshl_b32 {tmp}, {tmp}, 3"); I(f"s_add_u32 {dst}, {dst}, {tmp}")

    a.label("L_PG")
    stamps.clear(); sreg[0] = 80
    I(f"buffer_store_dwordx4 v[{D}:{D+3}], v7, s[36:39], s56 offen sc1")
    srd(40, 20, 1376 * 1024)
    I("v_mul_u32_u24 v6, 6144, v3")
    I("v_lshl_add_u32 v6, v2, 4, v6")
    I("s_lshl_b32 s58, s28, 1")
    I("s_add_u32 s58, s58, s32")
    I("s_mul_i32 s52, s58, 24576")
    I("s_lshl_b32 s53, s33, 8")
    I("s_add_u32 s52, s52, s53")
    I("s_add_u32 s53, s52, 0x1000")
    for t in range(6):
        I(f"buffer_load_dwordx4 v[{BB+4*t}:{BB+4*t+3}], v6, s[40:43], s{52+t//4} offen offset:{(t%4)*1024} {wflag}")
    I("v_lshlrev_b32 v8, 10, v1")
    I("s_lshl_b32 s54, s33, 16")
    I("s_lshl_b32 s55, s58, 4")
    I("s_add_u32 s54, s54, s55")
    I(f"s_add_u32 s54, s54, {H2F}")
    my_piece("s56", "s57")
    I("v_lshlrev_b32 v9, 4, v1")
    I("s_lshl_b32 s55, s57, 10")
    I(f"s_add_u32 s55, s55, {H2F}")
    out_off("s56", "s57", "s58")
    I("v_lshlrev_b32 v7, 1, v3")
    I("buffer_load_ushort v124, v7, s[44:47], s56 offen")
    I("v_lshrrev_b32 v7, 3, v2")
    I("v_lshlrev_b32 v7, 9, v7")
    I("v_and_b32 v27, 7, v2")
    I("v_min_u32 v27, 2, v27")
    I("v_lshl_add_u32 v7, v27, 3, v7")
    I("v_mad_u32_u24 v7, v3, 24, v7")
    I("s_and_b32 s56, s28, 30")
    I("s_lshl_b32 s56, s56, 13")
    I("s_and_b32 s57, s28, 1")
    I("s_lshl_b32 s57, s57, 1")
    I("s_add_u32 s57, s57, s32")
    I("s_mul_i32 s57, s57, 96")
    I("s_add_u32 s56, s56, s57")
    for k in range(4):
        I(f"s_add_u32 s{60+k}, s56, {P1 + 0x1000*k}")
    G0 = 128
    a.label("L_PG_tail")
    if abl or noffn == 1:
        I("s_waitcnt vmcnt(0)"); ST(13)
        flush_stamps()
        I("s_endpgm")
    ks_wait(28, glev)
    gpoll([f"buffer_load_dwordx2 v[{G0+2*k}:{G0+1+2*k}], v7, s[36:39], s{60+k//4} offen offset:{1024*(k%4)} sc1" for k in range(16)],
          list(range(G0, G0 + 32)), "15", 27)
    ST(13)
    for base in (G0, G0 + 16):
        for k in range(4):
            I(f"v_pk_add_f32 v[{base+2*k}:{base+2*k+1}], v[{base+2*k}:{base+2*k+1}], v[{base+8+2*k}:{base+9+2*k}]")
        for k in range(2):
            I(f"v_pk_add_f32 v[{base+2*k}:{base+2*k+1}], v[{base+2*k}:{base+2*k+1}], v[{base+4+2*k}:{base+5+2*k}]")
        I(f"v_pk_add_f32 v[{base}:{base+1}], v[{base}:{base+1}], v[{base+2}:{base+3}]")
    I(f"v_cvt_pk_bf16_f32 v28, v{G0}, v{G0+1}")
    I(f"v_cvt_pk_bf16_f32 v29, v{G0+16}, v{G0+17}")
    I("v_lshlrev_b32 v30, 16, v28")
    I("v_and_b32 v31, 0xffff0000, v28")
    I(f"v_mul_f32 v30, {hex(f2u(-1.4426950408889634))}, v30")
    I(f"v_mul_f32 v31, {hex(f2u(-1.4426950408889634))}, v31")
    I("v_exp_f32 v30, v30")
    I("v_exp_f32 v31, v31")
    I("v_add_f32 v30, 1.0, v30")
    I("v_add_f32 v31, 1.0, v31")
    I("v_rcp_f32 v30, v30")
    I("v_rcp_f32 v31, v31")
    I("v_lshlrev_b32 v32, 16, v29")
    I("v_and_b32 v33, 0xffff0000, v29")
    I("v_cvt_pk_bf16_f32 v28, v30, v31")
    I("v_lshlrev_b32 v30, 16, v28")
    I("v_and_b32 v31, 0xffff0000, v28")
    I("v_mul_f32 v30, v30, v32")
    I("v_mul_f32 v31, v31, v33")
    I("v_cvt_pk_bf16_f32 v26, v30, v31")
    build_mfma(26, SEL, 18, AB, BB, D, 3)
    for r in range(4):
        I(f"v_bfi_b32 v{D+r}, v5, s31, v{D+r}")
    I(f"buffer_store_dwordx4 v[{D}:{D+3}], v8, s[36:39], s54 offen sc1")
    ST(14)
    if noffn == 2:
        flush_stamps()
        I("s_endpgm")
    lds_spin(L_OPUB, 1, 27, sleep=1)
    gpoll(["buffer_load_dwordx4 v[32:35], v9, s[36:39], s55 offen sc1"], [32, 33, 34, 35], "v5", 27)
    reduce4(32)
    I("v_cvt_pk_bf16_f32 v33, v32, v32")
    I("v_and_b32 v33, 0xffff0000, v33")
    I("v_lshlrev_b32 v32, 16, v124")
    I("v_lshlrev_b32 v7, 3, v3")
    I(f"ds_write_b64 v7, v[32:33] offset:{L_FX}")
    dry_next("L_end")
    ST(15)
    flush_stamps()
    I("s_endpgm")

    a.raw("@@PEND@@")
    a.label("L_T")
    stamps.clear(); sreg[0] = 66
    if prio: I("s_setprio 3")
    DT = 80 if nch > 1 else D
    I("v_lshlrev_b32 v6, 2, v1")
    for r in range(4): I(f"v_mov_b32 v{12+r}, -1")
    I("v_lshlrev_b32 v7, 4, v1")
    I(f"ds_write_b32 v6, v12 offset:{L_M}")
    I(f"ds_write_b128 v7, v[12:15] offset:{L_P2}")
    I("s_waitcnt lgkmcnt(0)")
    I("s_barrier")
    I(f"v_lshlrev_b32 v6, {10 + lg[nch == 4 and 4 or 1] * 0 + {16:4, 8:3, 4:2}[nt]}, v3")
    I("v_lshl_add_u32 v6, v2, 4, v6")
    my_piece("s58", "s59")
    I(f"s_lshl_b32 s52, s58, {10 + {64:6, 32:5, 16:4}[R]}")
    I(f"s_and_b32 s53, s29, {ncg-1}")
    I(f"s_lshl_b32 s53, s53, {8 + lg[nch]}")
    I("s_add_u32 s52, s52, s53")
    I("s_add_u32 s53, s52, 0x1000")
    I("s_add_u32 s54, s52, 0x2000")
    I("s_add_u32 s55, s52, 0x3000")
    I("s_mov_b32 s42, 0x400000"); I("s_mov_b32 s43, 0x20000")
    I("s_waitcnt lgkmcnt(0)")
    I("s_load_dword s31, s[26:27], 0")
    I("s_mov_b32 s40, s12"); I("s_mov_b32 s41, s13")
    def woload(k):
        t, cb = k // nch, k % nch
        I(f"buffer_load_dwordx4 v[{BB+4*k}:{BB+4*k+3}], v6, s[40:43], s{52+t//4} offen offset:{(t%4)*1024 + cb*256} {wflag}")
    for k in range(wopre): woload(k)
    srd(36, 26, WSN); srd(48, 22, 2048)
    make_sel(SEL, 27)
    I(f"v_lshlrev_b32 v8, {10 + lg[nch]}, v1")
    I(f"s_and_b32 s60, s29, {ncg-1}")
    I(f"s_lshl_b32 s60, s60, {16 + 2*lg[nch]}")
    I("s_lshl_b32 s61, s58, 4")
    I("s_add_u32 s60, s60, s61")
    I(f"s_add_u32 s60, s60, {H2A}")
    for cb in range(1, nch):
        I(f"s_add_u32 s{44+cb}, s60, {cb << (16 + lg[nch])}")
    I("v_lshlrev_b32 v9, 4, v1")
    I(f"s_lshl_b32 s61, s59, {10 + lg[nch]}")
    I(f"s_add_u32 s61, s61, {H2A}")
    out_off("s62", "s59", "s57")
    I("v_lshlrev_b32 v164, 1, v3")
    I("v_lshlrev_b32 v165, 3, v3")
    I("v_lshrrev_b32 v27, 3, v2")
    I("v_lshlrev_b32 v166, 4, v27")
    I("v_lshlrev_b32 v7, 11, v27")
    I(f"v_lshl_add_u32 v7, v3, {2 + {16:4, 8:3, 4:2}[nt]}, v7")
    I("v_and_b32 v27, 7, v2")
    if nt < 16: I(f"v_min_u32 v27, {nt//2 - 1}, v27")
    I("v_lshl_add_u32 v7, v27, 3, v7")
    I("s_lshl_b32 s56, s28, 12")
    I(f"s_lshr_b32 s57, s29, {lg[ncg]}")
    I(f"s_lshl_b32 s57, s57, {2 + {64:6, 32:5, 16:4}[R]}")
    I("s_add_u32 s56, s56, s57")
    I(f"s_add_u32 s56, s56, {H1O}")
    I("s_waitcnt lgkmcnt(0)")
    I("s_mul_i32 s31, s31, 1664525")
    I("s_add_u32 s31, s31, 1013904223")
    a.label("L_T_tail")
    I("s_mov_b32 s88, 0x00010001")
    I("s_mov_b32 s89, 0x00010001")
    trig_wait(27, 1)
    ST(24)
    for k in range(wopre, 16): woload(k)
    ST(8)
    if abl:
        I("s_waitcnt vmcnt(0)"); ST(9)
        flush_stamps()
        I("s_endpgm")
    lds_spin(L_OPUB, 1, 27)
    gpoll([f"buffer_load_dwordx2 v[{32+2*s}:{33+2*s}], v7, s[36:39], s56 offen offset:{512*s} sc1" for s in range(4)],
          list(range(32, 40)), "v5", 27)
    ST(9)
    if noy == 1:
        flush_stamps()
        I("s_endpgm")
    lds_spin(L_W, 4, 40, addr="v166")
    I("v_mul_f32 v32, v32, v40")
    I("v_mul_f32 v33, v33, v40")
    for s in range(1, 4):
        I(f"v_fmac_f32 v32, v{32+2*s}, v{40+s}")
        I(f"v_fmac_f32 v33, v{33+2*s}, v{40+s}")
    I("v_cvt_pk_bf16_f32 v26, v32, v33")
    build_mfma(26, SEL, 18, AB, BB, DT, nt // 2, nch)
    for cb in range(nch):
        for r in range(4):
            I(f"v_bfi_b32 v{DT+4*cb+r}, v5, s31, v{DT+4*cb+r}")
        I(f"buffer_store_dwordx4 v[{DT+4*cb}:{DT+4*cb+3}], v8, s[36:39], s{60 if cb == 0 else 44+cb} offen sc1")
    ST(10)
    if noy == 2:
        flush_stamps()
        I("s_endpgm")
    gpoll([f"buffer_load_dwordx4 v[{32+4*k}:{35+4*k}], v9, s[36:39], s61 offen offset:{1024*k} sc1" for k in range(nch)],
          list(range(32, 32 + 4 * nch)), "v5", 27)
    ST(11)
    if nch == 4:
        I("v_pk_add_f32 v[40:41], v[40:41], v[44:45]")
        I("v_pk_add_f32 v[42:43], v[42:43], v[46:47]")
    if nch >= 2:
        I("v_pk_add_f32 v[32:33], v[32:33], v[36:37]")
        I("v_pk_add_f32 v[34:35], v[34:35], v[38:39]")
    if nch == 4:
        I("v_pk_add_f32 v[32:33], v[32:33], v[40:41]")
        I("v_pk_add_f32 v[34:35], v[34:35], v[42:43]")
    reduce4(32)
    if not noffn: lds_spin(L_FX, 2, 36, addr="v165")
    I("v_cvt_pk_bf16_f32 v32, v32, v32")
    I("v_and_b32 v32, 0xffff0000, v32")
    I("v_add_f32 v32, v36, v32")
    I("v_cvt_pk_bf16_f32 v32, v32, v32")
    I("v_and_b32 v32, 0xffff0000, v32")
    I("v_add_f32 v32, v32, v37")
    I("v_cvt_pk_bf16_f32 v32, v32, v32")
    I("s_mov_b64 exec, s[88:89]")
    I("buffer_store_short v32, v164, s[48:51], s62 offen")
    I("s_cmp_eq_u32 s2, 0")
    I("s_cbranch_scc0 L_t_end")
    EX(1)
    I("v_mov_b32 v33, s31")
    I("buffer_store_dword v33, v4, s[36:39], 0 offen sc1")
    a.label("L_t_end")
    dry_next("L_PG_tail")
    ST(12)
    flush_stamps()
    I("s_endpgm")
    a.label("L_end")
    I("s_endpgm")

    nv = a.maxv + 1
    head = HDR + f"""; @launch grid=(256,1,1) block=(704,1,1) lds={LDS_BYTES}
.amdgcn_target "amdgcn-amd-amdhsa--gfx950"
.text
.globl {KN}_kernel
.p2align 8
.type {KN}_kernel,@function
{KN}_kernel:
"""
    foot = f""".section .rodata,"a"
.p2align 6
.amdhsa_kernel {KN}_kernel
  .amdhsa_next_free_vgpr {nv}
  .amdhsa_next_free_sgpr {max(a.maxs + 1, 16)}
  .amdhsa_accum_offset {(nv + 3) // 4 * 4}
  .amdhsa_group_segment_fixed_size 0
  .amdhsa_kernarg_size 96
  .amdhsa_user_sgpr_count 2
  .amdhsa_user_sgpr_kernarg_segment_ptr 1
  .amdhsa_system_sgpr_workgroup_id_x 1
  .amdhsa_float_denorm_mode_32 3
.end_amdhsa_kernel
"""
    txt = a.text()
    i0 = txt.index("@@PBEG@@\n"); i1 = txt.index("@@PEND@@\n")
    P = txt[i0 + 9:i1]
    txt = txt[:i0] + txt[i1 + 9:]
    txt = txt.replace("@@P@@\n", P)
    return head + txt + foot

if __name__ == "__main__":
    import json
    name = sys.argv[1]; kw = {}
    for x in sys.argv[2:]:
        k, v = x.split("="); kw[k] = eval(v)
    open(name, "w").write(gen(**kw))
```

```python
import sys, struct
from asmlib import Asm
from common import KN
def f2u(x): return struct.unpack("<I", struct.pack("<f", x))[0]

HDR = open("cdna_kernels/" + KN + ".s.ref").read().split("; Override launch")[0]

PX = 0x140000; P0 = 0x10000; P1 = 0x50000; H1S = 0x90000; H1O = 0xA0000; H2F = 0xC0000; H2A = 0x100000
L_Q = 0x000; L_M = 0x100; L_L = 0x110; L_W = 0x120; L_FX = 0x140; L_FQ = 0x160; L_TRIG = 0x164; L_OCNT = 0x168; L_OPUB = 0x16c; L_KS = 0x170; L_P2 = 0x200; L_PART = 0x600
LDS_BYTES = 0xE00

def gen(stamp=False, kvflag="nt", wflag="nt", prio=True, R=64, fast=True, wopre=0, qfast=True, sw=0, abl=0, gran=4, lag=0, qlev=(2,), glev=2, kwin=0, vwin=0, rot=0, noffn=0, noy=0, ysleep=0):
    a = Asm(); I = a.i
    uid = [0]
    def lab(p):
        uid[0] += 1; return f"L_{p}_{uid[0]}"
    SC = "s34"
    stamps = {}
    sreg = [64]
    DBG = {0: 0, 24: 1, 8: 2, 28: 3, 9: 4, 10: 5, 11: 6, 12: 7}
    tmode = [False]
    def ST(slot):
        if not stamp: return
        if stamp == "dbg":
            if slot not in DBG or (slot != 0 and not tmode[0]): return
            slot = DBG[slot]
        r = sreg[0]; sreg[0] += 2
        stamps[slot] = r
        I(f"s_memrealtime s[{r}:{r+1}]")
    def flush_stamps():
        if not stamp: return
        if stamp == "dbg" and not tmode[0]: return
        I("s_mov_b64 exec, 1")
        I("s_waitcnt lgkmcnt(0)")
        if stamp == "dbg":
            srd(96, 24, 256)
            for slot, r in stamps.items():
                I(f"v_mov_b32 v6, s{r}")
                I(f"buffer_atomic_umax v6, v4, s[96:99], 0 offen offset:{4*slot} sc1")
                I(f"s_not_b32 s{r}, s{r}")
                I(f"v_mov_b32 v6, s{r}")
                I(f"buffer_atomic_umax v6, v4, s[96:99], 0 offen offset:{32+4*slot} sc1")
            stamps.clear(); sreg[0] = 64
            return
        I("s_lshl_b32 s52, s2, 7")
        I("s_add_u32 s52, s52, 0x8000000")
        for slot, r in stamps.items():
            I(f"v_mov_b32 v6, s{r}")
            I(f"buffer_store_dword v6, v4, s[36:39], s52 offen offset:{4*slot}")
        stamps.clear(); sreg[0] = 64
    def lds_spin(off, n, dst, addr="v4", sleep=0):
        L = lab("spin"); O = lab("spino")
        a.label(L)
        if sleep: I(f"s_sleep {sleep}")
        if n == 1: I(f"ds_read_b32 v{dst}, {addr} offset:{off}")
        elif n == 2: I(f"ds_read_b64 v[{dst}:{dst+1}], {addr} offset:{off}")
        else: I(f"ds_read_b128 v[{dst}:{dst+3}], {addr} offset:{off}")
        I(f"s_sub_u32 {SC}, {SC}, 1")
        I("s_waitcnt lgkmcnt(0)")
        I("s_cbranch_scc1 L_end")
        t = dst
        if n == 2:
            t = dst + 2; I(f"v_max_u32 v{t}, v{dst}, v{dst+1}")
        if n == 4:
            t = dst + 4
            I(f"v_max3_u32 v{t}, v{dst}, v{dst+1}, v{dst+2}")
            I(f"v_max_u32 v{t}, v{t}, v{dst+3}")
        I(f"v_cmp_eq_u32 vcc, -1, v{t}")
        I(f"s_cbranch_vccnz {L}")
        a.label(O)
    def trig_wait(tmp, k):
        L = lab("trig"); O = lab("trigo")
        a.label(L)
        I("s_sleep 1")
        I(f"ds_read_b32 v{tmp}, v4 offset:{L_TRIG}")
        I(f"s_sub_u32 {SC}, {SC}, 1")
        I("s_waitcnt lgkmcnt(0)")
        I("s_cbranch_scc1 L_end")
        I(f"v_cmp_gt_i32 vcc, {4*k-1}, v{tmp}")
        I(f"s_cbranch_vccnz {L}")
        a.label(O)
    def ks_wait(tmp, lev, one=None):
        L = lab("ks")
        a.label(L)
        I("s_sleep 1")
        if one: I(f"ds_read_b32 v{tmp}, {one} offset:{L_KS}")
        else: I(f"ds_read_b128 v[{tmp}:{tmp+3}], v4 offset:{L_KS}")
        I(f"s_sub_u32 {SC}, {SC}, 1")
        I("s_waitcnt lgkmcnt(0)")
        I("s_cbranch_scc1 L_end")
        if not one:
            I(f"v_min3_i32 v{tmp}, v{tmp}, v{tmp+1}, v{tmp+2}")
            I(f"v_min_i32 v{tmp}, v{tmp}, v{tmp+3}")
        I(f"v_cmp_gt_i32 vcc, {lev}, v{tmp}")
        I(f"s_cbranch_vccnz {L}")
    def gpoll(loads, words, tagmask, acc):
        L = lab("poll"); O = lab("pollo")
        a.label(L)
        for l in loads: I(l)
        I(f"s_sub_u32 {SC}, {SC}, 64")
        I("s_waitcnt vmcnt(0)")
        I("s_cbranch_scc1 L_end")
        I(f"v_xor_b32 v{acc}, s31, v{words[0]}")
        for w in words[1:]:
            I(f"v_bitop3_b32 v{acc}, v{acc}, v{w}, s31 bitop3:0xf6")
        I(f"v_and_b32 v{acc}, {tagmask}, v{acc}")
        I(f"v_cmp_ne_u32 vcc, 0, v{acc}")
        I(f"s_cbranch_vccnz {L}")
        a.label(O)
    def srd(d, lo, n):
        I(f"s_mov_b32 s{d}, s{lo}"); I(f"s_mov_b32 s{d+1}, s{lo+1}")
        I(f"s_mov_b32 s{d+2}, {hex(n)}"); I(f"s_mov_b32 s{d+3}, 0x20000")
    DPP = "row_mask:0xf bank_mask:0xf"
    def make_sel(S, t0):
        I(f"v_and_b32 v{t0}, 1, v2")
        I(f"v_cmp_eq_u32 vcc, 1, v{t0}")
        I(f"v_bfe_u32 v{t0}, v2, 1, 2")
        I(f"v_mov_b32 v{t0+3}, 0x0c0c0c0c")
        for e in range(2):
            ev = 0x0c0c0000 | (2*e+1) << 8 | (2*e)
            od = (2*e+1) << 24 | (2*e) << 16 | 0x0c0c
            I(f"v_mov_b32 v{S}, {hex(ev)}")
            I(f"v_mov_b32 v{S+1}, {hex(od)}")
            I(f"v_cndmask_b32 v{t0+1+e}, v{S}, v{S+1}, vcc")
        for i in range(4):
            I(f"v_cmp_eq_u32 vcc, {i}, v{t0}")
            for e in range(2):
                I(f"v_cndmask_b32 v{S+4*e+i}, v{t0+3}, v{t0+1+e}, vcc")
    def build_mfma(Q, S, TMP, AB, BB, D, npair, nch=1):
        for u in range(npair):
            I(f"v_mov_b32_dpp v{TMP+u}, v{Q} row_newbcast:{u} row_mask:0xf bank_mask:0x3")
            I(f"v_mov_b32_dpp v{TMP+u}, v{Q} row_newbcast:{8+u} row_mask:0xf bank_mask:0xc")
        n = 2 * npair
        def perm(t):
            for i in range(4):
                I(f"v_perm_b32 v{AB+4*t+i}, v{TMP+t//2}, v{TMP+t//2}, v{S+4*(t%2)+i}")
        def mf(t):
            for cb in range(nch):
                d = D + 4 * cb; bb = BB + 4 * (t * nch + cb)
                c = "0" if t == 0 else f"v[{d}:{d+3}]"
                I(f"v_mfma_f32_16x16x32_bf16 v[{d}:{d+3}], v[{AB+4*t}:{AB+4*t+3}], v[{bb}:{bb+3}], {c}")
        perm(0)
        for t in range(n):
            if t + 1 < n: perm(t + 1)
            mf(t)
    def tagcheck(words, tagmask, acc):
        I(f"v_xor_b32 v{acc}, s31, v{words[0]}")
        for w in words[1:]:
            I(f"v_bitop3_b32 v{acc}, v{acc}, v{w}, s31 bitop3:0xf6")
        I(f"v_and_b32 v{acc}, {tagmask}, v{acc}")
        I(f"v_cmp_ne_u32 vcc, 0, v{acc}")
    def reduce4(V):
        I(f"v_permlane32_swap_b32 v{V}, v{V+2}")
        I(f"v_permlane32_swap_b32 v{V+1}, v{V+3}")
        I(f"v_add_f32 v{V}, v{V}, v{V+2}")
        I(f"v_add_f32 v{V+1}, v{V+1}, v{V+3}")
        I(f"v_permlane16_swap_b32 v{V}, v{V+1}")
        I(f"v_add_f32 v{V}, v{V}, v{V+1}")
        for r in (8, 4, 2, 1):
            I(f"v_add_f32_dpp v{V}, v{V}, v{V} row_ror:{r} {DPP}")


    WSN = 0x10000000 if stamp else 0x200000
    nch = 64 // R; ncg = 4 // nch; nrb = 128 // R; nt = R // 4
    def EX(m): I(f"s_mov_b64 exec, {m}")
    def dry_next(lbl): pass
    ST(0)
    I("s_load_dwordx16 s[4:19], s[0:1], 0")
    I("s_load_dwordx8 s[20:27], s[0:1], 64")
    I("v_lshrrev_b32 v6, 6, v0")
    I("s_cmp_ge_u32 s2, 256")
    I("v_readfirstlane_b32 s30, v6")
    I("s_cbranch_scc1 L_end")
    I("v_and_b32 v1, 63, v0")
    I("s_and_b32 s28, s2, 7")
    I("s_lshl_b32 s28, s28, 2")
    I("s_lshr_b32 s29, s2, 6")
    I("s_add_u32 s28, s28, s29")
    I("s_bfe_u32 s29, s2, 0x30003")
    I("s_lshr_b32 s32, s29, 2")
    I("s_and_b32 s33, s29, 3")
    I("s_lshl_b32 s35, s28, 3")
    I("s_add_u32 s35, s35, s29")
    I(f"s_mov_b32 {SC}, 0x100000")
    I("v_and_b32 v2, 15, v1")
    I("v_lshrrev_b32 v3, 4, v1")
    I("v_mov_b32 v4, 0")
    I("v_mov_b32 v5, 0xff")
    I("s_cmp_eq_u32 s30, 10")
    I("s_cbranch_scc1 L_T")
    I("s_cmp_ge_u32 s30, 2")
    I("s_cbranch_scc1 L_S")
    a.raw("@@P@@")

    a.label("L_S")
    KB, VB, ACC, D = 32, 96, 16, 160
    I("s_sub_u32 s30, s30, 2")
    I("s_lshr_b32 s59, s30, 2")
    I("s_and_b32 s30, s30, 3")
    I("v_lshlrev_b32 v6, 4, v1")
    I("s_lshl_b32 s52, s32, 25")
    I("s_lshl_b32 s53, s28, 20")
    I("s_add_u32 s52, s52, s53")
    I("s_lshl_b32 s53, s33, 16")
    I("s_add_u32 s52, s52, s53")
    I("s_lshl_b32 s53, s30, 14")
    I("s_add_u32 s52, s52, s53")
    I("s_add_u32 s52, s52, 0xC0000")
    if rot == 1:
        I("s_add_u32 s60, s28, s29")
        for k in (3, 2, 1, 0):
            I(f"s_add_u32 s61, s60, {k}"); I("s_and_b32 s61, s61, 3"); I("s_lshl_b32 s61, s61, 12")
            I(f"s_add_u32 s{52+k}, s52, s61")
    elif rot == 2:
        I("s_lshl_b32 s60, s29, 1"); I("s_xor_b32 s60, s60, s28"); I("s_and_b32 s60, s60, 15"); I("s_lshl_b32 s60, s60, 10")
        for k in range(16):
            I(f"s_xor_b32 s{96-16-12+k if False else 44+k if k < 8 else 72+k}, s60, {k << 10}")
            r = 44 + k if k < 8 else 72 + k
            I(f"s_add_u32 s{r}, s{r}, s52")
    else:
        I("s_add_u32 s53, s52, 0x1000")
        I("s_add_u32 s54, s52, 0x2000")
        I("s_add_u32 s55, s52, 0x3000")
    I("s_mov_b32 s42, 0x4000000"); I("s_mov_b32 s43, 0x20000")
    I("s_lshl_b32 s56, s30, 2")
    I("v_mov_b32 v165, s56")
    I("s_lshl_b32 s56, s30, 8")
    I("v_lshl_add_u32 v167, v1, 2, s56")
    I("v_lshlrev_b32 v166, 4, v2")
    I("s_waitcnt lgkmcnt(0)")
    I("s_mov_b32 s40, s6"); I("s_mov_b32 s41, s7")
    I("s_cmp_eq_u32 s59, 1")
    I("s_barrier")
    I("s_cbranch_scc1 L_V")
    def tload(base, t):
        if rot == 2:
            r = 44 + t if t < 8 else 72 + t
            I(f"buffer_load_dwordx4 v[{base+4*t}:{base+4*t+3}], v6, s[40:43], s{r} offen {kvflag}")
            return
        I(f"buffer_load_dwordx4 v[{base+4*t}:{base+4*t+3}], v6, s[40:43], s{52+t//4} offen offset:{(t%4)*1024} {kvflag}")
    ST(22)
    nlev = 16 // gran
    lev = 0
    for t in range(16):
        if kwin and t >= kwin:
            I(f"s_waitcnt vmcnt({kwin-1})")
        tload(KB, t)
        if kwin and t >= kwin and (t - kwin + 1) % gran == 0:
            lev = (t - kwin + 1) // gran
            I(f"v_mov_b32 v12, {lev}")
            I(f"ds_write_b32 v165, v12 offset:{L_KS}")
    ST(25)
    I("s_mov_b32 s88, 0xcccccccc"); I("s_mov_b32 s89, 0xcccccccc")
    I("s_mov_b32 s90, 0xaaaaaaaa"); I("s_mov_b32 s91, 0xaaaaaaaa")
    if stamp: srd(36, 26, WSN)
    for k in range(lev + 1, nlev + 1):
        I(f"v_mov_b32 v12, {k}")
        I(f"s_waitcnt vmcnt({16 - k*gran})")
        I(f"ds_write_b32 v165, v12 offset:{L_KS}")
    ST(26)
    if abl:
        I(f"s_cmp_eq_u32 s30, {sw}")
        I("s_cbranch_scc0 L_end")
        flush_stamps()
        I("s_endpgm")
    lds_spin(L_FQ, 1, 16, sleep=1)
    I(f"ds_read_b128 v[12:15], v166 offset:{L_Q}")
    ST(2)
    I("s_waitcnt lgkmcnt(0)")
    for t in range(0, 16, 2):
        for i in range(4):
            for tt in (t, t + 1):
                c = "0" if i == 0 else f"v{ACC+tt}"
                I(f"v_dot2_f32_bf16 v{ACC+tt}, v{KB+4*tt+i}, v{12+i}, {c}")
    for t in range(8):
        I(f"v_add_f32_dpp v{ACC+t}, v{ACC+t}, v{ACC+t} row_ror:8 row_mask:0xf bank_mask:0x3")
    for t in range(8):
        I(f"v_add_f32_dpp v{ACC+t}, v{ACC+t+8}, v{ACC+t+8} row_ror:8 row_mask:0xf bank_mask:0xc")
    for t in range(4):
        I(f"v_add_f32_dpp v{ACC+t}, v{ACC+t}, v{ACC+t} row_shl:4 row_mask:0xf bank_mask:0x5")
    for t in range(4):
        I(f"v_add_f32_dpp v{ACC+t}, v{ACC+t+4}, v{ACC+t+4} row_shr:4 row_mask:0xf bank_mask:0xa")
    for t in range(4):
        I(f"v_add_f32_dpp v{ACC+t}, v{ACC+t}, v{ACC+t} quad_perm:[2,3,0,1] {DPP}")
    I(f"v_cndmask_b32 v{ACC}, v{ACC}, v{ACC+2}, s[88:89]")
    I(f"v_cndmask_b32 v{ACC+1}, v{ACC+1}, v{ACC+3}, s[88:89]")
    for t in range(2):
        I(f"v_add_f32_dpp v{ACC+t}, v{ACC+t}, v{ACC+t} quad_perm:[1,0,3,2] {DPP}")
    I(f"v_cndmask_b32 v16, v16, v17, s[90:91]")
    I("v_cvt_pk_bf16_f32 v16, v16, v16")
    I("v_and_b32 v16, 0xffff0000, v16")
    I(f"v_mul_f32 v16, {hex(f2u(128 ** -0.5))}, v16")
    I("v_cvt_pk_bf16_f32 v16, v16, v16")
    I("v_and_b32 v16, 0xffff0000, v16")
    I(f"v_max_f32_dpp v17, v16, v16 row_ror:8 {DPP}")
    for r in (4, 2, 1):
        I(f"v_max_f32_dpp v17, v17, v17 row_ror:{r} {DPP}")
    I("v_mov_b32 v18, v17")
    I("v_permlane16_swap_b32 v17, v18")
    I("v_max_f32 v17, v17, v18")
    I("v_mov_b32 v18, v17")
    I("v_permlane32_swap_b32 v17, v18")
    I("v_max_f32 v17, v17, v18")
    I(f"ds_write_b32 v165, v17 offset:{L_M}")
    ST(23)
    lds_spin(L_M, 4, 20)
    I("v_max3_f32 v17, v20, v21, v22")
    I("v_max_f32 v17, v17, v23")
    I("v_sub_f32 v16, v16, v17")
    I(f"v_mul_f32 v16, {hex(f2u(1.4426950408889634))}, v16")
    I("v_exp_f32 v16, v16")
    I("v_cvt_pk_bf16_f32 v19, v16, v16")
    I(f"ds_write_b32 v167, v19 offset:{L_P2}")
    I(f"v_add_f32_dpp v17, v16, v16 row_ror:8 {DPP}")
    for r in (4, 2, 1):
        I(f"v_add_f32_dpp v17, v17, v17 row_ror:{r} {DPP}")
    I("v_mov_b32 v18, v17")
    I("v_permlane16_swap_b32 v17, v18")
    I("v_add_f32 v17, v17, v18")
    I("v_mov_b32 v18, v17")
    I("v_permlane32_swap_b32 v17, v18")
    I("v_add_f32 v17, v17, v18")
    I(f"ds_write_b32 v165, v17 offset:{L_L}")
    ST(27)
    if stamp:
        I(f"s_cmp_eq_u32 s30, {sw}")
        I("s_cbranch_scc0 L_end")
        flush_stamps()
    I("s_endpgm")

    a.label("L_V")
    stamps.clear(); sreg[0] = 66
    I("v_and_b32 v12, 1, v2")
    I("v_lshlrev_b32 v12, 4, v12")
    I("v_mov_b32 v13, 0xffff")
    I("v_lshlrev_b32 v12, v12, v13")
    I("v_lshrrev_b32 v13, 1, v2")
    for i in range(4):
        I(f"v_cmp_eq_u32 vcc, {i}, v13")
        I(f"v_cndmask_b32 v{8+i}, 0, v12, vcc")
    I("v_and_b32 v7, 1, v3")
    I("v_lshlrev_b32 v7, 4, v7")
    I("v_lshl_add_u32 v7, v2, 5, v7")
    I("s_lshl_b32 s56, s30, 9")
    I("v_add_u32 v164, s56, v7")
    I(f"s_lshl_b32 s57, s35, 9")
    I(f"s_add_u32 s57, s57, {H1O}")
    I("v_mov_b32 v12, 1")
    I("s_load_dword s31, s[26:27], 0")
    I("s_mov_b32 s40, s8"); I("s_mov_b32 s41, s9")
    srd(36, 26, WSN)
    I("s_waitcnt lgkmcnt(0)")
    I("s_mul_i32 s31, s31, 1664525")
    I("s_add_u32 s31, s31, 1013904223")
    for t in range(16):
        if t % gran == 0:
            lev = t // gran + 1 + lag
            if 1 <= lev <= nlev: ks_wait(13, lev, one="v165")
        if vwin and t >= vwin: I(f"s_waitcnt vmcnt({vwin-1})")
        tload(VB, t)
    I("s_mov_b64 exec, 1")
    I(f"ds_add_u32 v4, v12 offset:{L_TRIG}")
    I("s_mov_b64 exec, -1")
    ST(1)
    if abl:
        I("s_waitcnt vmcnt(0)"); ST(21)
        I(f"s_cmp_eq_u32 s30, {sw}")
        I("s_cbranch_scc0 L_end")
        flush_stamps()
        I("s_endpgm")
    lds_spin(L_P2, 1, 19, addr="v167")
    I(f"ds_read_b32 v16, v4 offset:{L_FQ}")
    for t in range(16):
        for i in range(4):
            I(f"v_and_b32_dpp v{KB+4*t+i}, v19, v{8+i} row_newbcast:{t} {DPP}")
    I("s_waitcnt lgkmcnt(0)")
    I("v_readfirstlane_b32 s58, v16")
    ST(3)
    for t in range(16):
        I(f"s_waitcnt vmcnt({15-t})")
        if t == 15: ST(21)
        c = "0" if t == 0 else f"v[{D}:{D+3}]"
        I(f"v_mfma_f32_16x16x32_bf16 v[{D}:{D+3}], v[{KB+4*t}:{KB+4*t+3}], v[{VB+4*t}:{VB+4*t+3}], {c}")
    EX("0xffffffff")
    I(f"ds_write_b128 v164, v[{D}:{D+3}] offset:{L_PART}")
    EX(1)
    I(f"ds_add_rtn_u32 v13, v4, v12 offset:{L_OCNT}")
    EX("0xffffffff")
    for w in range(4):
        I(f"ds_read_b128 v[{16+4*w}:{19+4*w}], v7 offset:{L_PART+512*w}")
    I("s_waitcnt lgkmcnt(0)")
    I("v_readfirstlane_b32 s56, v13")
    I("v_pk_add_f32 v[16:17], v[16:17], v[20:21]")
    I("v_pk_add_f32 v[18:19], v[18:19], v[22:23]")
    I("s_cmp_eq_u32 s56, 2")
    I("s_cbranch_scc0 L_s_end")
    I("v_pk_add_f32 v[24:25], v[24:25], v[28:29]")
    I("v_pk_add_f32 v[26:27], v[26:27], v[30:31]")
    I("v_pk_add_f32 v[16:17], v[16:17], v[24:25]")
    I("v_pk_add_f32 v[18:19], v[18:19], v[26:27]")
    I("s_cmp_eq_u32 s58, 1")
    for r in range(4):
        I(f"v_bfi_b32 v{16+r}, v5, s31, v{16+r}")
    I("s_cbranch_scc1 L_s_fast")
    I("buffer_store_dwordx4 v[16:19], v7, s[36:39], s57 offen sc1")
    I("s_branch L_s_pub")
    a.label("L_s_fast")
    I("buffer_store_dwordx4 v[16:19], v7, s[36:39], s57 offen")
    a.label("L_s_pub")
    I(f"ds_write_b32 v4, v4 offset:{L_OPUB}")
    if stamp:
        keep = dict(stamps); stamps.clear(); ST(4); sv = sreg[0]; flush_stamps(); stamps.update(keep); sreg[0] = sv
    a.label("L_s_end")
    if stamp:
        I(f"s_cmp_eq_u32 s30, {sw}")
        I("s_cbranch_scc0 L_end")
        flush_stamps()
    I("s_endpgm")

    a.raw("@@PBEG@@")
    stamps.clear(); sreg[0] = 66
    if prio: I("s_setprio 2")
    AB, BB, SEL = 32, 96, 10
    I("s_lshr_b32 s56, s28, 1")
    I("s_cmp_eq_u32 s30, 0")
    I("s_movk_i32 s52, 2752"); I("s_movk_i32 s53, 192"); I("s_movk_i32 s55, 172"); I("s_mov_b32 s42, 1409024")
    I("s_cselect_b32 s52, 8192, s52")
    I("s_cselect_b32 s53, 256, s53")
    I("s_cselect_b32 s54, 16, 12")
    I("s_cselect_b32 s55, 512, s55")
    I("s_cselect_b32 s42, 0x400000, s42")
    I("s_cselect_b32 s56, s28, s56")
    I("s_mul_i32 s57, s56, s54")
    I("s_sub_i32 s55, s55, s57")
    I("s_min_i32 s54, s54, s55")
    I("s_mul_i32 s53, s53, s56")
    I("s_lshl_b32 s56, s29, 6")
    I("s_mul_i32 s56, s56, s52")
    I("s_add_u32 s53, s53, s56")
    I("s_lshl_b32 s56, s52, 4")
    I("v_mul_lo_u32 v6, v3, s56")
    I("v_lshl_add_u32 v6, v2, 4, v6")
    I("v_cmp_gt_i32 vcc, s54, v2")
    I("v_mov_b32 v7, 0x80000000")
    I("v_cndmask_b32 v6, v7, v6, vcc")
    I("v_lshrrev_b32 v9, 3, v2")
    I("v_and_b32 v26, 7, v2")
    I("v_lshlrev_b32 v9, 10, v9")
    I("v_lshl_add_u32 v7, v3, 8, v9")
    I("v_lshl_add_u32 v7, v26, 5, v7")
    I("v_lshl_add_u32 v8, v3, 5, v9")
    I("v_lshl_add_u32 v8, v26, 2, v8")
    I("s_lshl_b32 s56, s29, 7")
    I("s_mov_b32 s46, 2048"); I("s_mov_b32 s47, 0x20000"); I("s_mov_b32 s43, 0x20000")
    I("s_bitcmp1_b32 s28, 0")
    I("s_waitcnt lgkmcnt(0)")
    ST(16)
    I("s_mov_b32 s44, s4"); I("s_mov_b32 s45, s5")
    I("buffer_load_dwordx4 v[18:21], v7, s[44:47], 0 offen")
    I("buffer_load_dwordx4 v[22:25], v7, s[44:47], 0 offen offset:16")
    I("buffer_load_dword v26, v8, s[44:47], s56 offen")
    I("s_cselect_b32 s40, s18, s16")
    I("s_cselect_b32 s41, s19, s17")
    I("s_cmp_eq_u32 s30, 0")
    I("s_cselect_b32 s40, s10, s40")
    I("s_cselect_b32 s41, s11, s41")
    for t in range(16):
        I(f"buffer_load_dwordx4 v[{BB+4*t}:{BB+4*t+3}], v6, s[40:43], s53 offen {wflag}")
        if t < 15: I("s_add_u32 s53, s53, s52")
    I("s_barrier")
    I("s_load_dword s31, s[26:27], 0")
    srd(36, 26, WSN)
    I("s_getreg_b32 s59, hwreg(HW_REG_XCC_ID, 0, 4)")
    make_sel(SEL, 27)
    I("v_mov_b32 v27, 0x3f803f80")
    I("s_waitcnt vmcnt(16)")
    ST(17)
    I("v_dot2_f32_bf16 v28, v18, v27, 0")
    I("v_dot2_f32_bf16 v29, v19, v27, 0")
    for k in range(2, 8, 2):
        I(f"v_dot2_f32_bf16 v28, v{18+k}, v27, v28")
        I(f"v_dot2_f32_bf16 v29, v{19+k}, v27, v29")
    for k in range(8):
        I(f"v_lshlrev_b32 v{32+2*k}, 16, v{18+k}")
        I(f"v_and_b32 v{33+2*k}, 0xffff0000, v{18+k}")
    I("v_add_f32 v28, v28, v29")
    def red32(r, t):
        I(f"v_add_f32_dpp v{r}, v{r}, v{r} quad_perm:[1,0,3,2] {DPP}")
        I(f"v_add_f32_dpp v{r}, v{r}, v{r} quad_perm:[2,3,0,1] {DPP}")
        I(f"v_add_f32_dpp v{r}, v{r}, v{r} row_half_mirror {DPP}")
        I(f"v_mov_b32 v{t}, v{r}")
        I(f"v_permlane16_swap_b32 v{r}, v{t}")
        I(f"v_add_f32 v{r}, v{r}, v{t}")
        I(f"v_mov_b32 v{t}, v{r}")
        I(f"v_permlane32_swap_b32 v{r}, v{t}")
        I(f"v_add_f32 v{r}, v{r}, v{t}")
    red32(28, 29)
    I(f"v_mul_f32 v28, {hex(f2u(1/512))}, v28")
    I("v_mov_b32 v29, v28")
    for k in range(8):
        I(f"v_pk_add_f32 v[{32+2*k}:{33+2*k}], v[{32+2*k}:{33+2*k}], v[28:29] neg_lo:[0,1] neg_hi:[0,1]")
    I("v_pk_mul_f32 v[30:31], v[32:33], v[32:33]")
    for k in range(1, 8):
        I(f"v_pk_fma_f32 v[30:31], v[{32+2*k}:{33+2*k}], v[{32+2*k}:{33+2*k}], v[30:31]")
    I("v_add_f32 v30, v30, v31")
    red32(30, 31)
    I(f"v_mul_f32 v30, {hex(f2u(1/512))}, v30")
    I("v_cvt_pk_bf16_f32 v28, v28, v30")
    I("v_and_b32 v30, 0xffff0000, v28")
    I("v_lshlrev_b32 v28, 16, v28")
    I(f"v_add_f32 v30, {hex(f2u(1e-5))}, v30")
    I("v_cvt_pk_bf16_f32 v30, v30, v30")
    I("v_and_b32 v30, 0xffff0000, v30")
    I("v_sqrt_f32 v30, v30")
    I("v_lshlrev_b32 v32, 16, v26")
    I("v_and_b32 v33, 0xffff0000, v26")
    I("v_cvt_pk_bf16_f32 v30, v30, v30")
    I("v_and_b32 v30, 0xffff0000, v30")
    I("v_rcp_f32 v30, v30")
    I("v_sub_f32 v32, v32, v28")
    I("v_sub_f32 v33, v33, v28")
    I("v_cvt_pk_bf16_f32 v26, v32, v33")
    I("v_lshlrev_b32 v32, 16, v26")
    I("v_and_b32 v33, 0xffff0000, v26")
    I("v_mul_f32 v32, v32, v30")
    I("v_mul_f32 v33, v33, v30")
    I("v_cvt_pk_bf16_f32 v26, v32, v33")
    ST(18)
    for u in range(8):
        I(f"v_mov_b32_dpp v{18+u}, v26 row_newbcast:{u} row_mask:0xf bank_mask:0x3")
        I(f"v_mov_b32_dpp v{18+u}, v26 row_newbcast:{8+u} row_mask:0xf bank_mask:0xc")
    def pperm(t):
        for i in range(4):
            I(f"v_perm_b32 v{AB+4*t+i}, v{18+t//2}, v{18+t//2}, v{SEL+4*(t%2)+i}")
    pperm(0)
    for t in range(16):
        if t < 15: pperm(t + 1)
        I(f"s_waitcnt vmcnt({15-t})")
        c = "0" if t == 0 else f"v[{D}:{D+3}]"
        I(f"v_mfma_f32_16x16x32_bf16 v[{D}:{D+3}], v[{AB+4*t}:{AB+4*t+3}], v[{BB+4*t}:{BB+4*t+3}], {c}")
    I("s_waitcnt lgkmcnt(0)")
    I("s_mul_i32 s31, s31, 1664525")
    I("s_add_u32 s31, s31, 1013904223")
    I("v_and_b32 v7, 1, v3")
    I("v_lshlrev_b32 v7, 4, v7")
    I("v_lshl_add_u32 v7, v2, 5, v7")
    I("v_lshrrev_b32 v8, 1, v3")
    I("v_lshl_add_u32 v7, v8, 9, v7")
    I("s_lshl_b32 s56, s30, 18")
    I("s_lshl_b32 s57, s35, 10")
    I("s_add_u32 s56, s56, s57")
    I(f"s_add_u32 s56, s56, {P0}")
    I("s_and_b32 s57, s31, 15")
    for r in range(3):
        I(f"s_bfe_u32 s{92+r}, s59, {hex(0x10000 + r)}")
        I(f"s_lshl_b32 s{92+r}, s{92+r}, 4")
        I(f"s_or_b32 s{92+r}, s{92+r}, s57")
    for r in range(3):
        I(f"v_bfi_b32 v{D+r}, 31, s{92+r}, v{D+r}")
    I(f"v_bfi_b32 v{D+3}, 15, s31, v{D+3}")
    I("s_cmp_eq_u32 s30, 1")
    I("s_cbranch_scc1 L_PG")
    if qfast:
        I(f"s_add_u32 s57, s56, {PX - P0}")
        I(f"buffer_store_dwordx4 v[{D}:{D+3}], v7, s[36:39], s57 offen")
    I(f"buffer_store_dwordx4 v[{D}:{D+3}], v7, s[36:39], s56 offen sc1")

    ST(5)
    a.label("L_PQ_tail")
    if abl:
        flush_stamps()
        I("s_endpgm")
    I("v_lshrrev_b32 v6, 5, v1")
    I("v_and_b32 v8, 31, v1")
    I("v_lshlrev_b32 v9, 3, v8")
    I("v_lshl_add_u32 v9, v6, 2, v9")
    I("v_lshlrev_b32 v6, 12, v6")
    I("v_lshl_add_u32 v6, v8, 4, v6")
    I("s_lshl_b32 s56, s28, 13")
    I("s_lshl_b32 s57, s32, 9")
    I("s_add_u32 s56, s56, s57")
    I(f"s_add_u32 s56, s56, {P0}")
    I(f"s_add_u32 s57, s56, {PX - P0 if qfast else 0}")
    def qloads(base, so="s56"):
        return [f"buffer_load_dwordx4 v[{base+4*k}:{base+3+4*k}], v6, s[36:39], {so} offen offset:{1024*k} sc1" for k in range(4)]
    def qsum(base):
        I(f"v_xor_b32 v28, s92, v{base}")
        for k in range(4):
            for r in range(3):
                if k or r: I(f"v_bitop3_b32 v28, v28, v{base+4*k+r}, s{92+r} bitop3:0xf6")
        I(f"v_pk_add_f32 v[32:33], v[{base}:{base+1}], v[{base+4}:{base+5}]")
        I(f"v_pk_add_f32 v[34:35], v[{base+2}:{base+3}], v[{base+6}:{base+7}]")
        I(f"v_pk_add_f32 v[40:41], v[{base+8}:{base+9}], v[{base+12}:{base+13}]")
        I(f"v_pk_add_f32 v[42:43], v[{base+10}:{base+11}], v[{base+14}:{base+15}]")
    ns = len(qlev)
    for k in range(ns):
        if qlev[k]: ks_wait(28, qlev[k])
        if k == 0: ST(20)
        for l in qloads(48 + 16 * k, "s57"): I(l)
    for k in range(ns):
        I(f"s_waitcnt vmcnt({4*(ns-1-k)})")
        tagcheck(list(range(48 + 16 * k, 64 + 16 * k)), "15", 27)
        nx = lab("qn")
        I(f"s_cbranch_vccnz {nx}")
        qsum(48 + 16 * k)
        I("s_branch L_q_ok")
        a.label(nx)
    gpoll(qloads(32), list(range(32, 48)), "15", 27)
    qsum(32)
    a.label("L_q_ok")
    I("v_pk_add_f32 v[32:33], v[32:33], v[40:41]")
    I("v_pk_add_f32 v[34:35], v[34:35], v[42:43]")
    I("v_and_b32 v28, 31, v28")
    I("v_cmp_ne_u32 vcc, 0, v28")
    I("v_permlane32_swap_b32 v32, v34")
    I("v_permlane32_swap_b32 v33, v35")
    I("v_add_f32 v32, v32, v34")
    I("v_add_f32 v33, v33, v35")
    I("v_cvt_pk_bf16_f32 v32, v32, v33")
    I("s_cmp_eq_u64 vcc, 0")
    I(f"s_cselect_b32 s58, {1 if fast else 0}, 0")
    I(f"ds_write_b32 v9, v32 offset:{L_Q}")
    I("v_mov_b32 v33, s58")
    I(f"ds_write_b32 v4, v33 offset:{L_FQ}")
    ST(6)
    I("v_and_b32 v6, 7, v1")
    I("v_lshlrev_b32 v9, 2, v6")
    I("v_lshlrev_b32 v6, 7, v6")
    I("s_lshl_b32 s56, s35, 7")
    I(f"s_add_u32 s56, s56, {H1S}")
    I("s_lshl_b32 s57, s28, 10")
    I(f"s_add_u32 s57, s57, {H1S}")
    I("v_lshlrev_b32 v7, 4, v1")
    lds_spin(L_L, 4, 32, sleep=1)
    I(f"ds_read_b128 v[40:43], v4 offset:{L_M}")
    I("v_add_f32 v33, v32, v33")
    I("v_add_f32 v34, v34, v35")
    I("v_add_f32 v33, v33, v34")
    I("s_waitcnt lgkmcnt(0)")
    I("v_max3_f32 v32, v40, v41, v42")
    I("v_max_f32 v32, v32, v43")
    I("v_bfi_b32 v32, v5, s31, v32")
    I("v_bfi_b32 v33, v5, s31, v33")
    I("v_mov_b32 v34, v32")
    I("v_mov_b32 v35, v33")
    EX("0xff")
    I("s_cmp_eq_u32 s58, 1")
    I("s_cbranch_scc1 L_st_fast")
    I("buffer_store_dwordx4 v[32:35], v7, s[36:39], s56 offen sc1")
    I("s_branch L_st_pub")
    a.label("L_st_fast")
    I("buffer_store_dwordx4 v[32:35], v7, s[36:39], s56 offen")
    a.label("L_st_pub")
    EX(-1)
    ST(19)
    gpoll(["buffer_load_dwordx4 v[36:39], v6, s[36:39], s57 offen sc1"], [36, 37, 38, 39], "v5", 27)
    I("v_and_b32 v36, 0xffffff00, v36")
    I(f"v_max_f32_dpp v40, v36, v36 quad_perm:[1,0,3,2] {DPP}")
    I(f"v_max_f32_dpp v40, v40, v40 quad_perm:[2,3,0,1] {DPP}")
    I("v_sub_f32 v36, v36, v40")
    I(f"v_mul_f32 v36, {hex(f2u(1.4426950408889634))}, v36")
    I("v_exp_f32 v36, v36")
    I("v_mul_f32 v37, v36, v37")
    I(f"v_add_f32_dpp v37, v37, v37 quad_perm:[1,0,3,2] {DPP}")
    I(f"v_add_f32_dpp v37, v37, v37 quad_perm:[2,3,0,1] {DPP}")
    I("v_rcp_f32 v37, v37")
    I("v_mul_f32 v36, v36, v37")
    I(f"ds_write_b32 v9, v36 offset:{L_W}")
    dry_next("L_S_tail")
    ST(7)
    flush_stamps()
    I("s_endpgm")

    lg = {1: 0, 2: 1, 4: 2, 8: 3}
    def my_piece(sp, spc):
        I(f"s_lshr_b32 {sp}, s29, {lg[ncg]}")
        I(f"s_lshl_b32 {spc}, s28, {lg[nrb]}")
        I(f"s_add_u32 {sp}, {sp}, {spc}")
        I(f"s_and_b32 {spc}, s29, {ncg-1}")
        I(f"s_lshl_b32 {spc}, {spc}, {lg[nch]+6}")
        I(f"s_add_u32 {spc}, {spc}, {sp}")
    def out_off(dst, spc, tmp):
        I(f"s_lshr_b32 {dst}, {spc}, 6"); I(f"s_lshl_b32 {dst}, {dst}, 8")
        I(f"s_bfe_u32 {tmp}, {spc}, 0x10005"); I(f"s_lshl_b32 {tmp}, {tmp}, 10"); I(f"s_add_u32 {dst}, {dst}, {tmp}")
        I(f"s_and_b32 {tmp}, {spc}, 15"); I(f"s_lshl_b32 {tmp}, {tmp}, 4"); I(f"s_add_u32 {dst}, {dst}, {tmp}")
        I(f"s_bfe_u32 {tmp}, {spc}, 0x10004"); I(f"s_lshl_b32 {tmp}, {tmp}, 3"); I(f"s_add_u32 {dst}, {dst}, {tmp}")

    a.label("L_PG")
    stamps.clear(); sreg[0] = 80
    I(f"buffer_store_dwordx4 v[{D}:{D+3}], v7, s[36:39], s56 offen sc1")
    srd(40, 20, 1376 * 1024)
    I("v_mul_u32_u24 v6, 6144, v3")
    I("v_lshl_add_u32 v6, v2, 4, v6")
    I("s_lshl_b32 s58, s28, 1")
    I("s_add_u32 s58, s58, s32")
    I("s_mul_i32 s52, s58, 24576")
    I("s_lshl_b32 s53, s33, 8")
    I("s_add_u32 s52, s52, s53")
    I("s_add_u32 s53, s52, 0x1000")
    for t in range(6):
        I(f"buffer_load_dwordx4 v[{BB+4*t}:{BB+4*t+3}], v6, s[40:43], s{52+t//4} offen offset:{(t%4)*1024} {wflag}")
    I("v_lshlrev_b32 v8, 10, v1")
    I("s_lshl_b32 s54, s33, 16")
    I("s_lshl_b32 s55, s58, 4")
    I("s_add_u32 s54, s54, s55")
    I(f"s_add_u32 s54, s54, {H2F}")
    my_piece("s56", "s57")
    I("v_lshlrev_b32 v9, 4, v1")
    I("s_lshl_b32 s55, s57, 10")
    I(f"s_add_u32 s55, s55, {H2F}")
    out_off("s56", "s57", "s58")
    I("v_lshlrev_b32 v7, 1, v3")
    I("buffer_load_ushort v124, v7, s[44:47], s56 offen")
    I("v_lshrrev_b32 v7, 3, v2")
    I("v_lshlrev_b32 v7, 9, v7")
    I("v_and_b32 v27, 7, v2")
    I("v_min_u32 v27, 2, v27")
    I("v_lshl_add_u32 v7, v27, 3, v7")
    I("v_mad_u32_u24 v7, v3, 24, v7")
    I("s_and_b32 s56, s28, 30")
    I("s_lshl_b32 s56, s56, 13")
    I("s_and_b32 s57, s28, 1")
    I("s_lshl_b32 s57, s57, 1")
    I("s_add_u32 s57, s57, s32")
    I("s_mul_i32 s57, s57, 96")
    I("s_add_u32 s56, s56, s57")
    for k in range(4):
        I(f"s_add_u32 s{60+k}, s56, {P1 + 0x1000*k}")
    G0 = 128
    a.label("L_PG_tail")
    if abl or noffn == 1:
        I("s_waitcnt vmcnt(0)"); ST(13)
        flush_stamps()
        I("s_endpgm")
    ks_wait(28, glev)
    gpoll([f"buffer_load_dwordx2 v[{G0+2*k}:{G0+1+2*k}], v7, s[36:39], s{60+k//4} offen offset:{1024*(k%4)} sc1" for k in range(16)],
          list(range(G0, G0 + 32)), "15", 27)
    ST(13)
    for base in (G0, G0 + 16):
        for k in range(4):
            I(f"v_pk_add_f32 v[{base+2*k}:{base+2*k+1}], v[{base+2*k}:{base+2*k+1}], v[{base+8+2*k}:{base+9+2*k}]")
        for k in range(2):
            I(f"v_pk_add_f32 v[{base+2*k}:{base+2*k+1}], v[{base+2*k}:{base+2*k+1}], v[{base+4+2*k}:{base+5+2*k}]")
        I(f"v_pk_add_f32 v[{base}:{base+1}], v[{base}:{base+1}], v[{base+2}:{base+3}]")
    I(f"v_cvt_pk_bf16_f32 v28, v{G0}, v{G0+1}")
    I(f"v_cvt_pk_bf16_f32 v29, v{G0+16}, v{G0+17}")
    I("v_lshlrev_b32 v30, 16, v28")
    I("v_and_b32 v31, 0xffff0000, v28")
    I(f"v_mul_f32 v30, {hex(f2u(-1.4426950408889634))}, v30")
    I(f"v_mul_f32 v31, {hex(f2u(-1.4426950408889634))}, v31")
    I("v_exp_f32 v30, v30")
    I("v_exp_f32 v31, v31")
    I("v_add_f32 v30, 1.0, v30")
    I("v_add_f32 v31, 1.0, v31")
    I("v_rcp_f32 v30, v30")
    I("v_rcp_f32 v31, v31")
    I("v_lshlrev_b32 v32, 16, v29")
    I("v_and_b32 v33, 0xffff0000, v29")
    I("v_cvt_pk_bf16_f32 v28, v30, v31")
    I("v_lshlrev_b32 v30, 16, v28")
    I("v_and_b32 v31, 0xffff0000, v28")
    I("v_mul_f32 v30, v30, v32")
    I("v_mul_f32 v31, v31, v33")
    I("v_cvt_pk_bf16_f32 v26, v30, v31")
    build_mfma(26, SEL, 18, AB, BB, D, 3)
    for r in range(4):
        I(f"v_bfi_b32 v{D+r}, v5, s31, v{D+r}")
    I(f"buffer_store_dwordx4 v[{D}:{D+3}], v8, s[36:39], s54 offen sc1")
    ST(14)
    if noffn == 2:
        flush_stamps()
        I("s_endpgm")
    lds_spin(L_OPUB, 1, 27, sleep=1)
    gpoll(["buffer_load_dwordx4 v[32:35], v9, s[36:39], s55 offen sc1"], [32, 33, 34, 35], "v5", 27)
    reduce4(32)
    I("v_cvt_pk_bf16_f32 v33, v32, v32")
    I("v_and_b32 v33, 0xffff0000, v33")
    I("v_lshlrev_b32 v32, 16, v124")
    I("v_lshlrev_b32 v7, 3, v3")
    I(f"ds_write_b64 v7, v[32:33] offset:{L_FX}")
    dry_next("L_end")
    ST(15)
    flush_stamps()
    I("s_endpgm")

    a.raw("@@PEND@@")
    a.label("L_T")
    stamps.clear(); sreg[0] = 66
    tmode[0] = True
    if stamp == "dbg": stamps[0] = 64
    if prio: I("s_setprio 3")
    DT = 80 if nch > 1 else D
    I("v_lshlrev_b32 v6, 2, v1")
    for r in range(4): I(f"v_mov_b32 v{12+r}, -1")
    I("v_lshlrev_b32 v7, 4, v1")
    I(f"ds_write_b32 v6, v12 offset:{L_M}")
    I(f"ds_write_b128 v7, v[12:15] offset:{L_P2}")
    I("s_waitcnt lgkmcnt(0)")
    I("s_barrier")
    I(f"v_lshlrev_b32 v6, {10 + lg[nch == 4 and 4 or 1] * 0 + {16:4, 8:3, 4:2}[nt]}, v3")
    I("v_lshl_add_u32 v6, v2, 4, v6")
    my_piece("s58", "s59")
    I(f"s_lshl_b32 s52, s58, {10 + {64:6, 32:5, 16:4}[R]}")
    I(f"s_and_b32 s53, s29, {ncg-1}")
    I(f"s_lshl_b32 s53, s53, {8 + lg[nch]}")
    I("s_add_u32 s52, s52, s53")
    I("s_add_u32 s53, s52, 0x1000")
    I("s_add_u32 s54, s52, 0x2000")
    I("s_add_u32 s55, s52, 0x3000")
    I("s_mov_b32 s42, 0x400000"); I("s_mov_b32 s43, 0x20000")
    I("s_waitcnt lgkmcnt(0)")
    I("s_load_dword s31, s[26:27], 0")
    I("s_mov_b32 s40, s12"); I("s_mov_b32 s41, s13")
    def woload(k):
        t, cb = k // nch, k % nch
        I(f"buffer_load_dwordx4 v[{BB+4*k}:{BB+4*k+3}], v6, s[40:43], s{52+t//4} offen offset:{(t%4)*1024 + cb*256} {wflag}")
    for k in range(wopre): woload(k)
    srd(36, 26, WSN); srd(48, 22, 2048)
    make_sel(SEL, 27)
    I(f"v_lshlrev_b32 v8, {10 + lg[nch]}, v1")
    I(f"s_and_b32 s60, s29, {ncg-1}")
    I(f"s_lshl_b32 s60, s60, {16 + 2*lg[nch]}")
    I("s_lshl_b32 s61, s58, 4")
    I("s_add_u32 s60, s60, s61")
    I(f"s_add_u32 s60, s60, {H2A}")
    for cb in range(1, nch):
        I(f"s_add_u32 s{44+cb}, s60, {cb << (16 + lg[nch])}")
    I("v_lshlrev_b32 v9, 4, v1")
    I(f"s_lshl_b32 s61, s59, {10 + lg[nch]}")
    I(f"s_add_u32 s61, s61, {H2A}")
    out_off("s62", "s59", "s57")
    I("v_lshlrev_b32 v164, 1, v3")
    I("v_lshlrev_b32 v165, 3, v3")
    I("v_lshrrev_b32 v27, 3, v2")
    I("v_lshlrev_b32 v166, 4, v27")
    I("v_lshlrev_b32 v7, 11, v27")
    I(f"v_lshl_add_u32 v7, v3, {2 + {16:4, 8:3, 4:2}[nt]}, v7")
    I("v_and_b32 v27, 7, v2")
    if nt < 16: I(f"v_min_u32 v27, {nt//2 - 1}, v27")
    I("v_lshl_add_u32 v7, v27, 3, v7")
    I("s_lshl_b32 s56, s28, 12")
    I(f"s_lshr_b32 s57, s29, {lg[ncg]}")
    I(f"s_lshl_b32 s57, s57, {2 + {64:6, 32:5, 16:4}[R]}")
    I("s_add_u32 s56, s56, s57")
    I(f"s_add_u32 s56, s56, {H1O}")
    I("s_waitcnt lgkmcnt(0)")
    I("s_mul_i32 s31, s31, 1664525")
    I("s_add_u32 s31, s31, 1013904223")
    a.label("L_T_tail")
    I("s_mov_b32 s88, 0x00010001")
    I("s_mov_b32 s89, 0x00010001")
    trig_wait(27, 1)
    ST(24)
    for k in range(wopre, 16): woload(k)
    ST(8)
    if abl:
        I("s_waitcnt vmcnt(0)"); ST(9)
        flush_stamps()
        I("s_endpgm")
    lds_spin(L_OPUB, 1, 27)
    ST(28)
    gpoll([f"buffer_load_dwordx2 v[{32+2*s}:{33+2*s}], v7, s[36:39], s56 offen offset:{512*s} sc1" for s in range(4)],
          list(range(32, 40)), "v5", 27)
    ST(9)
    if noy == 1:
        flush_stamps()
        I("s_endpgm")
    lds_spin(L_W, 4, 40, addr="v166")
    I("v_mul_f32 v32, v32, v40")
    I("v_mul_f32 v33, v33, v40")
    for s in range(1, 4):
        I(f"v_fmac_f32 v32, v{32+2*s}, v{40+s}")
        I(f"v_fmac_f32 v33, v{33+2*s}, v{40+s}")
    I("v_cvt_pk_bf16_f32 v26, v32, v33")
    build_mfma(26, SEL, 18, AB, BB, DT, nt // 2, nch)
    for cb in range(nch):
        for r in range(4):
            I(f"v_bfi_b32 v{DT+4*cb+r}, v5, s31, v{DT+4*cb+r}")
        I(f"buffer_store_dwordx4 v[{DT+4*cb}:{DT+4*cb+3}], v8, s[36:39], s{60 if cb == 0 else 44+cb} offen sc1")
    ST(10)
    if noy == 2:
        flush_stamps()
        I("s_endpgm")
    gpoll([f"buffer_load_dwordx4 v[{32+4*k}:{35+4*k}], v9, s[36:39], s61 offen offset:{1024*k} sc1" for k in range(nch)],
          list(range(32, 32 + 4 * nch)), "v5", 27)
    ST(11)
    if nch == 4:
        I("v_pk_add_f32 v[40:41], v[40:41], v[44:45]")
        I("v_pk_add_f32 v[42:43], v[42:43], v[46:47]")
    if nch >= 2:
        I("v_pk_add_f32 v[32:33], v[32:33], v[36:37]")
        I("v_pk_add_f32 v[34:35], v[34:35], v[38:39]")
    if nch == 4:
        I("v_pk_add_f32 v[32:33], v[32:33], v[40:41]")
        I("v_pk_add_f32 v[34:35], v[34:35], v[42:43]")
    reduce4(32)
    if not noffn: lds_spin(L_FX, 2, 36, addr="v165")
    I("v_cvt_pk_bf16_f32 v32, v32, v32")
    I("v_and_b32 v32, 0xffff0000, v32")
    I("v_add_f32 v32, v36, v32")
    I("v_cvt_pk_bf16_f32 v32, v32, v32")
    I("v_and_b32 v32, 0xffff0000, v32")
    I("v_add_f32 v32, v32, v37")
    I("v_cvt_pk_bf16_f32 v32, v32, v32")
    I("s_mov_b64 exec, s[88:89]")
    I("buffer_store_short v32, v164, s[48:51], s62 offen")
    I("s_cmp_eq_u32 s2, 0")
    I("s_cbranch_scc0 L_t_end")
    EX(1)
    I("v_mov_b32 v33, s31")
    I("buffer_store_dword v33, v4, s[36:39], 0 offen sc1")
    a.label("L_t_end")
    dry_next("L_PG_tail")
    ST(12)
    flush_stamps()
    I("s_endpgm")
    a.label("L_end")
    I("s_endpgm")

    nv = a.maxv + 1
    head = HDR + f"""; @launch grid=(256,1,1) block=(704,1,1) lds={LDS_BYTES}
.amdgcn_target "amdgcn-amd-amdhsa--gfx950"
.text
.globl {KN}_kernel
.p2align 8
.type {KN}_kernel,@function
{KN}_kernel:
"""
    foot = f""".section .rodata,"a"
.p2align 6
.amdhsa_kernel {KN}_kernel
  .amdhsa_next_free_vgpr {nv}
  .amdhsa_next_free_sgpr {max(a.maxs + 1, 16)}
  .amdhsa_accum_offset {(nv + 3) // 4 * 4}
  .amdhsa_group_segment_fixed_size 0
  .amdhsa_kernarg_size 96
  .amdhsa_user_sgpr_count 2
  .amdhsa_user_sgpr_kernarg_segment_ptr 1
  .amdhsa_system_sgpr_workgroup_id_x 1
  .amdhsa_float_denorm_mode_32 3
.end_amdhsa_kernel
"""
    txt = a.text()
    i0 = txt.index("@@PBEG@@\n"); i1 = txt.index("@@PEND@@\n")
    P = txt[i0 + 9:i1]
    txt = txt[:i0] + txt[i1 + 9:]
    txt = txt.replace("@@P@@\n", P)
    return head + txt + foot

if __name__ == "__main__":
    import json
    name = sys.argv[1]; kw = {}
    for x in sys.argv[2:]:
        k, v = x.split("="); kw[k] = eval(v)
    open(name, "w").write(gen(**kw))
```

```python
import sys, struct
from asmlib import Asm
from common import KN
def f2u(x): return struct.unpack("<I", struct.pack("<f", x))[0]

HDR = open("cdna_kernels/" + KN + ".s.ref").read().split("; Override launch")[0]

PX = 0x140000; P0 = 0x10000; P1 = 0x50000; H1S = 0x90000; H1O = 0xA0000; H2F = 0xC0000; H2A = 0x100000
L_Q = 0x000; L_M = 0x100; L_L = 0x110; L_W = 0x120; L_FX = 0x140; L_FQ = 0x160; L_TRIG = 0x164; L_OCNT = 0x168; L_OPUB = 0x16c; L_KS = 0x170; L_YPUB = 0x180; L_P2 = 0x200; L_PART = 0x600; L_YF = 0xE00
LDS_BYTES = 0x1200

def gen(stamp=False, kvflag="nt", wflag="nt", prio=True, R=64, fast=True, wopre=0, qfast=True, sw=0, abl=0, gran=4, lag=0, qlev=(2,), glev=2, kwin=0, vwin=0, rot=0, noffn=0, noy=0, ysleep=0, fdefer=0, qrel=0, wdlate=0, wotrig=0, merge=1, fearly=0, ncons=32, fin='F', fwait=1, ring=0, ldf='sc1', stf='sc1', smtest=0):
    a = Asm(); I = a.i
    uid = [0]
    def lab(p):
        uid[0] += 1; return f"L_{p}_{uid[0]}"
    SC = "s34"
    stamps = {}
    sreg = [64]
    DBG = {0: 0, 24: 1, 8: 2, 28: 3, 9: 4, 10: 5, 11: 6, 12: 7}
    tmode = [False]
    def ST(slot):
        if not stamp: return
        if stamp == "dbg":
            if slot not in DBG or (slot != 0 and not tmode[0]): return
            slot = DBG[slot]
        r = sreg[0]; sreg[0] += 2
        stamps[slot] = r
        I(f"s_memrealtime s[{r}:{r+1}]")
    def flush_stamps():
        if not stamp: return
        if stamp == "dbg" and not tmode[0]: return
        I("s_mov_b64 exec, 1")
        I("s_waitcnt lgkmcnt(0)")
        if stamp == "dbg":
            srd(96, 24, 256)
            for slot, r in stamps.items():
                I(f"v_mov_b32 v6, s{r}")
                I(f"buffer_atomic_umax v6, v4, s[96:99], 0 offen offset:{4*slot} sc1")
                I(f"s_not_b32 s{r}, s{r}")
                I(f"v_mov_b32 v6, s{r}")
                I(f"buffer_atomic_umax v6, v4, s[96:99], 0 offen offset:{32+4*slot} sc1")
            stamps.clear(); sreg[0] = 64
            return
        I("s_lshl_b32 s52, s2, 7")
        I("s_add_u32 s52, s52, 0x8000000")
        for slot, r in stamps.items():
            I(f"v_mov_b32 v6, s{r}")
            I(f"buffer_store_dword v6, v4, s[36:39], s52 offen offset:{4*slot}")
        stamps.clear(); sreg[0] = 64
    def lds_spin(off, n, dst, addr="v4", sleep=0):
        L = lab("spin"); O = lab("spino")
        a.label(L)
        if sleep: I(f"s_sleep {sleep}")
        if n == 1: I(f"ds_read_b32 v{dst}, {addr} offset:{off}")
        elif n == 2: I(f"ds_read_b64 v[{dst}:{dst+1}], {addr} offset:{off}")
        else: I(f"ds_read_b128 v[{dst}:{dst+3}], {addr} offset:{off}")
        I(f"s_sub_u32 {SC}, {SC}, 1")
        I("s_waitcnt lgkmcnt(0)")
        I("s_cbranch_scc1 L_end")
        t = dst
        if n == 2:
            t = dst + 2; I(f"v_max_u32 v{t}, v{dst}, v{dst+1}")
        if n == 4:
            t = dst + 4
            I(f"v_max3_u32 v{t}, v{dst}, v{dst+1}, v{dst+2}")
            I(f"v_max_u32 v{t}, v{t}, v{dst+3}")
        I(f"v_cmp_eq_u32 vcc, -1, v{t}")
        I(f"s_cbranch_vccnz {L}")
        a.label(O)
    def trig_wait(tmp, k):
        L = lab("trig"); O = lab("trigo")
        a.label(L)
        I("s_sleep 1")
        I(f"ds_read_b32 v{tmp}, v4 offset:{L_TRIG}")
        I(f"s_sub_u32 {SC}, {SC}, 1")
        I("s_waitcnt lgkmcnt(0)")
        I("s_cbranch_scc1 L_end")
        I(f"v_cmp_gt_i32 vcc, {4*k-1}, v{tmp}")
        I(f"s_cbranch_vccnz {L}")
        a.label(O)
    def ks_wait(tmp, lev, one=None):
        L = lab("ks")
        a.label(L)
        I("s_sleep 1")
        if one: I(f"ds_read_b32 v{tmp}, {one} offset:{L_KS}")
        else: I(f"ds_read_b128 v[{tmp}:{tmp+3}], v4 offset:{L_KS}")
        I(f"s_sub_u32 {SC}, {SC}, 1")
        I("s_waitcnt lgkmcnt(0)")
        I("s_cbranch_scc1 L_end")
        if not one:
            I(f"v_min3_i32 v{tmp}, v{tmp}, v{tmp+1}, v{tmp+2}")
            I(f"v_min_i32 v{tmp}, v{tmp}, v{tmp+3}")
        I(f"v_cmp_gt_i32 vcc, {lev}, v{tmp}")
        I(f"s_cbranch_vccnz {L}")
    def ks_cur(tmp, dst):
        I(f"ds_read_b128 v[{tmp}:{tmp+3}], v4 offset:{L_KS}")
        I("s_waitcnt lgkmcnt(0)")
        I(f"v_min3_i32 v{tmp}, v{tmp}, v{tmp+1}, v{tmp+2}")
        I(f"v_min_i32 v{tmp}, v{tmp}, v{tmp+3}")
        I(f"v_max_i32 v{tmp}, 0, v{tmp}")
        I(f"v_readfirstlane_b32 {dst}, v{tmp}")
    def gpoll(loads, words, tagmask, acc):
        L = lab("poll"); O = lab("pollo")
        a.label(L)
        for l in loads: I(l)
        I(f"s_sub_u32 {SC}, {SC}, 64")
        I("s_waitcnt vmcnt(0)")
        I("s_cbranch_scc1 L_end")
        I(f"v_xor_b32 v{acc}, s31, v{words[0]}")
        for w in words[1:]:
            I(f"v_bitop3_b32 v{acc}, v{acc}, v{w}, s31 bitop3:0xf6")
        I(f"v_and_b32 v{acc}, {tagmask}, v{acc}")
        I(f"v_cmp_ne_u32 vcc, 0, v{acc}")
        I(f"s_cbranch_vccnz {L}")
        a.label(O)
    def srd(d, lo, n):
        I(f"s_mov_b32 s{d}, s{lo}"); I(f"s_mov_b32 s{d+1}, s{lo+1}")
        I(f"s_mov_b32 s{d+2}, {hex(n)}"); I(f"s_mov_b32 s{d+3}, 0x20000")
    DPP = "row_mask:0xf bank_mask:0xf"
    def make_sel(S, t0):
        I(f"v_and_b32 v{t0}, 1, v2")
        I(f"v_cmp_eq_u32 vcc, 1, v{t0}")
        I(f"v_bfe_u32 v{t0}, v2, 1, 2")
        I(f"v_mov_b32 v{t0+3}, 0x0c0c0c0c")
        for e in range(2):
            ev = 0x0c0c0000 | (2*e+1) << 8 | (2*e)
            od = (2*e+1) << 24 | (2*e) << 16 | 0x0c0c
            I(f"v_mov_b32 v{S}, {hex(ev)}")
            I(f"v_mov_b32 v{S+1}, {hex(od)}")
            I(f"v_cndmask_b32 v{t0+1+e}, v{S}, v{S+1}, vcc")
        for i in range(4):
            I(f"v_cmp_eq_u32 vcc, {i}, v{t0}")
            for e in range(2):
                I(f"v_cndmask_b32 v{S+4*e+i}, v{t0+3}, v{t0+1+e}, vcc")
    def build_mfma(Q, S, TMP, AB, BB, D, npair, nch=1, cinit=False):
        for u in range(npair):
            I(f"v_mov_b32_dpp v{TMP+u}, v{Q} row_newbcast:{u} row_mask:0xf bank_mask:0x3")
            I(f"v_mov_b32_dpp v{TMP+u}, v{Q} row_newbcast:{8+u} row_mask:0xf bank_mask:0xc")
        n = 2 * npair
        def perm(t):
            for i in range(4):
                I(f"v_perm_b32 v{AB+4*t+i}, v{TMP+t//2}, v{TMP+t//2}, v{S+4*(t%2)+i}")
        def mf(t):
            for cb in range(nch):
                d = D + 4 * cb; bb = BB + 4 * (t * nch + cb)
                c = "0" if (t == 0 and not cinit) else f"v[{d}:{d+3}]"
                I(f"v_mfma_f32_16x16x32_bf16 v[{d}:{d+3}], v[{AB+4*t}:{AB+4*t+3}], v[{bb}:{bb+3}], {c}")
        perm(0)
        for t in range(n):
            if t + 1 < n: perm(t + 1)
            mf(t)
    def tagcheck(words, tagmask, acc):
        I(f"v_xor_b32 v{acc}, s31, v{words[0]}")
        for w in words[1:]:
            I(f"v_bitop3_b32 v{acc}, v{acc}, v{w}, s31 bitop3:0xf6")
        I(f"v_and_b32 v{acc}, {tagmask}, v{acc}")
        I(f"v_cmp_ne_u32 vcc, 0, v{acc}")
    def reduce4(V):
        I(f"v_permlane32_swap_b32 v{V}, v{V+2}")
        I(f"v_permlane32_swap_b32 v{V+1}, v{V+3}")
        I(f"v_add_f32 v{V}, v{V}, v{V+2}")
        I(f"v_add_f32 v{V+1}, v{V+1}, v{V+3}")
        I(f"v_permlane16_swap_b32 v{V}, v{V+1}")
        I(f"v_add_f32 v{V}, v{V}, v{V+1}")
        for r in (8, 4, 2, 1):
            I(f"v_add_f32_dpp v{V}, v{V}, v{V} row_ror:{r} {DPP}")

    def reduce4x2(V, W):
        for X in (V, W):
            I(f"v_permlane32_swap_b32 v{X}, v{X+2}")
            I(f"v_permlane32_swap_b32 v{X+1}, v{X+3}")
        for X in (V, W):
            I(f"v_add_f32 v{X}, v{X}, v{X+2}")
            I(f"v_add_f32 v{X+1}, v{X+1}, v{X+3}")
        for X in (V, W): I(f"v_permlane16_swap_b32 v{X}, v{X+1}")
        for X in (V, W): I(f"v_add_f32 v{X}, v{X}, v{X+1}")
        for r in (8, 4, 2, 1):
            for X in (V, W): I(f"v_add_f32_dpp v{X}, v{X}, v{X} row_ror:{r} {DPP}")

    WSN = 0x10000000 if stamp else 0x200000
    nch = 64 // R; ncg = 4 // nch; nrb = 128 // R; nt = R // 4
    def EX(m): I(f"s_mov_b64 exec, {m}")
    def dry_next(lbl): pass
    ST(0)
    I("s_load_dwordx16 s[4:19], s[0:1], 0")
    I("s_load_dwordx8 s[20:27], s[0:1], 64")
    I("v_lshrrev_b32 v6, 6, v0")
    I("s_cmp_ge_u32 s2, 256")
    I("v_readfirstlane_b32 s30, v6")
    I("s_cbranch_scc1 L_end")
    I("v_and_b32 v1, 63, v0")
    I("s_and_b32 s28, s2, 7")
    I("s_lshl_b32 s28, s28, 2")
    I("s_lshr_b32 s29, s2, 6")
    I("s_add_u32 s28, s28, s29")
    I("s_bfe_u32 s29, s2, 0x30003")
    I("s_lshr_b32 s32, s29, 2")
    I("s_and_b32 s33, s29, 3")
    I("s_lshl_b32 s35, s28, 3")
    I("s_add_u32 s35, s35, s29")
    I(f"s_mov_b32 {SC}, 0x100000")
    I("v_and_b32 v2, 15, v1")
    I("v_lshrrev_b32 v3, 4, v1")
    I("v_mov_b32 v4, 0")
    I("v_mov_b32 v5, 0xff")
    I("s_cmp_eq_u32 s30, 10")
    I("s_cbranch_scc1 L_T")
    I("s_cmp_ge_u32 s30, 2")
    I("s_cbranch_scc1 L_S")
    a.raw("@@P@@")

    a.label("L_S")
    KB, VB, ACC, D = 32, 96, 16, 160
    I("s_sub_u32 s30, s30, 2")
    I("s_lshr_b32 s59, s30, 2")
    I("s_and_b32 s30, s30, 3")
    I("v_lshlrev_b32 v6, 4, v1")
    I("s_lshl_b32 s52, s32, 25")
    I("s_lshl_b32 s53, s28, 20")
    I("s_add_u32 s52, s52, s53")
    I("s_lshl_b32 s53, s33, 16")
    I("s_add_u32 s52, s52, s53")
    I("s_lshl_b32 s53, s30, 14")
    I("s_add_u32 s52, s52, s53")
    I("s_add_u32 s52, s52, 0xC0000")
    if rot == 1:
        I("s_add_u32 s60, s28, s29")
        for k in (3, 2, 1, 0):
            I(f"s_add_u32 s61, s60, {k}"); I("s_and_b32 s61, s61, 3"); I("s_lshl_b32 s61, s61, 12")
            I(f"s_add_u32 s{52+k}, s52, s61")
    elif rot == 2:
        I("s_lshl_b32 s60, s29, 1"); I("s_xor_b32 s60, s60, s28"); I("s_and_b32 s60, s60, 15"); I("s_lshl_b32 s60, s60, 10")
        for k in range(16):
            I(f"s_xor_b32 s{96-16-12+k if False else 44+k if k < 8 else 72+k}, s60, {k << 10}")
            r = 44 + k if k < 8 else 72 + k
            I(f"s_add_u32 s{r}, s{r}, s52")
    else:
        I("s_add_u32 s53, s52, 0x1000")
        I("s_add_u32 s54, s52, 0x2000")
        I("s_add_u32 s55, s52, 0x3000")
    I("s_mov_b32 s42, 0x4000000"); I("s_mov_b32 s43, 0x20000")
    I("s_lshl_b32 s56, s30, 2")
    I("v_mov_b32 v165, s56")
    I("s_lshl_b32 s56, s30, 8")
    I("v_lshl_add_u32 v167, v1, 2, s56")
    I("v_lshlrev_b32 v166, 4, v2")
    I("s_waitcnt lgkmcnt(0)")
    I("s_mov_b32 s40, s6"); I("s_mov_b32 s41, s7")
    I("s_cmp_eq_u32 s59, 1")
    I("s_barrier")
    I("s_cbranch_scc1 L_V")
    def tload(base, t):
        if rot == 2:
            r = 44 + t if t < 8 else 72 + t
            I(f"buffer_load_dwordx4 v[{base+4*t}:{base+4*t+3}], v6, s[40:43], s{r} offen {kvflag}")
            return
        I(f"buffer_load_dwordx4 v[{base+4*t}:{base+4*t+3}], v6, s[40:43], s{52+t//4} offen offset:{(t%4)*1024} {kvflag}")
    ST(22)
    nlev = 16 // gran
    lev = 0
    for t in range(16):
        if kwin and t >= kwin:
            I(f"s_waitcnt vmcnt({kwin-1})")
        tload(KB, t)
        if kwin and t >= kwin and (t - kwin + 1) % gran == 0:
            lev = (t - kwin + 1) // gran
            I(f"v_mov_b32 v12, {lev}")
            I(f"ds_write_b32 v165, v12 offset:{L_KS}")
    ST(25)
    I("s_mov_b32 s88, 0xcccccccc"); I("s_mov_b32 s89, 0xcccccccc")
    I("s_mov_b32 s90, 0xaaaaaaaa"); I("s_mov_b32 s91, 0xaaaaaaaa")
    if stamp: srd(36, 26, WSN)
    for k in range(lev + 1, nlev + 1):
        I(f"v_mov_b32 v12, {k}")
        I(f"s_waitcnt vmcnt({16 - k*gran})")
        I(f"ds_write_b32 v165, v12 offset:{L_KS}")
    ST(26)
    if abl:
        I(f"s_cmp_eq_u32 s30, {sw}")
        I("s_cbranch_scc0 L_end")
        flush_stamps()
        I("s_endpgm")
    lds_spin(L_FQ, 1, 16, sleep=1)
    I(f"ds_read_b128 v[12:15], v166 offset:{L_Q}")
    ST(2)
    I("s_waitcnt lgkmcnt(0)")
    for t in range(0, 16, 2):
        for i in range(4):
            for tt in (t, t + 1):
                c = "0" if i == 0 else f"v{ACC+tt}"
                I(f"v_dot2_f32_bf16 v{ACC+tt}, v{KB+4*tt+i}, v{12+i}, {c}")
    for t in range(8):
        I(f"v_add_f32_dpp v{ACC+t}, v{ACC+t}, v{ACC+t} row_ror:8 row_mask:0xf bank_mask:0x3")
    for t in range(8):
        I(f"v_add_f32_dpp v{ACC+t}, v{ACC+t+8}, v{ACC+t+8} row_ror:8 row_mask:0xf bank_mask:0xc")
    for t in range(4):
        I(f"v_add_f32_dpp v{ACC+t}, v{ACC+t}, v{ACC+t} row_shl:4 row_mask:0xf bank_mask:0x5")
    for t in range(4):
        I(f"v_add_f32_dpp v{ACC+t}, v{ACC+t+4}, v{ACC+t+4} row_shr:4 row_mask:0xf bank_mask:0xa")
    for t in range(4):
        I(f"v_add_f32_dpp v{ACC+t}, v{ACC+t}, v{ACC+t} quad_perm:[2,3,0,1] {DPP}")
    I(f"v_cndmask_b32 v{ACC}, v{ACC}, v{ACC+2}, s[88:89]")
    I(f"v_cndmask_b32 v{ACC+1}, v{ACC+1}, v{ACC+3}, s[88:89]")
    for t in range(2):
        I(f"v_add_f32_dpp v{ACC+t}, v{ACC+t}, v{ACC+t} quad_perm:[1,0,3,2] {DPP}")
    I(f"v_cndmask_b32 v16, v16, v17, s[90:91]")
    I("v_cvt_pk_bf16_f32 v16, v16, v16")
    I("v_and_b32 v16, 0xffff0000, v16")
    I(f"v_mul_f32 v16, {hex(f2u(128 ** -0.5))}, v16")
    I("v_cvt_pk_bf16_f32 v16, v16, v16")
    I("v_and_b32 v16, 0xffff0000, v16")
    I(f"v_max_f32_dpp v17, v16, v16 row_ror:8 {DPP}")
    for r in (4, 2, 1):
        I(f"v_max_f32_dpp v17, v17, v17 row_ror:{r} {DPP}")
    I("v_mov_b32 v18, v17")
    I("v_permlane16_swap_b32 v17, v18")
    I("v_max_f32 v17, v17, v18")
    I("v_mov_b32 v18, v17")
    I("v_permlane32_swap_b32 v17, v18")
    I("v_max_f32 v17, v17, v18")
    I(f"ds_write_b32 v165, v17 offset:{L_M}")
    if not smtest: ST(23)
    lds_spin(L_M, 4, 20)
    I("v_max3_f32 v17, v20, v21, v22")
    I("v_max_f32 v17, v17, v23")
    I("v_sub_f32 v16, v16, v17")
    I(f"v_mul_f32 v16, {hex(f2u(1.4426950408889634))}, v16")
    I("v_exp_f32 v16, v16")
    I("v_cvt_pk_bf16_f32 v19, v16, v16")
    I(f"ds_write_b32 v167, v19 offset:{L_P2}")
    I(f"v_add_f32_dpp v17, v16, v16 row_ror:8 {DPP}")
    for r in (4, 2, 1):
        I(f"v_add_f32_dpp v17, v17, v17 row_ror:{r} {DPP}")
    I("v_mov_b32 v18, v17")
    I("v_permlane16_swap_b32 v17, v18")
    I("v_add_f32 v17, v17, v18")
    I("v_mov_b32 v18, v17")
    I("v_permlane32_swap_b32 v17, v18")
    I("v_add_f32 v17, v17, v18")
    I(f"ds_write_b32 v165, v17 offset:{L_L}")
    ST(27)
    if stamp:
        I(f"s_cmp_eq_u32 s30, {sw}")
        I("s_cbranch_scc0 L_end")
        flush_stamps()
    I("s_endpgm")

    a.label("L_V")
    stamps.clear(); sreg[0] = 66
    I("v_and_b32 v12, 1, v2")
    I("v_lshlrev_b32 v12, 4, v12")
    I("v_mov_b32 v13, 0xffff")
    I("v_lshlrev_b32 v12, v12, v13")
    I("v_lshrrev_b32 v13, 1, v2")
    for i in range(4):
        I(f"v_cmp_eq_u32 vcc, {i}, v13")
        I(f"v_cndmask_b32 v{8+i}, 0, v12, vcc")
    I("v_and_b32 v7, 1, v3")
    I("v_lshlrev_b32 v7, 4, v7")
    I("v_lshl_add_u32 v7, v2, 5, v7")
    I("s_lshl_b32 s56, s30, 9")
    I("v_add_u32 v164, s56, v7")
    I(f"s_lshl_b32 s57, s35, 9")
    I(f"s_add_u32 s57, s57, {H1O}")
    I("v_mov_b32 v12, 1")
    I("s_load_dword s31, s[26:27], 0")
    I("s_mov_b32 s40, s8"); I("s_mov_b32 s41, s9")
    srd(36, 26, WSN)
    I("s_waitcnt lgkmcnt(0)")
    I("s_mul_i32 s31, s31, 1664525")
    I("s_add_u32 s31, s31, 1013904223")
    for t in range(16):
        if t % gran == 0:
            lev = t // gran + 1 + lag
            if 1 <= lev <= nlev: ks_wait(13, lev, one="v165")
        if vwin and t >= vwin: I(f"s_waitcnt vmcnt({vwin-1})")
        tload(VB, t)
    if wotrig: I(f"s_waitcnt vmcnt({16 - wotrig})")
    I("s_mov_b64 exec, 1")
    I(f"ds_add_u32 v4, v12 offset:{L_TRIG}")
    I("s_mov_b64 exec, -1")
    ST(1)
    if abl:
        I("s_waitcnt vmcnt(0)"); ST(21)
        I(f"s_cmp_eq_u32 s30, {sw}")
        I("s_cbranch_scc0 L_end")
        flush_stamps()
        I("s_endpgm")
    lds_spin(L_P2, 1, 19, addr="v167")
    I(f"ds_read_b32 v16, v4 offset:{L_FQ}")
    for t in range(16):
        for i in range(4):
            I(f"v_and_b32_dpp v{KB+4*t+i}, v19, v{8+i} row_newbcast:{t} {DPP}")
    I("s_waitcnt lgkmcnt(0)")
    I("v_readfirstlane_b32 s58, v16")
    ST(3)
    for t in range(16):
        I(f"s_waitcnt vmcnt({15-t})")
        if t == 15: ST(21)
        c = "0" if t == 0 else f"v[{D}:{D+3}]"
        I(f"v_mfma_f32_16x16x32_bf16 v[{D}:{D+3}], v[{KB+4*t}:{KB+4*t+3}], v[{VB+4*t}:{VB+4*t+3}], {c}")
    EX("0xffffffff")
    I(f"ds_write_b128 v164, v[{D}:{D+3}] offset:{L_PART}")
    EX(1)
    I(f"ds_add_rtn_u32 v13, v4, v12 offset:{L_OCNT}")
    EX("0xffffffff")
    for w in range(4):
        I(f"ds_read_b128 v[{16+4*w}:{19+4*w}], v7 offset:{L_PART+512*w}")
    I("s_waitcnt lgkmcnt(0)")
    I("v_readfirstlane_b32 s56, v13")
    I("v_pk_add_f32 v[16:17], v[16:17], v[20:21]")
    I("v_pk_add_f32 v[18:19], v[18:19], v[22:23]")
    I("s_cmp_eq_u32 s56, 2")
    I("s_cbranch_scc0 L_s_end")
    I("v_pk_add_f32 v[24:25], v[24:25], v[28:29]")
    I("v_pk_add_f32 v[26:27], v[26:27], v[30:31]")
    I("v_pk_add_f32 v[16:17], v[16:17], v[24:25]")
    I("v_pk_add_f32 v[18:19], v[18:19], v[26:27]")
    I("s_cmp_eq_u32 s58, 1")
    for r in range(4):
        I(f"v_bfi_b32 v{16+r}, v5, s31, v{16+r}")
    I("s_cbranch_scc1 L_s_fast")
    I("buffer_store_dwordx4 v[16:19], v7, s[36:39], s57 offen sc1")
    I("s_branch L_s_pub")
    a.label("L_s_fast")
    I("buffer_store_dwordx4 v[16:19], v7, s[36:39], s57 offen")
    a.label("L_s_pub")
    I("v_and_b32 v20, v5, v16")
    I(f"ds_write_b32 v4, v20 offset:{L_OPUB}")
    if stamp:
        keep = dict(stamps); stamps.clear(); ST(4); sv = sreg[0]; flush_stamps(); stamps.update(keep); sreg[0] = sv
    a.label("L_s_end")
    if stamp:
        I(f"s_cmp_eq_u32 s30, {sw}")
        I("s_cbranch_scc0 L_end")
        flush_stamps()
    I("s_endpgm")

    a.raw("@@PBEG@@")
    stamps.clear(); sreg[0] = 66
    if prio: I("s_setprio 2")
    AB, BB, SEL = 32, 96, 10
    I("s_lshr_b32 s56, s28, 1")
    I("s_cmp_eq_u32 s30, 0")
    I("s_movk_i32 s52, 2752"); I("s_movk_i32 s53, 192"); I("s_movk_i32 s55, 172"); I("s_mov_b32 s42, 1409024")
    I("s_cselect_b32 s52, 8192, s52")
    I("s_cselect_b32 s53, 256, s53")
    I("s_cselect_b32 s54, 16, 12")
    I("s_cselect_b32 s55, 512, s55")
    I("s_cselect_b32 s42, 0x400000, s42")
    I("s_cselect_b32 s56, s28, s56")
    I("s_mul_i32 s57, s56, s54")
    I("s_sub_i32 s55, s55, s57")
    I("s_min_i32 s54, s54, s55")
    I("s_mul_i32 s53, s53, s56")
    I("s_lshl_b32 s56, s29, 6")
    I("s_mul_i32 s56, s56, s52")
    I("s_add_u32 s53, s53, s56")
    I("s_lshl_b32 s56, s52, 4")
    I("v_mul_lo_u32 v6, v3, s56")
    I("v_lshl_add_u32 v6, v2, 4, v6")
    I("v_cmp_gt_i32 vcc, s54, v2")
    I("v_mov_b32 v7, 0x80000000")
    I("v_cndmask_b32 v6, v7, v6, vcc")
    I("v_lshrrev_b32 v9, 3, v2")
    I("v_and_b32 v26, 7, v2")
    I("v_lshlrev_b32 v9, 10, v9")
    I("v_lshl_add_u32 v7, v3, 8, v9")
    I("v_lshl_add_u32 v7, v26, 5, v7")
    I("v_lshl_add_u32 v8, v3, 5, v9")
    I("v_lshl_add_u32 v8, v26, 2, v8")
    I("s_lshl_b32 s56, s29, 7")
    I("s_mov_b32 s46, 2048"); I("s_mov_b32 s47, 0x20000"); I("s_mov_b32 s43, 0x20000")
    I("s_bitcmp1_b32 s28, 0")
    I("s_waitcnt lgkmcnt(0)")
    ST(16)
    I("s_mov_b32 s44, s4"); I("s_mov_b32 s45, s5")
    I("buffer_load_dwordx4 v[18:21], v7, s[44:47], 0 offen")
    I("buffer_load_dwordx4 v[22:25], v7, s[44:47], 0 offen offset:16")
    I("buffer_load_dword v26, v8, s[44:47], s56 offen")
    I("s_cselect_b32 s40, s18, s16")
    I("s_cselect_b32 s41, s19, s17")
    I("s_cmp_eq_u32 s30, 0")
    I("s_cselect_b32 s40, s10, s40")
    I("s_cselect_b32 s41, s11, s41")
    for t in range(16):
        I(f"buffer_load_dwordx4 v[{BB+4*t}:{BB+4*t+3}], v6, s[40:43], s53 offen {wflag}")
        if t < 15: I("s_add_u32 s53, s53, s52")
    I("s_barrier")
    I("s_load_dword s31, s[26:27], 0")
    srd(36, 26, WSN)
    I("s_getreg_b32 s59, hwreg(HW_REG_XCC_ID, 0, 4)")
    make_sel(SEL, 27)
    I("v_mov_b32 v27, 0x3f803f80")
    I("s_waitcnt vmcnt(16)")
    ST(17)
    I("v_dot2_f32_bf16 v28, v18, v27, 0")
    I("v_dot2_f32_bf16 v29, v19, v27, 0")
    for k in range(2, 8, 2):
        I(f"v_dot2_f32_bf16 v28, v{18+k}, v27, v28")
        I(f"v_dot2_f32_bf16 v29, v{19+k}, v27, v29")
    for k in range(8):
        I(f"v_lshlrev_b32 v{32+2*k}, 16, v{18+k}")
        I(f"v_and_b32 v{33+2*k}, 0xffff0000, v{18+k}")
    I("v_add_f32 v28, v28, v29")
    def red32(r, t):
        I(f"v_add_f32_dpp v{r}, v{r}, v{r} quad_perm:[1,0,3,2] {DPP}")
        I(f"v_add_f32_dpp v{r}, v{r}, v{r} quad_perm:[2,3,0,1] {DPP}")
        I(f"v_add_f32_dpp v{r}, v{r}, v{r} row_half_mirror {DPP}")
        I(f"v_mov_b32 v{t}, v{r}")
        I(f"v_permlane16_swap_b32 v{r}, v{t}")
        I(f"v_add_f32 v{r}, v{r}, v{t}")
        I(f"v_mov_b32 v{t}, v{r}")
        I(f"v_permlane32_swap_b32 v{r}, v{t}")
        I(f"v_add_f32 v{r}, v{r}, v{t}")
    red32(28, 29)
    I(f"v_mul_f32 v28, {hex(f2u(1/512))}, v28")
    I("v_mov_b32 v29, v28")
    for k in range(8):
        I(f"v_pk_add_f32 v[{32+2*k}:{33+2*k}], v[{32+2*k}:{33+2*k}], v[28:29] neg_lo:[0,1] neg_hi:[0,1]")
    I("v_pk_mul_f32 v[30:31], v[32:33], v[32:33]")
    for k in range(1, 8):
        I(f"v_pk_fma_f32 v[30:31], v[{32+2*k}:{33+2*k}], v[{32+2*k}:{33+2*k}], v[30:31]")
    I("v_add_f32 v30, v30, v31")
    red32(30, 31)
    I(f"v_mul_f32 v30, {hex(f2u(1/512))}, v30")
    I("v_cvt_pk_bf16_f32 v28, v28, v30")
    I("v_and_b32 v30, 0xffff0000, v28")
    I("v_lshlrev_b32 v28, 16, v28")
    I(f"v_add_f32 v30, {hex(f2u(1e-5))}, v30")
    I("v_cvt_pk_bf16_f32 v30, v30, v30")
    I("v_and_b32 v30, 0xffff0000, v30")
    I("v_sqrt_f32 v30, v30")
    I("v_lshlrev_b32 v32, 16, v26")
    I("v_and_b32 v33, 0xffff0000, v26")
    I("v_cvt_pk_bf16_f32 v30, v30, v30")
    I("v_and_b32 v30, 0xffff0000, v30")
    I("v_rcp_f32 v30, v30")
    I("v_sub_f32 v32, v32, v28")
    I("v_sub_f32 v33, v33, v28")
    I("v_cvt_pk_bf16_f32 v26, v32, v33")
    I("v_lshlrev_b32 v32, 16, v26")
    I("v_and_b32 v33, 0xffff0000, v26")
    I("v_mul_f32 v32, v32, v30")
    I("v_mul_f32 v33, v33, v30")
    I("v_cvt_pk_bf16_f32 v26, v32, v33")
    ST(18)
    for u in range(8):
        I(f"v_mov_b32_dpp v{18+u}, v26 row_newbcast:{u} row_mask:0xf bank_mask:0x3")
        I(f"v_mov_b32_dpp v{18+u}, v26 row_newbcast:{8+u} row_mask:0xf bank_mask:0xc")
    def pperm(t):
        for i in range(4):
            I(f"v_perm_b32 v{AB+4*t+i}, v{18+t//2}, v{18+t//2}, v{SEL+4*(t%2)+i}")
    pperm(0)
    for t in range(16):
        if t < 15: pperm(t + 1)
        I(f"s_waitcnt vmcnt({15-t})")
        c = "0" if t == 0 else f"v[{D}:{D+3}]"
        I(f"v_mfma_f32_16x16x32_bf16 v[{D}:{D+3}], v[{AB+4*t}:{AB+4*t+3}], v[{BB+4*t}:{BB+4*t+3}], {c}")
    I("s_waitcnt lgkmcnt(0)")
    I("s_mul_i32 s31, s31, 1664525")
    I("s_add_u32 s31, s31, 1013904223")
    I("v_and_b32 v7, 1, v3")
    I("v_lshlrev_b32 v7, 4, v7")
    I("v_lshl_add_u32 v7, v2, 5, v7")
    I("v_lshrrev_b32 v8, 1, v3")
    I("v_lshl_add_u32 v7, v8, 9, v7")
    I("s_lshl_b32 s56, s30, 18")
    I("s_lshl_b32 s57, s35, 10")
    I("s_add_u32 s56, s56, s57")
    I(f"s_add_u32 s56, s56, {P0}")
    I("s_and_b32 s57, s31, 15")
    for r in range(3):
        I(f"s_bfe_u32 s{92+r}, s59, {hex(0x10000 + r)}")
        I(f"s_lshl_b32 s{92+r}, s{92+r}, 4")
        I(f"s_or_b32 s{92+r}, s{92+r}, s57")
    for r in range(3):
        I(f"v_bfi_b32 v{D+r}, 31, s{92+r}, v{D+r}")
    I(f"v_bfi_b32 v{D+3}, 15, s31, v{D+3}")
    I("s_cmp_eq_u32 s30, 1")
    I("s_cbranch_scc1 L_PG")
    if qfast:
        I(f"s_add_u32 s57, s56, {PX - P0}")
        I(f"buffer_store_dwordx4 v[{D}:{D+3}], v7, s[36:39], s57 offen")
    I(f"buffer_store_dwordx4 v[{D}:{D+3}], v7, s[36:39], s56 offen sc1")

    ST(5)
    a.label("L_PQ_tail")
    if abl:
        flush_stamps()
        I("s_endpgm")
    I("v_lshrrev_b32 v6, 5, v1")
    I("v_and_b32 v8, 31, v1")
    I("v_lshlrev_b32 v9, 3, v8")
    I("v_lshl_add_u32 v9, v6, 2, v9")
    I("v_lshlrev_b32 v6, 12, v6")
    I("v_lshl_add_u32 v6, v8, 4, v6")
    I("s_lshl_b32 s56, s28, 13")
    I("s_lshl_b32 s57, s32, 9")
    I("s_add_u32 s56, s56, s57")
    I(f"s_add_u32 s56, s56, {P0}")
    I(f"s_add_u32 s57, s56, {PX - P0 if qfast else 0}")
    def qloads(base, so="s56"):
        return [f"buffer_load_dwordx4 v[{base+4*k}:{base+3+4*k}], v6, s[36:39], {so} offen offset:{1024*k} sc1" for k in range(4)]
    def qsum(base):
        I(f"v_xor_b32 v28, s92, v{base}")
        for k in range(4):
            for r in range(3):
                if k or r: I(f"v_bitop3_b32 v28, v28, v{base+4*k+r}, s{92+r} bitop3:0xf6")
        I(f"v_pk_add_f32 v[32:33], v[{base}:{base+1}], v[{base+4}:{base+5}]")
        I(f"v_pk_add_f32 v[34:35], v[{base+2}:{base+3}], v[{base+6}:{base+7}]")
        I(f"v_pk_add_f32 v[40:41], v[{base+8}:{base+9}], v[{base+12}:{base+13}]")
        I(f"v_pk_add_f32 v[42:43], v[{base+10}:{base+11}], v[{base+14}:{base+15}]")
    ns = len(qlev)
    for k in range(ns):
        if qrel:
            if k == 0: ks_cur(28, "s60")
            I(f"s_add_u32 s61, s60, {qlev[k]}")
            I(f"s_min_u32 s61, s61, {16 // gran}")
            ks_wait(28, "s61")
        elif qlev[k]: ks_wait(28, qlev[k])
        if k == 0: ST(20)
        for l in qloads(48 + 16 * k, "s57"): I(l)
    for k in range(ns):
        I(f"s_waitcnt vmcnt({4*(ns-1-k)})")
        tagcheck(list(range(48 + 16 * k, 64 + 16 * k)), "15", 27)
        nx = lab("qn")
        I(f"s_cbranch_vccnz {nx}")
        qsum(48 + 16 * k)
        I("s_branch L_q_ok")
        a.label(nx)
    gpoll(qloads(32), list(range(32, 48)), "15", 27)
    qsum(32)
    a.label("L_q_ok")
    I("v_pk_add_f32 v[32:33], v[32:33], v[40:41]")
    I("v_pk_add_f32 v[34:35], v[34:35], v[42:43]")
    I("v_and_b32 v28, 31, v28")
    I("v_cmp_ne_u32 vcc, 0, v28")
    I("v_permlane32_swap_b32 v32, v34")
    I("v_permlane32_swap_b32 v33, v35")
    I("v_add_f32 v32, v32, v34")
    I("v_add_f32 v33, v33, v35")
    I("v_cvt_pk_bf16_f32 v32, v32, v33")
    I("s_cmp_eq_u64 vcc, 0")
    I(f"s_cselect_b32 s58, {1 if fast else 0}, 0")
    I(f"ds_write_b32 v9, v32 offset:{L_Q}")
    I("v_mov_b32 v33, s58")
    I(f"ds_write_b32 v4, v33 offset:{L_FQ}")
    ST(6)
    I("v_and_b32 v6, 7, v1")
    I("v_lshlrev_b32 v9, 2, v6")
    I("v_lshlrev_b32 v6, 7, v6")
    I("s_lshl_b32 s56, s35, 7")
    I(f"s_add_u32 s56, s56, {H1S}")
    I("s_lshl_b32 s57, s28, 10")
    I(f"s_add_u32 s57, s57, {H1S}")
    I("v_lshlrev_b32 v7, 4, v1")
    lds_spin(L_L, 4, 32, sleep=1)
    I(f"ds_read_b128 v[40:43], v4 offset:{L_M}")
    I("v_add_f32 v33, v32, v33")
    I("v_add_f32 v34, v34, v35")
    I("v_add_f32 v33, v33, v34")
    I("s_waitcnt lgkmcnt(0)")
    I("v_max3_f32 v32, v40, v41, v42")
    I("v_max_f32 v32, v32, v43")
    I("v_bfi_b32 v32, v5, s31, v32")
    I("v_bfi_b32 v33, v5, s31, v33")
    I("v_mov_b32 v34, v32")
    I("v_mov_b32 v35, v33")
    EX("0xff")
    I("s_cmp_eq_u32 s58, 1")
    I("s_cbranch_scc1 L_st_fast")
    I("buffer_store_dwordx4 v[32:35], v7, s[36:39], s56 offen sc1")
    I("s_branch L_st_pub")
    a.label("L_st_fast")
    I("buffer_store_dwordx4 v[32:35], v7, s[36:39], s56 offen")
    a.label("L_st_pub")
    EX(-1)
    ST(19)
    gpoll(["buffer_load_dwordx4 v[36:39], v6, s[36:39], s57 offen sc1"], [36, 37, 38, 39], "v5", 27)
    I("v_and_b32 v36, 0xffffff00, v36")
    I(f"v_max_f32_dpp v40, v36, v36 quad_perm:[1,0,3,2] {DPP}")
    I(f"v_max_f32_dpp v40, v40, v40 quad_perm:[2,3,0,1] {DPP}")
    I("v_sub_f32 v36, v36, v40")
    I(f"v_mul_f32 v36, {hex(f2u(1.4426950408889634))}, v36")
    I("v_exp_f32 v36, v36")
    I("v_mul_f32 v37, v36, v37")
    I(f"v_add_f32_dpp v37, v37, v37 quad_perm:[1,0,3,2] {DPP}")
    I(f"v_add_f32_dpp v37, v37, v37 quad_perm:[2,3,0,1] {DPP}")
    I("v_rcp_f32 v37, v37")
    I("v_mul_f32 v36, v36, v37")
    I(f"ds_write_b32 v9, v36 offset:{L_W}")
    dry_next("L_S_tail")
    ST(7)
    flush_stamps()
    I("s_endpgm")

    lg = {1: 0, 2: 1, 4: 2, 8: 3}
    def my_piece(sp, spc):
        I(f"s_lshr_b32 {sp}, s29, {lg[ncg]}")
        I(f"s_lshl_b32 {spc}, s28, {lg[nrb]}")
        I(f"s_add_u32 {sp}, {sp}, {spc}")
        I(f"s_and_b32 {spc}, s29, {ncg-1}")
        I(f"s_lshl_b32 {spc}, {spc}, {lg[nch]+6}")
        I(f"s_add_u32 {spc}, {spc}, {sp}")
    def out_off(dst, spc, tmp):
        I(f"s_lshr_b32 {dst}, {spc}, 6"); I(f"s_lshl_b32 {dst}, {dst}, 8")
        I(f"s_bfe_u32 {tmp}, {spc}, 0x10005"); I(f"s_lshl_b32 {tmp}, {tmp}, 10"); I(f"s_add_u32 {dst}, {dst}, {tmp}")
        I(f"s_and_b32 {tmp}, {spc}, 15"); I(f"s_lshl_b32 {tmp}, {tmp}, 4"); I(f"s_add_u32 {dst}, {dst}, {tmp}")
        I(f"s_bfe_u32 {tmp}, {spc}, 0x10004"); I(f"s_lshl_b32 {tmp}, {tmp}, 3"); I(f"s_add_u32 {dst}, {dst}, {tmp}")

    MK = 56 + 6
    PB = 4096 // ncons; LP = PB // 16; lgPB = PB.bit_length() - 1
    def fin_setup(vx, vo, vl, sb, so):
        I(f"s_and_b32 s63, s2, {ncons - 1}")
        I(f"s_lshl_b32 {sb}, s63, {6 + lgPB}")
        I(f"s_add_u32 {sb}, {sb}, {H2A}")
        I(f"s_lshr_b32 {so}, s63, {10 - lgPB}")
        I(f"s_lshl_b32 {so}, {so}, 8")
        I(f"s_lshl_b32 s63, s63, {lgPB}")
        I("s_bfe_u32 s62, s63, 0x10009"); I("s_lshl_b32 s62, s62, 10"); I(f"s_add_u32 {so}, {so}, s62")
        I("s_and_b32 s63, s63, 511"); I("s_lshr_b32 s63, s63, 1"); I(f"s_add_u32 {so}, {so}, s63")
        I(f"v_and_b32 {vo}, {LP - 1}, v1")
        I(f"v_lshlrev_b32 {vo}, 3, {vo}")
        I(f"v_lshl_add_u32 {vo}, v3, 1, {vo}")
        I(f"v_lshlrev_b32 {vl}, 4, v1")
    def fin_run(vx, vo, vl, sb, sb2, so, B0):
        I(f"s_add_u32 {sb2}, {sb}, 0x1000")
        if not ring:
            gpoll([f"buffer_load_dwordx4 v[{B0+4*k}:{B0+3+4*k}], {vl}, s[36:39], {sb if k < 4 else sb2} offen offset:{1024*(k%4)} {ldf}" for k in range(LP)],
                  list(range(B0, B0 + 4 * LP)), "v5", 27)
        else:
            S0 = B0 + 32
            L = lab("ring")
            a.label(L)
            for k in range(LP):
                sk = lab("rs"); M = f"s[{MK+2*k}:{MK+2*k+1}]"; G = B0 + 4 * k; S = S0 + 4 * k
                I(f"s_mov_b64 exec, {M}")
                I(f"s_cbranch_execz {sk}")
                I(f"v_mov_b64 v[{G}:{G+1}], v[{S}:{S+1}]")
                I(f"v_mov_b64 v[{G+2}:{G+3}], v[{S+2}:{S+3}]")
                I(f"v_xor_b32 v27, s31, v{G}")
                for w in range(1, 4): I(f"v_bitop3_b32 v27, v27, v{G+w}, s31 bitop3:0xf6")
                I("v_and_b32 v27, v5, v27")
                I(f"v_cmpx_ne_u32_e64 {M}, 0, v27")
                I(f"s_cbranch_execz {sk}")
                I(f"buffer_load_dwordx4 v[{S}:{S+3}], {vl}, s[36:39], {sb if k < 4 else sb2} offen offset:{1024*(k%4)} {ldf}")
                a.label(sk)
            I(f"s_sub_u32 {SC}, {SC}, 8")
            I("s_cbranch_scc1 L_end")
            I(f"s_or_b64 s[{MK+16}:{MK+17}], s[{MK}:{MK+1}], s[{MK+2*(LP-1)}:{MK+2*(LP-1)+1}]")
            for k in range(1, LP - 1):
                I(f"s_or_b64 s[{MK+16}:{MK+17}], s[{MK+16}:{MK+17}], s[{MK+2*k}:{MK+2*k+1}]")
            d = lab("rd")
            I(f"s_cbranch_scc0 {d}")
            I(f"s_waitcnt vmcnt({ring})")
            I(f"s_branch {L}")
            a.label(d)
            EX(-1)
        ST(11)
        n = LP
        while n > 1:
            n //= 2
            for k in range(n):
                for hh in (0, 2):
                    I(f"v_pk_add_f32 v[{B0+4*k+hh}:{B0+4*k+hh+1}], v[{B0+4*k+hh}:{B0+4*k+hh+1}], v[{B0+4*(k+n)+hh}:{B0+4*(k+n)+hh+1}]")
        V = B0
        I(f"v_permlane32_swap_b32 v{V}, v{V+2}")
        I(f"v_permlane32_swap_b32 v{V+1}, v{V+3}")
        I(f"v_add_f32 v{V}, v{V}, v{V+2}")
        I(f"v_add_f32 v{V+1}, v{V+1}, v{V+3}")
        I(f"v_permlane16_swap_b32 v{V}, v{V+1}")
        I(f"v_add_f32 v{V}, v{V}, v{V+1}")
        for r in (8, 4, 2, 1):
            if r >= LP: I(f"v_add_f32_dpp v{V}, v{V}, v{V} row_ror:{r} {DPP}")
        I(f"v_add_f32 v{V}, {vx}, v{V}")
        I(f"v_cvt_pk_bf16_f32 v{V}, v{V}, v{V}")
        m = ((1 << LP) - 1) * 0x10001
        I(f"s_mov_b32 exec_lo, {hex(m)}"); I(f"s_mov_b32 exec_hi, {hex(m)}")
        I(f"buffer_store_short v{V}, {vo}, s[48:51], {so} offen")
        e = lab("fe")
        I("s_cmp_eq_u32 s2, 0")
        I(f"s_cbranch_scc0 {e}")
        EX(1)
        I("v_mov_b32 v33, s31")
        I("buffer_store_dword v33, v4, s[36:39], 0 offen sc1")
        a.label(e)
        ST(12)

    a.label("L_PG")
    stamps.clear(); sreg[0] = 80
    I(f"buffer_store_dwordx4 v[{D}:{D+3}], v7, s[36:39], s56 offen sc1")
    srd(40, 20, 1376 * 1024)
    I("v_mul_u32_u24 v6, 6144, v3")
    I("v_lshl_add_u32 v6, v2, 4, v6")
    I("s_lshl_b32 s58, s28, 1")
    I("s_add_u32 s58, s58, s32")
    I("s_mul_i32 s52, s58, 24576")
    I("s_lshl_b32 s53, s33, 8")
    I("s_add_u32 s52, s52, s53")
    I("s_add_u32 s53, s52, 0x1000")
    def wdloads():
        for t in range(6):
            I(f"buffer_load_dwordx4 v[{BB+4*t}:{BB+4*t+3}], v6, s[40:43], s{52+t//4} offen offset:{(t%4)*1024} {wflag}")
    if not wdlate: wdloads()
    fin_setup("v124", "v125", "v9", "s54", "s55")
    I("buffer_load_ushort v124, v125, s[44:47], s55 offen")
    srd(48, 22, 2048)
    I("v_lshrrev_b32 v7, 3, v2")
    I("v_lshlrev_b32 v7, 9, v7")
    I("v_and_b32 v27, 7, v2")
    I("v_min_u32 v27, 2, v27")
    I("v_lshl_add_u32 v7, v27, 3, v7")
    I("v_mad_u32_u24 v7, v3, 24, v7")
    I("s_and_b32 s56, s28, 30")
    I("s_lshl_b32 s56, s56, 13")
    I("s_and_b32 s57, s28, 1")
    I("s_lshl_b32 s57, s57, 1")
    I("s_add_u32 s57, s57, s32")
    I("s_mul_i32 s57, s57, 96")
    I("s_add_u32 s56, s56, s57")
    for k in range(4):
        I(f"s_add_u32 s{60+k}, s56, {P1 + 0x1000*k}")
    G0 = 128
    a.label("L_PG_tail")
    if abl or noffn == 1:
        I("s_waitcnt vmcnt(0)"); ST(13)
        flush_stamps()
        I("s_endpgm")
    if qrel:
        ks_cur(28, "s56")
        I(f"s_add_u32 s56, s56, {glev}")
        I(f"s_min_u32 s56, s56, {16 // gran}")
        ks_wait(28, "s56")
    else: ks_wait(28, glev)
    gpoll([f"buffer_load_dwordx2 v[{G0+2*k}:{G0+1+2*k}], v7, s[36:39], s{60+k//4} offen offset:{1024*(k%4)} sc1" for k in range(16)],
          list(range(G0, G0 + 32)), "15", 27)
    ST(13)
    for base in (G0, G0 + 16):
        for k in range(4):
            I(f"v_pk_add_f32 v[{base+2*k}:{base+2*k+1}], v[{base+2*k}:{base+2*k+1}], v[{base+8+2*k}:{base+9+2*k}]")
        for k in range(2):
            I(f"v_pk_add_f32 v[{base+2*k}:{base+2*k+1}], v[{base+2*k}:{base+2*k+1}], v[{base+4+2*k}:{base+5+2*k}]")
        I(f"v_pk_add_f32 v[{base}:{base+1}], v[{base}:{base+1}], v[{base+2}:{base+3}]")
    I(f"v_cvt_pk_bf16_f32 v28, v{G0}, v{G0+1}")
    I(f"v_cvt_pk_bf16_f32 v29, v{G0+16}, v{G0+17}")
    I("v_lshlrev_b32 v30, 16, v28")
    I("v_and_b32 v31, 0xffff0000, v28")
    I(f"v_mul_f32 v30, {hex(f2u(-1.4426950408889634))}, v30")
    I(f"v_mul_f32 v31, {hex(f2u(-1.4426950408889634))}, v31")
    I("v_exp_f32 v30, v30")
    I("v_exp_f32 v31, v31")
    I("v_add_f32 v30, 1.0, v30")
    I("v_add_f32 v31, 1.0, v31")
    I("v_rcp_f32 v30, v30")
    I("v_rcp_f32 v31, v31")
    I("v_lshlrev_b32 v32, 16, v29")
    I("v_and_b32 v33, 0xffff0000, v29")
    I("v_cvt_pk_bf16_f32 v28, v30, v31")
    I("v_lshlrev_b32 v30, 16, v28")
    I("v_and_b32 v31, 0xffff0000, v28")
    I("v_mul_f32 v30, v30, v32")
    I("v_mul_f32 v31, v31, v33")
    I("v_cvt_pk_bf16_f32 v26, v30, v31")
    if wdlate:
        trig_wait(27, 1)
        wdloads()
        I("s_waitcnt vmcnt(0)")
    build_mfma(26, SEL, 18, AB, BB, D, 3)
    I("v_lshlrev_b32 v124, 16, v124")
    I(f"ds_write_b128 v9, v[{D}:{D+3}] offset:{L_YF}")
    I(f"ds_write_b32 v4, v4 offset:{L_FX}")
    ST(14)
    if stamp:
        for q in (0, 2): I(f"s_memrealtime s[{sreg[0]+q}:{sreg[0]+q+1}]")
        I("s_waitcnt lgkmcnt(0)")
    I(f"s_cmp_lt_u32 s2, {ncons}")
    I("s_cbranch_scc0 L_f_end")
    if ring:
        I("s_not_b32 s56, s31")
        for k in range(LP):
            I(f"s_mov_b64 s[{MK+2*k}:{MK+2*k+1}], -1")
            I(f"v_mov_b32 v{64+4*k}, s56")
    if fwait == 1: lds_spin(L_OPUB, 1, 27, sleep=1)
    if fwait == 2: lds_spin(L_YPUB, 1, 27, sleep=1)
    fin_run("v124", "v125", "v9", "s54", "s53", "s55", 32)
    a.label("L_f_end")
    flush_stamps()
    I("s_endpgm")

    a.raw("@@PEND@@")
    a.label("L_T")
    stamps.clear(); sreg[0] = 66
    tmode[0] = True
    if stamp == "dbg": stamps[0] = 64
    if prio: I("s_setprio 3")
    DT = 80 if nch > 1 else D
    I("v_lshlrev_b32 v6, 2, v1")
    for r in range(4): I(f"v_mov_b32 v{12+r}, -1")
    I("v_lshlrev_b32 v7, 4, v1")
    I(f"ds_write_b32 v6, v12 offset:{L_M}")
    I(f"ds_write_b128 v7, v[12:15] offset:{L_P2}")
    I("s_waitcnt lgkmcnt(0)")
    I("s_barrier")
    I(f"v_lshlrev_b32 v6, {10 + lg[nch == 4 and 4 or 1] * 0 + {16:4, 8:3, 4:2}[nt]}, v3")
    I("v_lshl_add_u32 v6, v2, 4, v6")
    my_piece("s58", "s59")
    I(f"s_lshl_b32 s52, s58, {10 + {64:6, 32:5, 16:4}[R]}")
    I(f"s_and_b32 s53, s29, {ncg-1}")
    I(f"s_lshl_b32 s53, s53, {8 + lg[nch]}")
    I("s_add_u32 s52, s52, s53")
    I("s_add_u32 s53, s52, 0x1000")
    I("s_add_u32 s54, s52, 0x2000")
    I("s_add_u32 s55, s52, 0x3000")
    I("s_mov_b32 s42, 0x400000"); I("s_mov_b32 s43, 0x20000")
    I("s_mov_b32 s40, s12"); I("s_mov_b32 s41, s13")
    def woload(k):
        t, cb = k // nch, k % nch
        I(f"buffer_load_dwordx4 v[{BB+4*k}:{BB+4*k+3}], v6, s[40:43], s{52+t//4} offen offset:{(t%4)*1024 + cb*256} {wflag}")
    for k in range(wopre): woload(k)
    srd(36, 26, WSN)
    make_sel(SEL, 27)
    assert nch == 1
    I("v_and_b32 v8, 1, v3")
    I("v_lshlrev_b32 v8, 4, v8")
    I("v_lshl_add_u32 v8, v2, 5, v8")
    I("v_lshrrev_b32 v9, 1, v3")
    I("v_lshl_add_u32 v8, v9, 9, v8")
    I(f"v_lshrrev_b32 v9, {lgPB}, v8")
    I(f"v_and_b32 v8, {PB - 1}, v8")
    I(f"v_lshl_add_u32 v8, v9, {6 + lgPB}, v8")
    I("s_lshl_b32 s60, s33, 16")
    I(f"s_lshl_b32 s61, s58, {lgPB}")
    I("s_add_u32 s60, s60, s61")
    I(f"s_add_u32 s60, s60, {H2A}")
    I("v_lshlrev_b32 v167, 4, v1")
    I("v_lshrrev_b32 v27, 3, v2")
    I("v_lshlrev_b32 v166, 4, v27")
    I("v_lshlrev_b32 v7, 11, v27")
    I(f"v_lshl_add_u32 v7, v3, {2 + {16:4, 8:3, 4:2}[nt]}, v7")
    I("v_and_b32 v27, 7, v2")
    if nt < 16: I(f"v_min_u32 v27, {nt//2 - 1}, v27")
    I("v_lshl_add_u32 v7, v27, 3, v7")
    I("s_lshl_b32 s56, s28, 12")
    I(f"s_lshr_b32 s57, s29, {lg[ncg]}")
    I(f"s_lshl_b32 s57, s57, {2 + {64:6, 32:5, 16:4}[R]}")
    I("s_add_u32 s56, s56, s57")
    I(f"s_add_u32 s56, s56, {H1O}")
    a.label("L_T_tail")
    if smtest:
        ks_wait(28, smtest)
        I("s_lshl_b32 s44, s28, 13")
        I(f"s_add_u32 s44, s44, {PX}")
        ST(29); I("s_waitcnt lgkmcnt(0)")
        I("s_load_dwordx16 s[80:95], s[26:27], s44 glc"); I("s_waitcnt lgkmcnt(0)")
        ST(30); I("s_waitcnt lgkmcnt(0)")
        I("s_load_dwordx16 s[80:95], s[26:27], s44 glc"); I("s_waitcnt lgkmcnt(0)")
        ST(31); I("s_waitcnt lgkmcnt(0)")
        I("s_load_dwordx16 s[80:95], s[26:27], s44"); I("s_waitcnt lgkmcnt(0)")
        ST(23); I("s_waitcnt lgkmcnt(0)")
    trig_wait(27, 1)
    ST(24)
    for k in range(wopre, 16): woload(k)
    ST(8)
    if abl:
        I("s_waitcnt vmcnt(0)"); ST(9)
        flush_stamps()
        I("s_endpgm")
    lds_spin(L_FX, 1, 44, sleep=1)
    I(f"ds_read_b128 v[{DT}:{DT+3}], v167 offset:{L_YF}")
    ST(15)
    lds_spin(L_OPUB, 1, 27)
    I("v_readfirstlane_b32 s31, v27")
    ST(28)
    gpoll([f"buffer_load_dwordx2 v[{32+2*s}:{33+2*s}], v7, s[36:39], s56 offen offset:{512*s} sc1" for s in range(4)],
          list(range(32, 40)), "v5", 27)
    ST(9)
    lds_spin(L_W, 4, 40, addr="v166")
    I("v_mul_f32 v32, v32, v40")
    I("v_mul_f32 v33, v33, v40")
    for s in range(1, 4):
        I(f"v_fmac_f32 v32, v{32+2*s}, v{40+s}")
        I(f"v_fmac_f32 v33, v{33+2*s}, v{40+s}")
    I("v_cvt_pk_bf16_f32 v26, v32, v33")
    build_mfma(26, SEL, 18, AB, BB, DT, nt // 2, nch, cinit=True)
    for r in range(4):
        I(f"v_bfi_b32 v{DT+r}, v5, s31, v{DT+r}")
    I(f"buffer_store_dwordx4 v[{DT}:{DT+3}], v8, s[36:39], s60 offen {stf}")
    if fwait == 2: I(f"ds_write_b32 v4, v4 offset:{L_YPUB}")
    ST(10)
    flush_stamps()
    I("s_endpgm")
    a.label("L_end")
    I("s_endpgm")

    nv = a.maxv + 1
    head = HDR + f"""; @launch grid=(256,1,1) block=(704,1,1) lds={LDS_BYTES}
.amdgcn_target "amdgcn-amd-amdhsa--gfx950"
.text
.globl {KN}_kernel
.p2align 8
.type {KN}_kernel,@function
{KN}_kernel:
"""
    foot = f""".section .rodata,"a"
.p2align 6
.amdhsa_kernel {KN}_kernel
  .amdhsa_next_free_vgpr {nv}
  .amdhsa_next_free_sgpr {max(a.maxs + 1, 16)}
  .amdhsa_accum_offset {(nv + 3) // 4 * 4}
  .amdhsa_group_segment_fixed_size 0
  .amdhsa_kernarg_size 96
  .amdhsa_user_sgpr_count 2
  .amdhsa_user_sgpr_kernarg_segment_ptr 1
  .amdhsa_system_sgpr_workgroup_id_x 1
  .amdhsa_float_denorm_mode_32 3
.end_amdhsa_kernel
"""
    txt = a.text()
    i0 = txt.index("@@PBEG@@\n"); i1 = txt.index("@@PEND@@\n")
    P = txt[i0 + 9:i1]
    txt = txt[:i0] + txt[i1 + 9:]
    txt = txt.replace("@@P@@\n", P)
    return head + txt + foot

if __name__ == "__main__":
    import json
    name = sys.argv[1]; kw = {}
    for x in sys.argv[2:]:
        k, v = x.split("="); kw[k] = eval(v)
    open(name, "w").write(gen(**kw))
```

```python
import sys, struct
from asmlib import Asm
from common import KN
def f2u(x): return struct.unpack("<I", struct.pack("<f", x))[0]

HDR = open("cdna_kernels/" + KN + ".s.ref").read().split("; Override launch")[0]

PX = 0x140000; P0 = 0x10000; P1 = 0x50000; H1S = 0x90000; H1O = 0xA0000; H2F = 0xC0000; H2A = 0x100000
L_Q = 0x000; L_M = 0x100; L_L = 0x110; L_W = 0x120; L_FX = 0x140; L_FQ = 0x160; L_TRIG = 0x164; L_OCNT = 0x168; L_OPUB = 0x16c; L_KS = 0x170; L_YPUB = 0x180; L_QP = 0x184; L_P2 = 0x200; L_PART = 0x600; L_YF = 0xE00
LDS_BYTES = 0x1200

def gen(stamp=False, kvflag="nt", wflag="nt", prio=True, R=64, fast=True, wopre=0, qfast=True, sw=0, abl=0, gran=4, lag=0, qlev=(2,), glev=2, kwin=0, vwin=0, rot=0, noffn=0, noy=0, ysleep=0, fdefer=0, qrel=0, wdlate=0, wotrig=0, merge=1, fearly=0, ncons=32, fin='F', fwait=1, ring=0, ldf='sc1', stf='sc1', smtest=0, k0=0, kmode=0, vq=0, ln2=0, dry=0, warm=0, pad=64, w2=''):
    a = Asm(); I = a.i
    uid = [0]
    def lab(p):
        uid[0] += 1; return f"L_{p}_{uid[0]}"
    SC = "s34"
    stamps = {}
    sreg = [64]
    DBG = {0: 0, 22: 1, 5: 2, 6: 3, 21: 4, 9: 5, 10: 6, 12: 7}
    tmode = [False]
    def ST(slot):
        if not stamp: return
        if stamp == "dbg":
            if slot not in DBG: return
            slot = DBG[slot]
        r = sreg[0]; sreg[0] += 2
        stamps[slot] = r
        I(f"s_memrealtime s[{r}:{r+1}]")
    def flush_stamps():
        if not stamp: return
        if not stamps: return
        I("s_mov_b64 exec, 1")
        I("s_waitcnt lgkmcnt(0)")
        if stamp == "dbg":
            srd(96, 24, 256)
            for slot, r in stamps.items():
                I(f"v_mov_b32 v6, s{r}")
                I(f"buffer_atomic_umax v6, v4, s[96:99], 0 offen offset:{4*slot} sc1")
                I(f"s_not_b32 s{r}, s{r}")
                I(f"v_mov_b32 v6, s{r}")
                I(f"buffer_atomic_umax v6, v4, s[96:99], 0 offen offset:{32+4*slot} sc1")
            stamps.clear(); sreg[0] = 64
            return
        I("s_lshl_b32 s52, s2, 7")
        I("s_add_u32 s52, s52, 0x8000000")
        for slot, r in stamps.items():
            I(f"v_mov_b32 v6, s{r}")
            I(f"buffer_store_dword v6, v4, s[36:39], s52 offen offset:{4*slot}")
        stamps.clear(); sreg[0] = 64
    def lds_spin(off, n, dst, addr="v4", sleep=0):
        L = lab("spin"); O = lab("spino")
        a.label(L)
        if sleep: I(f"s_sleep {sleep}")
        if n == 1: I(f"ds_read_b32 v{dst}, {addr} offset:{off}")
        elif n == 2: I(f"ds_read_b64 v[{dst}:{dst+1}], {addr} offset:{off}")
        else: I(f"ds_read_b128 v[{dst}:{dst+3}], {addr} offset:{off}")
        I(f"s_sub_u32 {SC}, {SC}, 1")
        I("s_waitcnt lgkmcnt(0)")
        I("s_cbranch_scc1 L_end")
        t = dst
        if n == 2:
            t = dst + 2; I(f"v_max_u32 v{t}, v{dst}, v{dst+1}")
        if n == 4:
            t = dst + 4
            I(f"v_max3_u32 v{t}, v{dst}, v{dst+1}, v{dst+2}")
            I(f"v_max_u32 v{t}, v{t}, v{dst+3}")
        I(f"v_cmp_eq_u32 vcc, -1, v{t}")
        I(f"s_cbranch_vccnz {L}")
        a.label(O)
    def trig_wait(tmp, k):
        L = lab("trig"); O = lab("trigo")
        a.label(L)
        I("s_sleep 1")
        I(f"ds_read_b32 v{tmp}, v4 offset:{L_TRIG}")
        I(f"s_sub_u32 {SC}, {SC}, 1")
        I("s_waitcnt lgkmcnt(0)")
        I("s_cbranch_scc1 L_end")
        I(f"v_cmp_gt_i32 vcc, {4*k-1}, v{tmp}")
        I(f"s_cbranch_vccnz {L}")
        a.label(O)
    def ks_wait(tmp, lev, one=None):
        L = lab("ks")
        a.label(L)
        I("s_sleep 1")
        if one: I(f"ds_read_b32 v{tmp}, {one} offset:{L_KS}")
        else: I(f"ds_read_b128 v[{tmp}:{tmp+3}], v4 offset:{L_KS}")
        I(f"s_sub_u32 {SC}, {SC}, 1")
        I("s_waitcnt lgkmcnt(0)")
        I("s_cbranch_scc1 L_end")
        if not one:
            I(f"v_min3_i32 v{tmp}, v{tmp}, v{tmp+1}, v{tmp+2}")
            I(f"v_min_i32 v{tmp}, v{tmp}, v{tmp+3}")
        I(f"v_cmp_gt_i32 vcc, {lev}, v{tmp}")
        I(f"s_cbranch_vccnz {L}")
    def ks_cur(tmp, dst):
        I(f"ds_read_b128 v[{tmp}:{tmp+3}], v4 offset:{L_KS}")
        I("s_waitcnt lgkmcnt(0)")
        I(f"v_min3_i32 v{tmp}, v{tmp}, v{tmp+1}, v{tmp+2}")
        I(f"v_min_i32 v{tmp}, v{tmp}, v{tmp+3}")
        I(f"v_max_i32 v{tmp}, 0, v{tmp}")
        I(f"v_readfirstlane_b32 {dst}, v{tmp}")
    def gpoll(loads, words, tagmask, acc):
        L = lab("poll"); O = lab("pollo")
        a.label(L)
        for l in loads: I(l)
        I(f"s_sub_u32 {SC}, {SC}, 64")
        I("s_waitcnt vmcnt(0)")
        I("s_cbranch_scc1 L_end")
        I(f"v_xor_b32 v{acc}, s31, v{words[0]}")
        for w in words[1:]:
            I(f"v_bitop3_b32 v{acc}, v{acc}, v{w}, s31 bitop3:0xf6")
        I(f"v_and_b32 v{acc}, {tagmask}, v{acc}")
        I(f"v_cmp_ne_u32 vcc, 0, v{acc}")
        I(f"s_cbranch_vccnz {L}")
        a.label(O)
    def srd(d, lo, n):
        I(f"s_mov_b32 s{d}, s{lo}"); I(f"s_mov_b32 s{d+1}, s{lo+1}")
        I(f"s_mov_b32 s{d+2}, {hex(n)}"); I(f"s_mov_b32 s{d+3}, 0x20000")
    DPP = "row_mask:0xf bank_mask:0xf"
    def make_sel(S, t0):
        I(f"v_and_b32 v{t0}, 1, v2")
        I(f"v_cmp_eq_u32 vcc, 1, v{t0}")
        I(f"v_bfe_u32 v{t0}, v2, 1, 2")
        I(f"v_mov_b32 v{t0+3}, 0x0c0c0c0c")
        for e in range(2):
            ev = 0x0c0c0000 | (2*e+1) << 8 | (2*e)
            od = (2*e+1) << 24 | (2*e) << 16 | 0x0c0c
            I(f"v_mov_b32 v{S}, {hex(ev)}")
            I(f"v_mov_b32 v{S+1}, {hex(od)}")
            I(f"v_cndmask_b32 v{t0+1+e}, v{S}, v{S+1}, vcc")
        for i in range(4):
            I(f"v_cmp_eq_u32 vcc, {i}, v{t0}")
            for e in range(2):
                I(f"v_cndmask_b32 v{S+4*e+i}, v{t0+3}, v{t0+1+e}, vcc")
    def build_mfma(Q, S, TMP, AB, BB, D, npair, nch=1, cinit=False):
        for u in range(npair):
            I(f"v_mov_b32_dpp v{TMP+u}, v{Q} row_newbcast:{u} row_mask:0xf bank_mask:0x3")
            I(f"v_mov_b32_dpp v{TMP+u}, v{Q} row_newbcast:{8+u} row_mask:0xf bank_mask:0xc")
        n = 2 * npair
        def perm(t):
            for i in range(4):
                I(f"v_perm_b32 v{AB+4*t+i}, v{TMP+t//2}, v{TMP+t//2}, v{S+4*(t%2)+i}")
        def mf(t):
            for cb in range(nch):
                d = D + 4 * cb; bb = BB + 4 * (t * nch + cb)
                c = "0" if (t == 0 and not cinit) else f"v[{d}:{d+3}]"
                I(f"v_mfma_f32_16x16x32_bf16 v[{d}:{d+3}], v[{AB+4*t}:{AB+4*t+3}], v[{bb}:{bb+3}], {c}")
        perm(0)
        for t in range(n):
            if t + 1 < n: perm(t + 1)
            mf(t)
    def tagcheck(words, tagmask, acc):
        I(f"v_xor_b32 v{acc}, s31, v{words[0]}")
        for w in words[1:]:
            I(f"v_bitop3_b32 v{acc}, v{acc}, v{w}, s31 bitop3:0xf6")
        I(f"v_and_b32 v{acc}, {tagmask}, v{acc}")
        I(f"v_cmp_ne_u32 vcc, 0, v{acc}")
    def reduce4(V):
        I(f"v_permlane32_swap_b32 v{V}, v{V+2}")
        I(f"v_permlane32_swap_b32 v{V+1}, v{V+3}")
        I(f"v_add_f32 v{V}, v{V}, v{V+2}")
        I(f"v_add_f32 v{V+1}, v{V+1}, v{V+3}")
        I(f"v_permlane16_swap_b32 v{V}, v{V+1}")
        I(f"v_add_f32 v{V}, v{V}, v{V+1}")
        for r in (8, 4, 2, 1):
            I(f"v_add_f32_dpp v{V}, v{V}, v{V} row_ror:{r} {DPP}")

    def reduce4x2(V, W):
        for X in (V, W):
            I(f"v_permlane32_swap_b32 v{X}, v{X+2}")
            I(f"v_permlane32_swap_b32 v{X+1}, v{X+3}")
        for X in (V, W):
            I(f"v_add_f32 v{X}, v{X}, v{X+2}")
            I(f"v_add_f32 v{X+1}, v{X+1}, v{X+3}")
        for X in (V, W): I(f"v_permlane16_swap_b32 v{X}, v{X+1}")
        for X in (V, W): I(f"v_add_f32 v{X}, v{X}, v{X+1}")
        for r in (8, 4, 2, 1):
            for X in (V, W): I(f"v_add_f32_dpp v{X}, v{X}, v{X} row_ror:{r} {DPP}")

    def seg(k, end=False):
        if not dry: return
        if k > 0: I("s_cbranch_execz L_dret")
        if not end: a.label(f"L_seg{k}")
    WSN = 0x10000000 if stamp else 0x200000
    nch = 64 // R; ncg = 4 // nch; nrb = 128 // R; nt = R // 4
    def EX(m): I(f"s_mov_b64 exec, {m}")
    def dry_next(lbl): pass
    ST(0)
    I("s_load_dwordx16 s[4:19], s[0:1], 0")
    I("s_load_dwordx8 s[20:27], s[0:1], 64")
    I("v_lshrrev_b32 v6, 6, v0")
    I("s_cmp_ge_u32 s2, 256")
    I("v_readfirstlane_b32 s30, v6")
    I("s_cbranch_scc1 L_end")
    I("v_and_b32 v1, 63, v0")
    I("s_and_b32 s28, s2, 7")
    I("s_lshl_b32 s28, s28, 2")
    I("s_lshr_b32 s29, s2, 6")
    I("s_add_u32 s28, s28, s29")
    I("s_bfe_u32 s29, s2, 0x30003")
    I("s_lshr_b32 s32, s29, 2")
    I("s_and_b32 s33, s29, 3")
    I("s_lshl_b32 s35, s28, 3")
    I("s_add_u32 s35, s35, s29")
    I(f"s_mov_b32 {SC}, 0x100000")
    I("v_and_b32 v2, 15, v1")
    I("v_lshrrev_b32 v3, 4, v1")
    I("v_mov_b32 v4, 0")
    I("v_mov_b32 v5, 0xff")
    def stage1(wr, w0):
        G = lab("wpc")
        I("s_getpc_b64 s[96:97]")
        a.label(G)
        I(f"s_sub_u32 s98, {wr}, {w0}")
        I("s_lshl_b32 s98, s98, 5")
        I("s_lshr_b32 s99, s2, 3")
        I("s_add_u32 s98, s98, s99")
        I("s_cmp_ge_u32 s98, @@W1LIM@@")
        I("s_cbranch_scc1 L_w1_done")
        I("s_lshl_b32 s98, s98, 7")
        I(f"s_add_u32 s96, s96, @@OFF:L_P:{G}@@")
        I(f"s_addc_u32 s97, s97, @@OFFH:L_P:{G}@@")
        I("s_add_u32 s98, s98, s96")
        I("s_addc_u32 s99, s97, 0")
        a.raw("@@NOPAD@@")
        EX(0)
        I("s_swappc_b64 s[100:101], s[98:99]")
        EX(-1)
        a.raw("@@PADOK@@")
        a.label("L_w1_done")
        s1lab.append(G)
    s1lab = []
    if warm:
        I("s_cmp_lt_u32 s30, 2")
        I("s_cbranch_scc1 L_P")
        if warm == 1: stage1("s30", 6)
        I("s_cmp_eq_u32 s30, 10")
        I("s_cbranch_scc1 L_T")
        I("s_branch L_S")
        a.label("L_wret")
        I("s_setpc_b64 s[100:101]")
        a.label("L_P")
        a.raw("@@PADSTART@@")
    else:
        I("s_cmp_eq_u32 s30, 10")
        I("s_cbranch_scc1 L_T")
        I("s_cmp_ge_u32 s30, 2")
        I("s_cbranch_scc1 L_S")
    a.raw("@@P@@")
    def walk(l0, l1, nw=1, wreg=None):
        L = lab("walk"); E = lab("walke"); G = lab("wpc")
        I("s_getpc_b64 s[98:99]")
        a.label(G)
        I(f"s_add_u32 s98, s98, @@OFF:{l0}:{G}@@")
        I(f"s_addc_u32 s99, s99, @@OFFH:{l0}:{G}@@")
        if wreg:
            I(f"s_mul_i32 s96, {wreg}, {pad}")
            I("s_add_u32 s98, s98, s96")
            I("s_addc_u32 s99, s99, 0")
            I(f"s_sub_i32 s97, @@CNT:{l0}:{l1}:{G}@@, {wreg}")
        else:
            I(f"s_and_b32 s97, s2, 0x10000")
            I(f"s_sub_i32 s97, @@CNT:{l0}:{l1}:{G}@@, s97")
        a.raw("@@NOPAD@@")
        EX(0)
        a.label(L)
        I("s_cmp_le_i32 s97, 0")
        I(f"s_cbranch_scc1 {E}")
        I("s_swappc_b64 s[100:101], s[98:99]")
        I(f"s_add_u32 s98, s98, {pad * nw}")
        I("s_addc_u32 s99, s99, 0")
        I(f"s_sub_i32 s97, s97, {nw}")
        I(f"s_branch {L}")
        a.label(E)
        EX(-1)
        a.raw("@@PADOK@@")

    a.label("L_S")
    KB, VB, ACC, D = 32, 96, 16, 160
    I("s_sub_u32 s30, s30, 2")
    I("s_lshr_b32 s59, s30, 2")
    I("s_and_b32 s30, s30, 3")
    I("v_lshlrev_b32 v6, 4, v1")
    I("s_lshl_b32 s52, s32, 25")
    I("s_lshl_b32 s53, s28, 20")
    I("s_add_u32 s52, s52, s53")
    I("s_lshl_b32 s53, s33, 16")
    I("s_add_u32 s52, s52, s53")
    I("s_lshl_b32 s53, s30, 14")
    I("s_add_u32 s52, s52, s53")
    I("s_add_u32 s52, s52, 0xC0000")
    if rot == 1:
        I("s_add_u32 s60, s28, s29")
        for k in (3, 2, 1, 0):
            I(f"s_add_u32 s61, s60, {k}"); I("s_and_b32 s61, s61, 3"); I("s_lshl_b32 s61, s61, 12")
            I(f"s_add_u32 s{52+k}, s52, s61")
    elif rot == 2:
        I("s_lshl_b32 s60, s29, 1"); I("s_xor_b32 s60, s60, s28"); I("s_and_b32 s60, s60, 15"); I("s_lshl_b32 s60, s60, 10")
        for k in range(16):
            I(f"s_xor_b32 s{96-16-12+k if False else 44+k if k < 8 else 72+k}, s60, {k << 10}")
            r = 44 + k if k < 8 else 72 + k
            I(f"s_add_u32 s{r}, s{r}, s52")
    else:
        I("s_add_u32 s53, s52, 0x1000")
        I("s_add_u32 s54, s52, 0x2000")
        I("s_add_u32 s55, s52, 0x3000")
    I("s_mov_b32 s42, 0x4000000"); I("s_mov_b32 s43, 0x20000")
    I("s_lshl_b32 s56, s30, 2")
    I("v_mov_b32 v165, s56")
    I("s_lshl_b32 s56, s30, 8")
    I("v_lshl_add_u32 v167, v1, 2, s56")
    I("v_lshlrev_b32 v166, 4, v2")
    def dryjump():
        EX(0)
        for k in range(3):
            I(f"s_cmp_eq_u32 s30, {k}")
            I(f"s_cbranch_scc1 L_seg{k}")
        I("s_branch L_seg3")
        a.label("L_dret")
        EX(-1)
    if dry == 2:
        I("s_cmp_eq_u32 s59, 1")
        I("s_cbranch_scc0 L_nodry")
        dryjump()
        a.label("L_nodry")
    I("s_waitcnt lgkmcnt(0)")
    I("s_mov_b32 s40, s6"); I("s_mov_b32 s41, s7")
    I("s_cmp_eq_u32 s59, 1")
    I("s_barrier")
    I("s_cbranch_scc1 L_V")
    def tload(base, t):
        if rot == 2:
            r = 44 + t if t < 8 else 72 + t
            I(f"buffer_load_dwordx4 v[{base+4*t}:{base+4*t+3}], v6, s[40:43], s{r} offen {kvflag}")
            return
        I(f"buffer_load_dwordx4 v[{base+4*t}:{base+4*t+3}], v6, s[40:43], s{52+t//4} offen offset:{(t%4)*1024} {kvflag}")
    ST(22)
    nlev = 16 // gran
    lev = 0
    for t in range(16):
        if k0 and t == k0:
            if kmode == 0: I(f"s_waitcnt vmcnt({k0-1})")
            else: lds_spin(L_QP, 1, 12, sleep=1)
        if kwin and t >= kwin:
            I(f"s_waitcnt vmcnt({kwin-1})")
        tload(KB, t)
        if kwin and t >= kwin and (t - kwin + 1) % gran == 0:
            lev = (t - kwin + 1) // gran
            I(f"v_mov_b32 v12, {lev}")
            I(f"ds_write_b32 v165, v12 offset:{L_KS}")
    ST(25)
    I("s_mov_b32 s88, 0xcccccccc"); I("s_mov_b32 s89, 0xcccccccc")
    I("s_mov_b32 s90, 0xaaaaaaaa"); I("s_mov_b32 s91, 0xaaaaaaaa")
    if stamp: srd(36, 26, WSN)
    for k in range(lev + 1, nlev + 1):
        I(f"v_mov_b32 v12, {k}")
        I(f"s_waitcnt vmcnt({16 - k*gran})")
        I(f"ds_write_b32 v165, v12 offset:{L_KS}")
    ST(26)
    if abl:
        I(f"s_cmp_eq_u32 s30, {sw}")
        I("s_cbranch_scc0 L_end")
        flush_stamps()
        I("s_endpgm")
    a.label("L_Ksm")
    lds_spin(L_FQ, 1, 16, sleep=1)
    I(f"ds_read_b128 v[12:15], v166 offset:{L_Q}")
    ST(2)
    I("s_waitcnt lgkmcnt(0)")
    for t in range(0, 16, 2):
        for i in range(4):
            for tt in (t, t + 1):
                c = "0" if i == 0 else f"v{ACC+tt}"
                I(f"v_dot2_f32_bf16 v{ACC+tt}, v{KB+4*tt+i}, v{12+i}, {c}")
    for t in range(8):
        I(f"v_add_f32_dpp v{ACC+t}, v{ACC+t}, v{ACC+t} row_ror:8 row_mask:0xf bank_mask:0x3")
    for t in range(8):
        I(f"v_add_f32_dpp v{ACC+t}, v{ACC+t+8}, v{ACC+t+8} row_ror:8 row_mask:0xf bank_mask:0xc")
    for t in range(4):
        I(f"v_add_f32_dpp v{ACC+t}, v{ACC+t}, v{ACC+t} row_shl:4 row_mask:0xf bank_mask:0x5")
    for t in range(4):
        I(f"v_add_f32_dpp v{ACC+t}, v{ACC+t+4}, v{ACC+t+4} row_shr:4 row_mask:0xf bank_mask:0xa")
    for t in range(4):
        I(f"v_add_f32_dpp v{ACC+t}, v{ACC+t}, v{ACC+t} quad_perm:[2,3,0,1] {DPP}")
    I(f"v_cndmask_b32 v{ACC}, v{ACC}, v{ACC+2}, s[88:89]")
    I(f"v_cndmask_b32 v{ACC+1}, v{ACC+1}, v{ACC+3}, s[88:89]")
    for t in range(2):
        I(f"v_add_f32_dpp v{ACC+t}, v{ACC+t}, v{ACC+t} quad_perm:[1,0,3,2] {DPP}")
    I(f"v_cndmask_b32 v16, v16, v17, s[90:91]")
    I("v_cvt_pk_bf16_f32 v16, v16, v16")
    I("v_and_b32 v16, 0xffff0000, v16")
    I(f"v_mul_f32 v16, {hex(f2u(128 ** -0.5))}, v16")
    I("v_cvt_pk_bf16_f32 v16, v16, v16")
    I("v_and_b32 v16, 0xffff0000, v16")
    I(f"v_max_f32_dpp v17, v16, v16 row_ror:8 {DPP}")
    for r in (4, 2, 1):
        I(f"v_max_f32_dpp v17, v17, v17 row_ror:{r} {DPP}")
    I("v_mov_b32 v18, v17")
    I("v_permlane16_swap_b32 v17, v18")
    I("v_max_f32 v17, v17, v18")
    I("v_mov_b32 v18, v17")
    I("v_permlane32_swap_b32 v17, v18")
    I("v_max_f32 v17, v17, v18")
    I(f"ds_write_b32 v165, v17 offset:{L_M}")
    if not smtest: ST(23)
    lds_spin(L_M, 4, 20)
    I("v_max3_f32 v17, v20, v21, v22")
    I("v_max_f32 v17, v17, v23")
    I("v_sub_f32 v16, v16, v17")
    I(f"v_mul_f32 v16, {hex(f2u(1.4426950408889634))}, v16")
    I("v_exp_f32 v16, v16")
    I("v_cvt_pk_bf16_f32 v19, v16, v16")
    I(f"ds_write_b32 v167, v19 offset:{L_P2}")
    I(f"v_add_f32_dpp v17, v16, v16 row_ror:8 {DPP}")
    for r in (4, 2, 1):
        I(f"v_add_f32_dpp v17, v17, v17 row_ror:{r} {DPP}")
    I("v_mov_b32 v18, v17")
    I("v_permlane16_swap_b32 v17, v18")
    I("v_add_f32 v17, v17, v18")
    I("v_mov_b32 v18, v17")
    I("v_permlane32_swap_b32 v17, v18")
    I("v_add_f32 v17, v17, v18")
    I(f"ds_write_b32 v165, v17 offset:{L_L}")
    ST(27)
    if stamp:
        I(f"s_cmp_eq_u32 s30, {sw}")
        I("s_cbranch_scc0 L_end")
        flush_stamps()
    I("s_endpgm")

    a.label("L_V")
    stamps.clear(); sreg[0] = 66
    if dry == 1: dryjump()
    if warm == 2: stage1("s30", 0)
    if 'v' in w2: walk("L_V", "L_T", 4, "s30")
    if 'k' in w2: walk("L_Ksm", "L_V", 4, "s30")
    I("v_and_b32 v12, 1, v2")
    I("v_lshlrev_b32 v12, 4, v12")
    I("v_mov_b32 v13, 0xffff")
    I("v_lshlrev_b32 v12, v12, v13")
    I("v_lshrrev_b32 v13, 1, v2")
    for i in range(4):
        I(f"v_cmp_eq_u32 vcc, {i}, v13")
        I(f"v_cndmask_b32 v{8+i}, 0, v12, vcc")
    I("v_and_b32 v7, 1, v3")
    I("v_lshlrev_b32 v7, 4, v7")
    I("v_lshl_add_u32 v7, v2, 5, v7")
    I("s_lshl_b32 s56, s30, 9")
    I("v_add_u32 v164, s56, v7")
    I(f"s_lshl_b32 s57, s35, 9")
    I(f"s_add_u32 s57, s57, {H1O}")
    I("v_mov_b32 v12, 1")
    I("s_load_dword s31, s[26:27], 0")
    I("s_mov_b32 s40, s8"); I("s_mov_b32 s41, s9")
    srd(36, 26, WSN)
    I("s_waitcnt lgkmcnt(0)")
    I("s_mul_i32 s31, s31, 1664525")
    I("s_add_u32 s31, s31, 1013904223")
    for t in range(16):
        if t % gran == 0:
            lev = t // gran + 1 + lag
            if 1 <= lev <= nlev: ks_wait(13, lev, one="v165")
        if vwin and t >= vwin: I(f"s_waitcnt vmcnt({vwin-1})")
        tload(VB, t)
    if wotrig: I(f"s_waitcnt vmcnt({16 - wotrig})")
    I("s_mov_b64 exec, 1")
    I(f"ds_add_u32 v4, v12 offset:{L_TRIG}")
    I("s_mov_b64 exec, -1")
    ST(1)
    if abl:
        I("s_waitcnt vmcnt(0)"); ST(21)
        I(f"s_cmp_eq_u32 s30, {sw}")
        I("s_cbranch_scc0 L_end")
        flush_stamps()
        I("s_endpgm")
    lds_spin(L_P2, 1, 19, addr="v167")
    I(f"ds_read_b32 v16, v4 offset:{L_FQ}")
    for t in range(16):
        for i in range(4):
            I(f"v_and_b32_dpp v{KB+4*t+i}, v19, v{8+i} row_newbcast:{t} {DPP}")
    I("s_waitcnt lgkmcnt(0)")
    I("v_readfirstlane_b32 s58, v16")
    ST(3)
    for t in range(16):
        I(f"s_waitcnt vmcnt({15-t})")
        if t == 15: ST(21)
        c = "0" if t == 0 else f"v[{D}:{D+3}]"
        I(f"v_mfma_f32_16x16x32_bf16 v[{D}:{D+3}], v[{KB+4*t}:{KB+4*t+3}], v[{VB+4*t}:{VB+4*t+3}], {c}")
    EX("0xffffffff")
    I(f"ds_write_b128 v164, v[{D}:{D+3}] offset:{L_PART}")
    EX(1)
    I(f"ds_add_rtn_u32 v13, v4, v12 offset:{L_OCNT}")
    EX("0xffffffff")
    for w in range(4):
        I(f"ds_read_b128 v[{16+4*w}:{19+4*w}], v7 offset:{L_PART+512*w}")
    I("s_waitcnt lgkmcnt(0)")
    I("v_readfirstlane_b32 s56, v13")
    I("v_pk_add_f32 v[16:17], v[16:17], v[20:21]")
    I("v_pk_add_f32 v[18:19], v[18:19], v[22:23]")
    I("s_cmp_eq_u32 s56, 2")
    I("s_cbranch_scc0 L_s_end")
    I("v_pk_add_f32 v[24:25], v[24:25], v[28:29]")
    I("v_pk_add_f32 v[26:27], v[26:27], v[30:31]")
    I("v_pk_add_f32 v[16:17], v[16:17], v[24:25]")
    I("v_pk_add_f32 v[18:19], v[18:19], v[26:27]")
    I("s_cmp_eq_u32 s58, 1")
    for r in range(4):
        I(f"v_bfi_b32 v{16+r}, v5, s31, v{16+r}")
    I("s_cbranch_scc1 L_s_fast")
    I("buffer_store_dwordx4 v[16:19], v7, s[36:39], s57 offen sc1")
    I("s_branch L_s_pub")
    a.label("L_s_fast")
    I("buffer_store_dwordx4 v[16:19], v7, s[36:39], s57 offen")
    a.label("L_s_pub")
    I("v_and_b32 v20, v5, v16")
    I(f"ds_write_b32 v4, v20 offset:{L_OPUB}")
    if stamp:
        keep = dict(stamps); stamps.clear(); ST(4); sv = sreg[0]; flush_stamps(); stamps.update(keep); sreg[0] = sv
    a.label("L_s_end")
    if stamp:
        I(f"s_cmp_eq_u32 s30, {sw}")
        I("s_cbranch_scc0 L_end")
        flush_stamps()
    I("s_endpgm")

    a.raw("@@PBEG@@")
    stamps.clear(); sreg[0] = 66
    if prio: I("s_setprio 2")
    AB, BB, SEL = 32, 96, 10
    I("s_lshr_b32 s56, s28, 1")
    I("s_cmp_eq_u32 s30, 0")
    I("s_movk_i32 s52, 2752"); I("s_movk_i32 s53, 192"); I("s_movk_i32 s55, 172"); I("s_mov_b32 s42, 1409024")
    I("s_cselect_b32 s52, 8192, s52")
    I("s_cselect_b32 s53, 256, s53")
    I("s_cselect_b32 s54, 16, 12")
    I("s_cselect_b32 s55, 512, s55")
    I("s_cselect_b32 s42, 0x400000, s42")
    I("s_cselect_b32 s56, s28, s56")
    I("s_mul_i32 s57, s56, s54")
    I("s_sub_i32 s55, s55, s57")
    I("s_min_i32 s54, s54, s55")
    I("s_mul_i32 s53, s53, s56")
    I("s_lshl_b32 s56, s29, 6")
    I("s_mul_i32 s56, s56, s52")
    I("s_add_u32 s53, s53, s56")
    I("s_lshl_b32 s56, s52, 4")
    I("v_mul_lo_u32 v6, v3, s56")
    I("v_lshl_add_u32 v6, v2, 4, v6")
    I("v_cmp_gt_i32 vcc, s54, v2")
    I("v_mov_b32 v7, 0x80000000")
    I("v_cndmask_b32 v6, v7, v6, vcc")
    I("v_lshrrev_b32 v9, 3, v2")
    I("v_and_b32 v26, 7, v2")
    I("v_lshlrev_b32 v9, 10, v9")
    I("v_lshl_add_u32 v7, v3, 8, v9")
    I("v_lshl_add_u32 v7, v26, 5, v7")
    I("v_lshl_add_u32 v8, v3, 5, v9")
    I("v_lshl_add_u32 v8, v26, 2, v8")
    I("s_lshl_b32 s56, s29, 7")
    I("s_mov_b32 s46, 2048"); I("s_mov_b32 s47, 0x20000"); I("s_mov_b32 s43, 0x20000")
    I("s_bitcmp1_b32 s28, 0")
    I("s_waitcnt lgkmcnt(0)")
    ST(16)
    I("s_mov_b32 s44, s4"); I("s_mov_b32 s45, s5")
    I("buffer_load_dwordx4 v[18:21], v7, s[44:47], 0 offen")
    I("buffer_load_dwordx4 v[22:25], v7, s[44:47], 0 offen offset:16")
    I("buffer_load_dword v26, v8, s[44:47], s56 offen")
    I("s_cselect_b32 s40, s18, s16")
    I("s_cselect_b32 s41, s19, s17")
    I("s_cmp_eq_u32 s30, 0")
    I("s_cselect_b32 s40, s10, s40")
    I("s_cselect_b32 s41, s11, s41")
    for t in range(16):
        I(f"buffer_load_dwordx4 v[{BB+4*t}:{BB+4*t+3}], v6, s[40:43], s53 offen {wflag}")
        if t < 15: I("s_add_u32 s53, s53, s52")
    I("s_barrier")
    I("s_load_dword s31, s[26:27], 0")
    srd(36, 26, WSN)
    I("s_getreg_b32 s59, hwreg(HW_REG_XCC_ID, 0, 4)")
    make_sel(SEL, 27)
    I("v_mov_b32 v27, 0x3f803f80")
    I("s_waitcnt vmcnt(16)")
    ST(17)
    seg(0)
    if ln2:
        I("v_dot2_f32_bf16 v28, v18, v27, 0")
        I("v_dot2_f32_bf16 v30, v18, v18, 0")
        for k in range(1, 8):
            I(f"v_dot2_f32_bf16 v28, v{18+k}, v27, v28")
            I(f"v_dot2_f32_bf16 v30, v{18+k}, v{18+k}, v30")
        for m in ("quad_perm:[1,0,3,2]", "quad_perm:[2,3,0,1]", "row_half_mirror"):
            for r in (28, 30): I(f"v_add_f32_dpp v{r}, v{r}, v{r} {m} {DPP}")
        for sw_ in ("v_permlane16_swap_b32", "v_permlane32_swap_b32"):
            for r in (28, 30): I(f"v_mov_b32 v{r+1}, v{r}")
            for r in (28, 30): I(f"{sw_} v{r}, v{r+1}")
            for r in (28, 30): I(f"v_add_f32 v{r}, v{r}, v{r+1}")
        I(f"v_mul_f32 v28, {hex(f2u(1/512))}, v28")
        I(f"v_mul_f32 v30, {hex(f2u(1/512))}, v30")
        I("v_fma_f32 v30, -v28, v28, v30")
        I("v_max_f32 v30, 0, v30")
    else:
        I("v_dot2_f32_bf16 v28, v18, v27, 0")
        I("v_dot2_f32_bf16 v29, v19, v27, 0")
        for k in range(2, 8, 2):
            I(f"v_dot2_f32_bf16 v28, v{18+k}, v27, v28")
            I(f"v_dot2_f32_bf16 v29, v{19+k}, v27, v29")
        for k in range(8):
            I(f"v_lshlrev_b32 v{32+2*k}, 16, v{18+k}")
            I(f"v_and_b32 v{33+2*k}, 0xffff0000, v{18+k}")
        I("v_add_f32 v28, v28, v29")
        def red32(r, t):
            I(f"v_add_f32_dpp v{r}, v{r}, v{r} quad_perm:[1,0,3,2] {DPP}")
            I(f"v_add_f32_dpp v{r}, v{r}, v{r} quad_perm:[2,3,0,1] {DPP}")
            I(f"v_add_f32_dpp v{r}, v{r}, v{r} row_half_mirror {DPP}")
            I(f"v_mov_b32 v{t}, v{r}")
            I(f"v_permlane16_swap_b32 v{r}, v{t}")
            I(f"v_add_f32 v{r}, v{r}, v{t}")
            I(f"v_mov_b32 v{t}, v{r}")
            I(f"v_permlane32_swap_b32 v{r}, v{t}")
            I(f"v_add_f32 v{r}, v{r}, v{t}")
        red32(28, 29)
        I(f"v_mul_f32 v28, {hex(f2u(1/512))}, v28")
        I("v_mov_b32 v29, v28")
        for k in range(8):
            I(f"v_pk_add_f32 v[{32+2*k}:{33+2*k}], v[{32+2*k}:{33+2*k}], v[28:29] neg_lo:[0,1] neg_hi:[0,1]")
        I("v_pk_mul_f32 v[30:31], v[32:33], v[32:33]")
        for k in range(1, 8):
            I(f"v_pk_fma_f32 v[30:31], v[{32+2*k}:{33+2*k}], v[{32+2*k}:{33+2*k}], v[30:31]")
        I("v_add_f32 v30, v30, v31")
        red32(30, 31)
        I(f"v_mul_f32 v30, {hex(f2u(1/512))}, v30")
    I("v_cvt_pk_bf16_f32 v28, v28, v30")
    I("v_and_b32 v30, 0xffff0000, v28")
    I("v_lshlrev_b32 v28, 16, v28")
    I(f"v_add_f32 v30, {hex(f2u(1e-5))}, v30")
    I("v_cvt_pk_bf16_f32 v30, v30, v30")
    I("v_and_b32 v30, 0xffff0000, v30")
    I("v_sqrt_f32 v30, v30")
    I("v_lshlrev_b32 v32, 16, v26")
    I("v_and_b32 v33, 0xffff0000, v26")
    I("v_cvt_pk_bf16_f32 v30, v30, v30")
    I("v_and_b32 v30, 0xffff0000, v30")
    I("v_rcp_f32 v30, v30")
    I("v_sub_f32 v32, v32, v28")
    I("v_sub_f32 v33, v33, v28")
    I("v_cvt_pk_bf16_f32 v26, v32, v33")
    I("v_lshlrev_b32 v32, 16, v26")
    I("v_and_b32 v33, 0xffff0000, v26")
    I("v_mul_f32 v32, v32, v30")
    I("v_mul_f32 v33, v33, v30")
    I("v_cvt_pk_bf16_f32 v26, v32, v33")
    ST(18)
    seg(1)
    for u in range(8):
        I(f"v_mov_b32_dpp v{18+u}, v26 row_newbcast:{u} row_mask:0xf bank_mask:0x3")
        I(f"v_mov_b32_dpp v{18+u}, v26 row_newbcast:{8+u} row_mask:0xf bank_mask:0xc")
    def pperm(t):
        for i in range(4):
            I(f"v_perm_b32 v{AB+4*t+i}, v{18+t//2}, v{18+t//2}, v{SEL+4*(t%2)+i}")
    pperm(0)
    for t in range(16):
        if t == 4: seg(2)
        if t == 10: seg(3)
        if t < 15: pperm(t + 1)
        I(f"s_waitcnt vmcnt({15-t})")
        c = "0" if t == 0 else f"v[{D}:{D+3}]"
        I(f"v_mfma_f32_16x16x32_bf16 v[{D}:{D+3}], v[{AB+4*t}:{AB+4*t+3}], v[{BB+4*t}:{BB+4*t+3}], {c}")
    seg(4, end=True)
    I("s_waitcnt lgkmcnt(0)")
    I("s_mul_i32 s31, s31, 1664525")
    I("s_add_u32 s31, s31, 1013904223")
    I("v_and_b32 v7, 1, v3")
    I("v_lshlrev_b32 v7, 4, v7")
    I("v_lshl_add_u32 v7, v2, 5, v7")
    I("v_lshrrev_b32 v8, 1, v3")
    I("v_lshl_add_u32 v7, v8, 9, v7")
    I("s_lshl_b32 s56, s30, 18")
    I("s_lshl_b32 s57, s35, 10")
    I("s_add_u32 s56, s56, s57")
    I(f"s_add_u32 s56, s56, {P0}")
    I("s_and_b32 s57, s31, 15")
    for r in range(3):
        I(f"s_bfe_u32 s{92+r}, s59, {hex(0x10000 + r)}")
        I(f"s_lshl_b32 s{92+r}, s{92+r}, 4")
        I(f"s_or_b32 s{92+r}, s{92+r}, s57")
    for r in range(3):
        I(f"v_bfi_b32 v{D+r}, 31, s{92+r}, v{D+r}")
    I(f"v_bfi_b32 v{D+3}, 15, s31, v{D+3}")
    I("s_cmp_eq_u32 s30, 1")
    I("s_cbranch_scc1 L_PG")
    if qfast:
        I(f"s_add_u32 s57, s56, {PX - P0}")
        I(f"buffer_store_dwordx4 v[{D}:{D+3}], v7, s[36:39], s57 offen")
    I(f"buffer_store_dwordx4 v[{D}:{D+3}], v7, s[36:39], s56 offen sc1")

    if kmode == 1: I(f"ds_write_b32 v4, v4 offset:{L_QP}")
    if kmode == 2:
        I("s_waitcnt vmcnt(1)")
        I(f"ds_write_b32 v4, v4 offset:{L_QP}")
    ST(5)
    a.label("L_PQ_tail")
    if abl:
        flush_stamps()
        I("s_endpgm")
    I("v_lshrrev_b32 v6, 5, v1")
    I("v_and_b32 v8, 31, v1")
    I("v_lshlrev_b32 v9, 3, v8")
    I("v_lshl_add_u32 v9, v6, 2, v9")
    I("v_lshlrev_b32 v6, 12, v6")
    I("v_lshl_add_u32 v6, v8, 4, v6")
    I("s_lshl_b32 s56, s28, 13")
    I("s_lshl_b32 s57, s32, 9")
    I("s_add_u32 s56, s56, s57")
    I(f"s_add_u32 s56, s56, {P0}")
    I(f"s_add_u32 s57, s56, {PX - P0 if qfast else 0}")
    def qloads(base, so="s56"):
        return [f"buffer_load_dwordx4 v[{base+4*k}:{base+3+4*k}], v6, s[36:39], {so} offen offset:{1024*k} sc1" for k in range(4)]
    def qsum(base):
        I(f"v_xor_b32 v28, s92, v{base}")
        for k in range(4):
            for r in range(3):
                if k or r: I(f"v_bitop3_b32 v28, v28, v{base+4*k+r}, s{92+r} bitop3:0xf6")
        I(f"v_pk_add_f32 v[32:33], v[{base}:{base+1}], v[{base+4}:{base+5}]")
        I(f"v_pk_add_f32 v[34:35], v[{base+2}:{base+3}], v[{base+6}:{base+7}]")
        I(f"v_pk_add_f32 v[40:41], v[{base+8}:{base+9}], v[{base+12}:{base+13}]")
        I(f"v_pk_add_f32 v[42:43], v[{base+10}:{base+11}], v[{base+14}:{base+15}]")
    ns = len(qlev)
    for k in range(ns):
        if qrel:
            if k == 0: ks_cur(28, "s60")
            I(f"s_add_u32 s61, s60, {qlev[k]}")
            I(f"s_min_u32 s61, s61, {16 // gran}")
            ks_wait(28, "s61")
        elif qlev[k]: ks_wait(28, qlev[k])
        if k == 0: ST(20)
        for l in qloads(48 + 16 * k, "s57"): I(l)
    for k in range(ns):
        I(f"s_waitcnt vmcnt({4*(ns-1-k)})")
        tagcheck(list(range(48 + 16 * k, 64 + 16 * k)), "15", 27)
        nx = lab("qn")
        I(f"s_cbranch_vccnz {nx}")
        qsum(48 + 16 * k)
        I("s_branch L_q_ok")
        a.label(nx)
    gpoll(qloads(32), list(range(32, 48)), "15", 27)
    qsum(32)
    a.label("L_q_ok")
    I("v_pk_add_f32 v[32:33], v[32:33], v[40:41]")
    I("v_pk_add_f32 v[34:35], v[34:35], v[42:43]")
    I("v_and_b32 v28, 31, v28")
    I("v_cmp_ne_u32 vcc, 0, v28")
    I("v_permlane32_swap_b32 v32, v34")
    I("v_permlane32_swap_b32 v33, v35")
    I("v_add_f32 v32, v32, v34")
    I("v_add_f32 v33, v33, v35")
    I("v_cvt_pk_bf16_f32 v32, v32, v33")
    I("s_cmp_eq_u64 vcc, 0")
    I(f"s_cselect_b32 s58, {1 if fast else 0}, 0")
    I(f"ds_write_b32 v9, v32 offset:{L_Q}")
    I("v_mov_b32 v33, s58")
    I(f"ds_write_b32 v4, v33 offset:{L_FQ}")
    ST(6)
    I("v_and_b32 v6, 7, v1")
    I("v_lshlrev_b32 v9, 2, v6")
    I("v_lshlrev_b32 v6, 7, v6")
    I("s_lshl_b32 s56, s35, 7")
    I(f"s_add_u32 s56, s56, {H1S}")
    I("s_lshl_b32 s57, s28, 10")
    I(f"s_add_u32 s57, s57, {H1S}")
    I("v_lshlrev_b32 v7, 4, v1")
    lds_spin(L_L, 4, 32, sleep=1)
    I(f"ds_read_b128 v[40:43], v4 offset:{L_M}")
    I("v_add_f32 v33, v32, v33")
    I("v_add_f32 v34, v34, v35")
    I("v_add_f32 v33, v33, v34")
    I("s_waitcnt lgkmcnt(0)")
    I("v_max3_f32 v32, v40, v41, v42")
    I("v_max_f32 v32, v32, v43")
    I("v_bfi_b32 v32, v5, s31, v32")
    I("v_bfi_b32 v33, v5, s31, v33")
    I("v_mov_b32 v34, v32")
    I("v_mov_b32 v35, v33")
    EX("0xff")
    I("s_cmp_eq_u32 s58, 1")
    I("s_cbranch_scc1 L_st_fast")
    I("buffer_store_dwordx4 v[32:35], v7, s[36:39], s56 offen sc1")
    I("s_branch L_st_pub")
    a.label("L_st_fast")
    I("buffer_store_dwordx4 v[32:35], v7, s[36:39], s56 offen")
    a.label("L_st_pub")
    EX(-1)
    ST(19)
    gpoll(["buffer_load_dwordx4 v[36:39], v6, s[36:39], s57 offen sc1"], [36, 37, 38, 39], "v5", 27)
    I("v_and_b32 v36, 0xffffff00, v36")
    I(f"v_max_f32_dpp v40, v36, v36 quad_perm:[1,0,3,2] {DPP}")
    I(f"v_max_f32_dpp v40, v40, v40 quad_perm:[2,3,0,1] {DPP}")
    I("v_sub_f32 v36, v36, v40")
    I(f"v_mul_f32 v36, {hex(f2u(1.4426950408889634))}, v36")
    I("v_exp_f32 v36, v36")
    I("v_mul_f32 v37, v36, v37")
    I(f"v_add_f32_dpp v37, v37, v37 quad_perm:[1,0,3,2] {DPP}")
    I(f"v_add_f32_dpp v37, v37, v37 quad_perm:[2,3,0,1] {DPP}")
    I("v_rcp_f32 v37, v37")
    I("v_mul_f32 v36, v36, v37")
    I(f"ds_write_b32 v9, v36 offset:{L_W}")
    dry_next("L_S_tail")
    ST(7)
    flush_stamps()
    I("s_endpgm")

    lg = {1: 0, 2: 1, 4: 2, 8: 3}
    def my_piece(sp, spc):
        I(f"s_lshr_b32 {sp}, s29, {lg[ncg]}")
        I(f"s_lshl_b32 {spc}, s28, {lg[nrb]}")
        I(f"s_add_u32 {sp}, {sp}, {spc}")
        I(f"s_and_b32 {spc}, s29, {ncg-1}")
        I(f"s_lshl_b32 {spc}, {spc}, {lg[nch]+6}")
        I(f"s_add_u32 {spc}, {spc}, {sp}")
    def out_off(dst, spc, tmp):
        I(f"s_lshr_b32 {dst}, {spc}, 6"); I(f"s_lshl_b32 {dst}, {dst}, 8")
        I(f"s_bfe_u32 {tmp}, {spc}, 0x10005"); I(f"s_lshl_b32 {tmp}, {tmp}, 10"); I(f"s_add_u32 {dst}, {dst}, {tmp}")
        I(f"s_and_b32 {tmp}, {spc}, 15"); I(f"s_lshl_b32 {tmp}, {tmp}, 4"); I(f"s_add_u32 {dst}, {dst}, {tmp}")
        I(f"s_bfe_u32 {tmp}, {spc}, 0x10004"); I(f"s_lshl_b32 {tmp}, {tmp}, 3"); I(f"s_add_u32 {dst}, {dst}, {tmp}")

    MK = 56 + 6
    PB = 4096 // ncons; LP = PB // 16; lgPB = PB.bit_length() - 1
    def fin_setup(vx, vo, vl, sb, so):
        I(f"s_and_b32 s63, s2, {ncons - 1}")
        I(f"s_lshl_b32 {sb}, s63, {6 + lgPB}")
        I(f"s_add_u32 {sb}, {sb}, {H2A}")
        I(f"s_lshr_b32 {so}, s63, {10 - lgPB}")
        I(f"s_lshl_b32 {so}, {so}, 8")
        I(f"s_lshl_b32 s63, s63, {lgPB}")
        I("s_bfe_u32 s62, s63, 0x10009"); I("s_lshl_b32 s62, s62, 10"); I(f"s_add_u32 {so}, {so}, s62")
        I("s_and_b32 s63, s63, 511"); I("s_lshr_b32 s63, s63, 1"); I(f"s_add_u32 {so}, {so}, s63")
        I(f"v_and_b32 {vo}, {LP - 1}, v1")
        I(f"v_lshlrev_b32 {vo}, 3, {vo}")
        I(f"v_lshl_add_u32 {vo}, v3, 1, {vo}")
        I(f"v_lshlrev_b32 {vl}, 4, v1")
    def fin_run(vx, vo, vl, sb, sb2, so, B0):
        I(f"s_add_u32 {sb2}, {sb}, 0x1000")
        if not ring:
            gpoll([f"buffer_load_dwordx4 v[{B0+4*k}:{B0+3+4*k}], {vl}, s[36:39], {sb if k < 4 else sb2} offen offset:{1024*(k%4)} {ldf}" for k in range(LP)],
                  list(range(B0, B0 + 4 * LP)), "v5", 27)
        else:
            S0 = B0 + 32
            L = lab("ring")
            a.label(L)
            for k in range(LP):
                sk = lab("rs"); M = f"s[{MK+2*k}:{MK+2*k+1}]"; G = B0 + 4 * k; S = S0 + 4 * k
                I(f"s_mov_b64 exec, {M}")
                I(f"s_cbranch_execz {sk}")
                I(f"v_mov_b64 v[{G}:{G+1}], v[{S}:{S+1}]")
                I(f"v_mov_b64 v[{G+2}:{G+3}], v[{S+2}:{S+3}]")
                I(f"v_xor_b32 v27, s31, v{G}")
                for w in range(1, 4): I(f"v_bitop3_b32 v27, v27, v{G+w}, s31 bitop3:0xf6")
                I("v_and_b32 v27, v5, v27")
                I(f"v_cmpx_ne_u32_e64 {M}, 0, v27")
                I(f"s_cbranch_execz {sk}")
                I(f"buffer_load_dwordx4 v[{S}:{S+3}], {vl}, s[36:39], {sb if k < 4 else sb2} offen offset:{1024*(k%4)} {ldf}")
                a.label(sk)
            I(f"s_sub_u32 {SC}, {SC}, 8")
            I("s_cbranch_scc1 L_end")
            I(f"s_or_b64 s[{MK+16}:{MK+17}], s[{MK}:{MK+1}], s[{MK+2*(LP-1)}:{MK+2*(LP-1)+1}]")
            for k in range(1, LP - 1):
                I(f"s_or_b64 s[{MK+16}:{MK+17}], s[{MK+16}:{MK+17}], s[{MK+2*k}:{MK+2*k+1}]")
            d = lab("rd")
            I(f"s_cbranch_scc0 {d}")
            I(f"s_waitcnt vmcnt({ring})")
            I(f"s_branch {L}")
            a.label(d)
            EX(-1)
        ST(11)
        n = LP
        while n > 1:
            n //= 2
            for k in range(n):
                for hh in (0, 2):
                    I(f"v_pk_add_f32 v[{B0+4*k+hh}:{B0+4*k+hh+1}], v[{B0+4*k+hh}:{B0+4*k+hh+1}], v[{B0+4*(k+n)+hh}:{B0+4*(k+n)+hh+1}]")
        V = B0
        I(f"v_permlane32_swap_b32 v{V}, v{V+2}")
        I(f"v_permlane32_swap_b32 v{V+1}, v{V+3}")
        I(f"v_add_f32 v{V}, v{V}, v{V+2}")
        I(f"v_add_f32 v{V+1}, v{V+1}, v{V+3}")
        I(f"v_permlane16_swap_b32 v{V}, v{V+1}")
        I(f"v_add_f32 v{V}, v{V}, v{V+1}")
        for r in (8, 4, 2, 1):
            if r >= LP: I(f"v_add_f32_dpp v{V}, v{V}, v{V} row_ror:{r} {DPP}")
        I(f"v_add_f32 v{V}, {vx}, v{V}")
        I(f"v_cvt_pk_bf16_f32 v{V}, v{V}, v{V}")
        m = ((1 << LP) - 1) * 0x10001
        I(f"s_mov_b32 exec_lo, {hex(m)}"); I(f"s_mov_b32 exec_hi, {hex(m)}")
        I(f"buffer_store_short v{V}, {vo}, s[48:51], {so} offen")
        e = lab("fe")
        I("s_cmp_eq_u32 s2, 0")
        I(f"s_cbranch_scc0 {e}")
        EX(1)
        I("v_mov_b32 v33, s31")
        I("buffer_store_dword v33, v4, s[36:39], 0 offen sc1")
        a.label(e)
        ST(12)

    a.label("L_PG")
    stamps.clear(); sreg[0] = 80
    I(f"buffer_store_dwordx4 v[{D}:{D+3}], v7, s[36:39], s56 offen sc1")
    srd(40, 20, 1376 * 1024)
    I("v_mul_u32_u24 v6, 6144, v3")
    I("v_lshl_add_u32 v6, v2, 4, v6")
    I("s_lshl_b32 s58, s28, 1")
    I("s_add_u32 s58, s58, s32")
    I("s_mul_i32 s52, s58, 24576")
    I("s_lshl_b32 s53, s33, 8")
    I("s_add_u32 s52, s52, s53")
    I("s_add_u32 s53, s52, 0x1000")
    def wdloads():
        for t in range(6):
            I(f"buffer_load_dwordx4 v[{BB+4*t}:{BB+4*t+3}], v6, s[40:43], s{52+t//4} offen offset:{(t%4)*1024} {wflag}")
    if not wdlate: wdloads()
    fin_setup("v124", "v125", "v9", "s54", "s55")
    I("buffer_load_ushort v124, v125, s[44:47], s55 offen")
    srd(48, 22, 2048)
    I("v_lshrrev_b32 v7, 3, v2")
    I("v_lshlrev_b32 v7, 9, v7")
    I("v_and_b32 v27, 7, v2")
    I("v_min_u32 v27, 2, v27")
    I("v_lshl_add_u32 v7, v27, 3, v7")
    I("v_mad_u32_u24 v7, v3, 24, v7")
    I("s_and_b32 s56, s28, 30")
    I("s_lshl_b32 s56, s56, 13")
    I("s_and_b32 s57, s28, 1")
    I("s_lshl_b32 s57, s57, 1")
    I("s_add_u32 s57, s57, s32")
    I("s_mul_i32 s57, s57, 96")
    I("s_add_u32 s56, s56, s57")
    for k in range(4):
        I(f"s_add_u32 s{60+k}, s56, {P1 + 0x1000*k}")
    G0 = 128
    a.label("L_PG_tail")
    if abl or noffn == 1:
        I("s_waitcnt vmcnt(0)"); ST(13)
        flush_stamps()
        I("s_endpgm")
    if qrel:
        ks_cur(28, "s56")
        I(f"s_add_u32 s56, s56, {glev}")
        I(f"s_min_u32 s56, s56, {16 // gran}")
        ks_wait(28, "s56")
    else: ks_wait(28, glev)
    gpoll([f"buffer_load_dwordx2 v[{G0+2*k}:{G0+1+2*k}], v7, s[36:39], s{60+k//4} offen offset:{1024*(k%4)} sc1" for k in range(16)],
          list(range(G0, G0 + 32)), "15", 27)
    ST(13)
    for base in (G0, G0 + 16):
        for k in range(4):
            I(f"v_pk_add_f32 v[{base+2*k}:{base+2*k+1}], v[{base+2*k}:{base+2*k+1}], v[{base+8+2*k}:{base+9+2*k}]")
        for k in range(2):
            I(f"v_pk_add_f32 v[{base+2*k}:{base+2*k+1}], v[{base+2*k}:{base+2*k+1}], v[{base+4+2*k}:{base+5+2*k}]")
        I(f"v_pk_add_f32 v[{base}:{base+1}], v[{base}:{base+1}], v[{base+2}:{base+3}]")
    I(f"v_cvt_pk_bf16_f32 v28, v{G0}, v{G0+1}")
    I(f"v_cvt_pk_bf16_f32 v29, v{G0+16}, v{G0+17}")
    I("v_lshlrev_b32 v30, 16, v28")
    I("v_and_b32 v31, 0xffff0000, v28")
    I(f"v_mul_f32 v30, {hex(f2u(-1.4426950408889634))}, v30")
    I(f"v_mul_f32 v31, {hex(f2u(-1.4426950408889634))}, v31")
    I("v_exp_f32 v30, v30")
    I("v_exp_f32 v31, v31")
    I("v_add_f32 v30, 1.0, v30")
    I("v_add_f32 v31, 1.0, v31")
    I("v_rcp_f32 v30, v30")
    I("v_rcp_f32 v31, v31")
    I("v_lshlrev_b32 v32, 16, v29")
    I("v_and_b32 v33, 0xffff0000, v29")
    I("v_cvt_pk_bf16_f32 v28, v30, v31")
    I("v_lshlrev_b32 v30, 16, v28")
    I("v_and_b32 v31, 0xffff0000, v28")
    I("v_mul_f32 v30, v30, v32")
    I("v_mul_f32 v31, v31, v33")
    I("v_cvt_pk_bf16_f32 v26, v30, v31")
    if wdlate:
        trig_wait(27, 1)
        wdloads()
        I("s_waitcnt vmcnt(0)")
    build_mfma(26, SEL, 18, AB, BB, D, 3)
    I("v_lshlrev_b32 v124, 16, v124")
    I(f"ds_write_b128 v9, v[{D}:{D+3}] offset:{L_YF}")
    I(f"ds_write_b32 v4, v4 offset:{L_FX}")
    ST(14)
    if stamp:
        for q in (0, 2): I(f"s_memrealtime s[{sreg[0]+q}:{sreg[0]+q+1}]")
        I("s_waitcnt lgkmcnt(0)")
    I(f"s_cmp_lt_u32 s2, {ncons}")
    I("s_cbranch_scc0 L_end" if stamp == "dbg" else "s_cbranch_scc0 L_f_end")
    if ring:
        I("s_not_b32 s56, s31")
        for k in range(LP):
            I(f"s_mov_b64 s[{MK+2*k}:{MK+2*k+1}], -1")
            I(f"v_mov_b32 v{64+4*k}, s56")
    if 'f' in w2: walk("L_Ffin", "L_f_end")
    a.label("L_Ffin")
    if fwait == 1: lds_spin(L_OPUB, 1, 27, sleep=1)
    if fwait == 2: lds_spin(L_YPUB, 1, 27, sleep=1)
    fin_run("v124", "v125", "v9", "s54", "s53", "s55", 32)
    a.label("L_f_end")
    flush_stamps()
    I("s_endpgm")

    a.raw("@@PEND@@")
    a.label("L_T")
    stamps.clear(); sreg[0] = 66
    tmode[0] = True
    if prio: I("s_setprio 3")
    DT = 80 if nch > 1 else D
    I("v_lshlrev_b32 v6, 2, v1")
    for r in range(4): I(f"v_mov_b32 v{12+r}, -1")
    I("v_lshlrev_b32 v7, 4, v1")
    I(f"ds_write_b32 v6, v12 offset:{L_M}")
    I(f"ds_write_b128 v7, v[12:15] offset:{L_P2}")
    I("s_waitcnt lgkmcnt(0)")
    I("s_barrier")
    I(f"v_lshlrev_b32 v6, {10 + lg[nch == 4 and 4 or 1] * 0 + {16:4, 8:3, 4:2}[nt]}, v3")
    I("v_lshl_add_u32 v6, v2, 4, v6")
    my_piece("s58", "s59")
    I(f"s_lshl_b32 s52, s58, {10 + {64:6, 32:5, 16:4}[R]}")
    I(f"s_and_b32 s53, s29, {ncg-1}")
    I(f"s_lshl_b32 s53, s53, {8 + lg[nch]}")
    I("s_add_u32 s52, s52, s53")
    I("s_add_u32 s53, s52, 0x1000")
    I("s_add_u32 s54, s52, 0x2000")
    I("s_add_u32 s55, s52, 0x3000")
    I("s_mov_b32 s42, 0x400000"); I("s_mov_b32 s43, 0x20000")
    I("s_mov_b32 s40, s12"); I("s_mov_b32 s41, s13")
    def woload(k):
        t, cb = k // nch, k % nch
        I(f"buffer_load_dwordx4 v[{BB+4*k}:{BB+4*k+3}], v6, s[40:43], s{52+t//4} offen offset:{(t%4)*1024 + cb*256} {wflag}")
    for k in range(wopre): woload(k)
    srd(36, 26, WSN)
    make_sel(SEL, 27)
    assert nch == 1
    I("v_and_b32 v8, 1, v3")
    I("v_lshlrev_b32 v8, 4, v8")
    I("v_lshl_add_u32 v8, v2, 5, v8")
    I("v_lshrrev_b32 v9, 1, v3")
    I("v_lshl_add_u32 v8, v9, 9, v8")
    I(f"v_lshrrev_b32 v9, {lgPB}, v8")
    I(f"v_and_b32 v8, {PB - 1}, v8")
    I(f"v_lshl_add_u32 v8, v9, {6 + lgPB}, v8")
    I("s_lshl_b32 s60, s33, 16")
    I(f"s_lshl_b32 s61, s58, {lgPB}")
    I("s_add_u32 s60, s60, s61")
    I(f"s_add_u32 s60, s60, {H2A}")
    I("v_lshlrev_b32 v167, 4, v1")
    I("v_lshrrev_b32 v27, 3, v2")
    I("v_lshlrev_b32 v166, 4, v27")
    I("v_lshlrev_b32 v7, 11, v27")
    I(f"v_lshl_add_u32 v7, v3, {2 + {16:4, 8:3, 4:2}[nt]}, v7")
    I("v_and_b32 v27, 7, v2")
    if nt < 16: I(f"v_min_u32 v27, {nt//2 - 1}, v27")
    I("v_lshl_add_u32 v7, v27, 3, v7")
    I("s_lshl_b32 s56, s28, 12")
    I(f"s_lshr_b32 s57, s29, {lg[ncg]}")
    I(f"s_lshl_b32 s57, s57, {2 + {64:6, 32:5, 16:4}[R]}")
    I("s_add_u32 s56, s56, s57")
    I(f"s_add_u32 s56, s56, {H1O}")
    if 't' in w2: walk("L_T_tail", "L_end")
    a.label("L_T_tail")
    if smtest:
        ks_wait(28, smtest)
        I("s_lshl_b32 s44, s28, 13")
        I(f"s_add_u32 s44, s44, {PX}")
        ST(29); I("s_waitcnt lgkmcnt(0)")
        I("s_load_dwordx16 s[80:95], s[26:27], s44 glc"); I("s_waitcnt lgkmcnt(0)")
        ST(30); I("s_waitcnt lgkmcnt(0)")
        I("s_load_dwordx16 s[80:95], s[26:27], s44 glc"); I("s_waitcnt lgkmcnt(0)")
        ST(31); I("s_waitcnt lgkmcnt(0)")
        I("s_load_dwordx16 s[80:95], s[26:27], s44"); I("s_waitcnt lgkmcnt(0)")
        ST(23); I("s_waitcnt lgkmcnt(0)")
    trig_wait(27, 1)
    ST(24)
    for k in range(wopre, 16): woload(k)
    ST(8)
    if abl:
        I("s_waitcnt vmcnt(0)"); ST(9)
        flush_stamps()
        I("s_endpgm")
    lds_spin(L_FX, 1, 44, sleep=1)
    I(f"ds_read_b128 v[{DT}:{DT+3}], v167 offset:{L_YF}")
    ST(15)
    lds_spin(L_OPUB, 1, 27)
    I("v_readfirstlane_b32 s31, v27")
    ST(28)
    gpoll([f"buffer_load_dwordx2 v[{32+2*s}:{33+2*s}], v7, s[36:39], s56 offen offset:{512*s} sc1" for s in range(4)],
          list(range(32, 40)), "v5", 27)
    ST(9)
    lds_spin(L_W, 4, 40, addr="v166")
    I("v_mul_f32 v32, v32, v40")
    I("v_mul_f32 v33, v33, v40")
    for s in range(1, 4):
        I(f"v_fmac_f32 v32, v{32+2*s}, v{40+s}")
        I(f"v_fmac_f32 v33, v{33+2*s}, v{40+s}")
    I("v_cvt_pk_bf16_f32 v26, v32, v33")
    build_mfma(26, SEL, 18, AB, BB, DT, nt // 2, nch, cinit=True)
    for r in range(4):
        I(f"v_bfi_b32 v{DT+r}, v5, s31, v{DT+r}")
    I(f"buffer_store_dwordx4 v[{DT}:{DT+3}], v8, s[36:39], s60 offen {stf}")
    if fwait == 2: I(f"ds_write_b32 v4, v4 offset:{L_YPUB}")
    ST(10)
    flush_stamps()
    I("s_endpgm")
    a.label("L_end")
    I("s_endpgm")

    nv = a.maxv + 1
    head = HDR + f"""; @launch grid=(256,1,1) block=(704,1,1) lds={LDS_BYTES}
.amdgcn_target "amdgcn-amd-amdhsa--gfx950"
.text
.globl {KN}_kernel
.p2align 8
.type {KN}_kernel,@function
{KN}_kernel:
"""
    foot = f""".section .rodata,"a"
.p2align 6
.amdhsa_kernel {KN}_kernel
  .amdhsa_next_free_vgpr {nv}
  .amdhsa_next_free_sgpr {max(a.maxs + 1, 16)}
  .amdhsa_accum_offset {(nv + 3) // 4 * 4}
  .amdhsa_group_segment_fixed_size 0
  .amdhsa_kernarg_size 96
  .amdhsa_user_sgpr_count 2
  .amdhsa_user_sgpr_kernarg_segment_ptr 1
  .amdhsa_system_sgpr_workgroup_id_x 1
  .amdhsa_float_denorm_mode_32 3
.end_amdhsa_kernel
"""
    txt = a.text()
    i0 = txt.index("@@PBEG@@\n"); i1 = txt.index("@@PEND@@\n")
    P = txt[i0 + 9:i1]
    txt = txt[:i0] + txt[i1 + 9:]
    txt = txt.replace("@@P@@\n", P)
    if warm: txt = add_pads(head, txt, foot, pad, s1lab)
    return head + txt + foot

def add_pads(head, txt, foot, pad, s1lab):
    import re, subprocess
    lines = txt.rstrip("\n").split("\n")
    def isins(l):
        t = l.strip(); return t and not t.endswith(":") and not t.startswith((";", "@@"))
    tmp = re.sub(r"@@(W1SH)@@", "7", txt)
    tmp = re.sub(r"@@OFFH[^@]*@@", "0", tmp)
    tmp = re.sub(r"@@CNT[^@]*@@", "5", tmp)
    tmp = re.sub(r"(?m)^\s*@@[A-Z]*@@\n", "", tmp)
    tmp = re.sub(r"@@[^@]*@@", "0x12345", tmp)
    open("_pad.s", "w").write(head + tmp + foot)
    subprocess.check_call(["clang", "-x", "assembler", "-target", "amdgcn-amd-amdhsa", "-mcpu=gfx950", "-c", "_pad.s", "-o", "_pad.o"])
    d = subprocess.check_output(["llvm-objdump", "-d", "_pad.o"], text=True)
    sizes = [4 * len(m.group(1).split()) for m in re.finditer(r"// [0-9A-F]{12}: ([0-9A-F ]+)", d)]
    assert len(sizes) == sum(isins(l) for l in lines), (len(sizes), sum(isins(l) for l in lines))
    out = []; pos = 0; k = 0; on = False; labels = {}; pads = []
    i = 0
    while i < len(lines):
        l = lines[i]; t = l.strip()
        if t == "@@PADSTART@@": on = True; i += 1; continue
        if t == "@@PADOK@@": i += 1; continue
        if t == "@@NOPAD@@":
            j = i + 1; n = 0; kk = k
            while lines[j].strip() != "@@PADOK@@":
                if isins(lines[j]): n += sizes[kk]; kk += 1
                j += 1
            assert n + 4 <= pad
            if on and (pos % pad == 0 or (pos % pad) + n > pad):
                while pos % pad: out.append("  s_nop 0"); pos += 4
                pads.append(pos); out.append("  s_cbranch_execz L_wret"); pos += 4
            i += 1; continue
        if isins(l):
            sz = sizes[k]; k += 1
            if on:
                if pos % pad == pad - 4 and sz == 8: out.append("  s_nop 0"); pos += 4
                if pos % pad == 0:
                    tail = []
                    while out and out[-1].strip().endswith(":"): tail.insert(0, out.pop())
                    pads.append(pos); out.append("  s_cbranch_execz L_wret"); pos += 4
                    for x in tail:
                        out.append(x)
                        if not x.strip().startswith('L_wpc'): labels[x.strip()[:-1]] = pos
            out.append(l); pos += sz
        else:
            if t.endswith(":"): labels[t[:-1]] = pos
            out.append(l)
        i += 1
    assert pads == list(range(pads[0], pads[-1] + 1, pad)), "pad gap"
    txt = "\n".join(out) + "\n"
    up = lambda x: min((x + pad - 1) // pad * pad, pads[-1] + pad)
    def st(l0, g):
        x = up(labels[l0])
        while -16 <= x - labels[g] <= 64: x += pad
        return x
    txt = re.sub(r"@@OFF:([^:@]*):([^@]*)@@", lambda m: hex((st(m.group(1), m.group(2)) - labels[m.group(2)]) & 0xffffffff), txt)
    txt = re.sub(r"@@OFFH:([^:@]*):([^@]*)@@", lambda m: "-1" if st(m.group(1), m.group(2)) < labels[m.group(2)] else "0", txt)
    def f_cnt(m):
        c = (up(labels[m.group(2)]) - st(m.group(1), m.group(3))) // pad
        assert 1 <= c <= 64
        return str(c)
    txt = re.sub(r"@@CNT:([^:@]*):([^:@]*):([^@]*)@@", f_cnt, txt)
    if s1lab:
        n = (pads[-1] - st("L_P", s1lab[0])) // 128 + 1
        assert 64 < n <= 128
        txt = txt.replace("@@W1LIM@@", str(n))
    return txt

if __name__ == "__main__":
    import json
    name = sys.argv[1]; kw = {}
    for x in sys.argv[2:]:
        k, v = x.split("="); kw[k] = eval(v)
    open(name, "w").write(gen(**kw))
```

```python
import sys, struct
from asmlib import Asm
from common import KN
def f2u(x): return struct.unpack("<I", struct.pack("<f", x))[0]

HDR = open("cdna_kernels/" + KN + ".s.ref").read().split("; Override launch")[0]

PX = 0x140000; P0 = 0x10000; P1 = 0x50000; H1S = 0x90000; H1O = 0xA0000; H2F = 0xC0000; H2A = 0x100000
L_Q = 0x000; L_M = 0x100; L_L = 0x110; L_W = 0x120; L_FX = 0x140; L_FQ = 0x160; L_TRIG = 0x164; L_OCNT = 0x168; L_OPUB = 0x16c; L_KS = 0x170; L_P2 = 0x200; L_PART = 0x600; L_YF = 0xE00
LDS_BYTES = 0x1200

def gen(stamp=False, kvflag="nt", wflag="nt", prio=True, R=64, fast=True, wopre=0, qfast=True, sw=0, abl=0, gran=4, lag=0, qlev=(2,), glev=2, kwin=0, vwin=0, rot=0, noffn=0, noy=0, ysleep=0, fdefer=0, qrel=0, wdlate=0, wotrig=0, merge=1, fearly=0):
    a = Asm(); I = a.i
    uid = [0]
    def lab(p):
        uid[0] += 1; return f"L_{p}_{uid[0]}"
    SC = "s34"
    stamps = {}
    sreg = [64]
    DBG = {0: 0, 24: 1, 8: 2, 28: 3, 9: 4, 10: 5, 11: 6, 12: 7}
    tmode = [False]
    def ST(slot):
        if not stamp: return
        if stamp == "dbg":
            if slot not in DBG or (slot != 0 and not tmode[0]): return
            slot = DBG[slot]
        r = sreg[0]; sreg[0] += 2
        stamps[slot] = r
        I(f"s_memrealtime s[{r}:{r+1}]")
    def flush_stamps():
        if not stamp: return
        if stamp == "dbg" and not tmode[0]: return
        I("s_mov_b64 exec, 1")
        I("s_waitcnt lgkmcnt(0)")
        if stamp == "dbg":
            srd(96, 24, 256)
            for slot, r in stamps.items():
                I(f"v_mov_b32 v6, s{r}")
                I(f"buffer_atomic_umax v6, v4, s[96:99], 0 offen offset:{4*slot} sc1")
                I(f"s_not_b32 s{r}, s{r}")
                I(f"v_mov_b32 v6, s{r}")
                I(f"buffer_atomic_umax v6, v4, s[96:99], 0 offen offset:{32+4*slot} sc1")
            stamps.clear(); sreg[0] = 64
            return
        I("s_lshl_b32 s52, s2, 7")
        I("s_add_u32 s52, s52, 0x8000000")
        for slot, r in stamps.items():
            I(f"v_mov_b32 v6, s{r}")
            I(f"buffer_store_dword v6, v4, s[36:39], s52 offen offset:{4*slot}")
        stamps.clear(); sreg[0] = 64
    def lds_spin(off, n, dst, addr="v4", sleep=0):
        L = lab("spin"); O = lab("spino")
        a.label(L)
        if sleep: I(f"s_sleep {sleep}")
        if n == 1: I(f"ds_read_b32 v{dst}, {addr} offset:{off}")
        elif n == 2: I(f"ds_read_b64 v[{dst}:{dst+1}], {addr} offset:{off}")
        else: I(f"ds_read_b128 v[{dst}:{dst+3}], {addr} offset:{off}")
        I(f"s_sub_u32 {SC}, {SC}, 1")
        I("s_waitcnt lgkmcnt(0)")
        I("s_cbranch_scc1 L_end")
        t = dst
        if n == 2:
            t = dst + 2; I(f"v_max_u32 v{t}, v{dst}, v{dst+1}")
        if n == 4:
            t = dst + 4
            I(f"v_max3_u32 v{t}, v{dst}, v{dst+1}, v{dst+2}")
            I(f"v_max_u32 v{t}, v{t}, v{dst+3}")
        I(f"v_cmp_eq_u32 vcc, -1, v{t}")
        I(f"s_cbranch_vccnz {L}")
        a.label(O)
    def trig_wait(tmp, k):
        L = lab("trig"); O = lab("trigo")
        a.label(L)
        I("s_sleep 1")
        I(f"ds_read_b32 v{tmp}, v4 offset:{L_TRIG}")
        I(f"s_sub_u32 {SC}, {SC}, 1")
        I("s_waitcnt lgkmcnt(0)")
        I("s_cbranch_scc1 L_end")
        I(f"v_cmp_gt_i32 vcc, {4*k-1}, v{tmp}")
        I(f"s_cbranch_vccnz {L}")
        a.label(O)
    def ks_wait(tmp, lev, one=None):
        L = lab("ks")
        a.label(L)
        I("s_sleep 1")
        if one: I(f"ds_read_b32 v{tmp}, {one} offset:{L_KS}")
        else: I(f"ds_read_b128 v[{tmp}:{tmp+3}], v4 offset:{L_KS}")
        I(f"s_sub_u32 {SC}, {SC}, 1")
        I("s_waitcnt lgkmcnt(0)")
        I("s_cbranch_scc1 L_end")
        if not one:
            I(f"v_min3_i32 v{tmp}, v{tmp}, v{tmp+1}, v{tmp+2}")
            I(f"v_min_i32 v{tmp}, v{tmp}, v{tmp+3}")
        I(f"v_cmp_gt_i32 vcc, {lev}, v{tmp}")
        I(f"s_cbranch_vccnz {L}")
    def ks_cur(tmp, dst):
        I(f"ds_read_b128 v[{tmp}:{tmp+3}], v4 offset:{L_KS}")
        I("s_waitcnt lgkmcnt(0)")
        I(f"v_min3_i32 v{tmp}, v{tmp}, v{tmp+1}, v{tmp+2}")
        I(f"v_min_i32 v{tmp}, v{tmp}, v{tmp+3}")
        I(f"v_max_i32 v{tmp}, 0, v{tmp}")
        I(f"v_readfirstlane_b32 {dst}, v{tmp}")
    def gpoll(loads, words, tagmask, acc):
        L = lab("poll"); O = lab("pollo")
        a.label(L)
        for l in loads: I(l)
        I(f"s_sub_u32 {SC}, {SC}, 64")
        I("s_waitcnt vmcnt(0)")
        I("s_cbranch_scc1 L_end")
        I(f"v_xor_b32 v{acc}, s31, v{words[0]}")
        for w in words[1:]:
            I(f"v_bitop3_b32 v{acc}, v{acc}, v{w}, s31 bitop3:0xf6")
        I(f"v_and_b32 v{acc}, {tagmask}, v{acc}")
        I(f"v_cmp_ne_u32 vcc, 0, v{acc}")
        I(f"s_cbranch_vccnz {L}")
        a.label(O)
    def srd(d, lo, n):
        I(f"s_mov_b32 s{d}, s{lo}"); I(f"s_mov_b32 s{d+1}, s{lo+1}")
        I(f"s_mov_b32 s{d+2}, {hex(n)}"); I(f"s_mov_b32 s{d+3}, 0x20000")
    DPP = "row_mask:0xf bank_mask:0xf"
    def make_sel(S, t0):
        I(f"v_and_b32 v{t0}, 1, v2")
        I(f"v_cmp_eq_u32 vcc, 1, v{t0}")
        I(f"v_bfe_u32 v{t0}, v2, 1, 2")
        I(f"v_mov_b32 v{t0+3}, 0x0c0c0c0c")
        for e in range(2):
            ev = 0x0c0c0000 | (2*e+1) << 8 | (2*e)
            od = (2*e+1) << 24 | (2*e) << 16 | 0x0c0c
            I(f"v_mov_b32 v{S}, {hex(ev)}")
            I(f"v_mov_b32 v{S+1}, {hex(od)}")
            I(f"v_cndmask_b32 v{t0+1+e}, v{S}, v{S+1}, vcc")
        for i in range(4):
            I(f"v_cmp_eq_u32 vcc, {i}, v{t0}")
            for e in range(2):
                I(f"v_cndmask_b32 v{S+4*e+i}, v{t0+3}, v{t0+1+e}, vcc")
    def build_mfma(Q, S, TMP, AB, BB, D, npair, nch=1, cinit=False):
        for u in range(npair):
            I(f"v_mov_b32_dpp v{TMP+u}, v{Q} row_newbcast:{u} row_mask:0xf bank_mask:0x3")
            I(f"v_mov_b32_dpp v{TMP+u}, v{Q} row_newbcast:{8+u} row_mask:0xf bank_mask:0xc")
        n = 2 * npair
        def perm(t):
            for i in range(4):
                I(f"v_perm_b32 v{AB+4*t+i}, v{TMP+t//2}, v{TMP+t//2}, v{S+4*(t%2)+i}")
        def mf(t):
            for cb in range(nch):
                d = D + 4 * cb; bb = BB + 4 * (t * nch + cb)
                c = "0" if (t == 0 and not cinit) else f"v[{d}:{d+3}]"
                I(f"v_mfma_f32_16x16x32_bf16 v[{d}:{d+3}], v[{AB+4*t}:{AB+4*t+3}], v[{bb}:{bb+3}], {c}")
        perm(0)
        for t in range(n):
            if t + 1 < n: perm(t + 1)
            mf(t)
    def tagcheck(words, tagmask, acc):
        I(f"v_xor_b32 v{acc}, s31, v{words[0]}")
        for w in words[1:]:
            I(f"v_bitop3_b32 v{acc}, v{acc}, v{w}, s31 bitop3:0xf6")
        I(f"v_and_b32 v{acc}, {tagmask}, v{acc}")
        I(f"v_cmp_ne_u32 vcc, 0, v{acc}")
    def reduce4(V):
        I(f"v_permlane32_swap_b32 v{V}, v{V+2}")
        I(f"v_permlane32_swap_b32 v{V+1}, v{V+3}")
        I(f"v_add_f32 v{V}, v{V}, v{V+2}")
        I(f"v_add_f32 v{V+1}, v{V+1}, v{V+3}")
        I(f"v_permlane16_swap_b32 v{V}, v{V+1}")
        I(f"v_add_f32 v{V}, v{V}, v{V+1}")
        for r in (8, 4, 2, 1):
            I(f"v_add_f32_dpp v{V}, v{V}, v{V} row_ror:{r} {DPP}")

    def reduce4x2(V, W):
        for X in (V, W):
            I(f"v_permlane32_swap_b32 v{X}, v{X+2}")
            I(f"v_permlane32_swap_b32 v{X+1}, v{X+3}")
        for X in (V, W):
            I(f"v_add_f32 v{X}, v{X}, v{X+2}")
            I(f"v_add_f32 v{X+1}, v{X+1}, v{X+3}")
        for X in (V, W): I(f"v_permlane16_swap_b32 v{X}, v{X+1}")
        for X in (V, W): I(f"v_add_f32 v{X}, v{X}, v{X+1}")
        for r in (8, 4, 2, 1):
            for X in (V, W): I(f"v_add_f32_dpp v{X}, v{X}, v{X} row_ror:{r} {DPP}")

    WSN = 0x10000000 if stamp else 0x200000
    nch = 64 // R; ncg = 4 // nch; nrb = 128 // R; nt = R // 4
    def EX(m): I(f"s_mov_b64 exec, {m}")
    def dry_next(lbl): pass
    ST(0)
    I("s_load_dwordx16 s[4:19], s[0:1], 0")
    I("s_load_dwordx8 s[20:27], s[0:1], 64")
    I("v_lshrrev_b32 v6, 6, v0")
    I("s_cmp_ge_u32 s2, 256")
    I("v_readfirstlane_b32 s30, v6")
    I("s_cbranch_scc1 L_end")
    I("v_and_b32 v1, 63, v0")
    I("s_and_b32 s28, s2, 7")
    I("s_lshl_b32 s28, s28, 2")
    I("s_lshr_b32 s29, s2, 6")
    I("s_add_u32 s28, s28, s29")
    I("s_bfe_u32 s29, s2, 0x30003")
    I("s_lshr_b32 s32, s29, 2")
    I("s_and_b32 s33, s29, 3")
    I("s_lshl_b32 s35, s28, 3")
    I("s_add_u32 s35, s35, s29")
    I(f"s_mov_b32 {SC}, 0x100000")
    I("v_and_b32 v2, 15, v1")
    I("v_lshrrev_b32 v3, 4, v1")
    I("v_mov_b32 v4, 0")
    I("v_mov_b32 v5, 0xff")
    I("s_cmp_eq_u32 s30, 10")
    I("s_cbranch_scc1 L_T")
    I("s_cmp_ge_u32 s30, 2")
    I("s_cbranch_scc1 L_S")
    a.raw("@@P@@")

    a.label("L_S")
    KB, VB, ACC, D = 32, 96, 16, 160
    I("s_sub_u32 s30, s30, 2")
    I("s_lshr_b32 s59, s30, 2")
    I("s_and_b32 s30, s30, 3")
    I("v_lshlrev_b32 v6, 4, v1")
    I("s_lshl_b32 s52, s32, 25")
    I("s_lshl_b32 s53, s28, 20")
    I("s_add_u32 s52, s52, s53")
    I("s_lshl_b32 s53, s33, 16")
    I("s_add_u32 s52, s52, s53")
    I("s_lshl_b32 s53, s30, 14")
    I("s_add_u32 s52, s52, s53")
    I("s_add_u32 s52, s52, 0xC0000")
    if rot == 1:
        I("s_add_u32 s60, s28, s29")
        for k in (3, 2, 1, 0):
            I(f"s_add_u32 s61, s60, {k}"); I("s_and_b32 s61, s61, 3"); I("s_lshl_b32 s61, s61, 12")
            I(f"s_add_u32 s{52+k}, s52, s61")
    elif rot == 2:
        I("s_lshl_b32 s60, s29, 1"); I("s_xor_b32 s60, s60, s28"); I("s_and_b32 s60, s60, 15"); I("s_lshl_b32 s60, s60, 10")
        for k in range(16):
            I(f"s_xor_b32 s{96-16-12+k if False else 44+k if k < 8 else 72+k}, s60, {k << 10}")
            r = 44 + k if k < 8 else 72 + k
            I(f"s_add_u32 s{r}, s{r}, s52")
    else:
        I("s_add_u32 s53, s52, 0x1000")
        I("s_add_u32 s54, s52, 0x2000")
        I("s_add_u32 s55, s52, 0x3000")
    I("s_mov_b32 s42, 0x4000000"); I("s_mov_b32 s43, 0x20000")
    I("s_lshl_b32 s56, s30, 2")
    I("v_mov_b32 v165, s56")
    I("s_lshl_b32 s56, s30, 8")
    I("v_lshl_add_u32 v167, v1, 2, s56")
    I("v_lshlrev_b32 v166, 4, v2")
    I("s_waitcnt lgkmcnt(0)")
    I("s_mov_b32 s40, s6"); I("s_mov_b32 s41, s7")
    I("s_cmp_eq_u32 s59, 1")
    I("s_barrier")
    I("s_cbranch_scc1 L_V")
    def tload(base, t):
        if rot == 2:
            r = 44 + t if t < 8 else 72 + t
            I(f"buffer_load_dwordx4 v[{base+4*t}:{base+4*t+3}], v6, s[40:43], s{r} offen {kvflag}")
            return
        I(f"buffer_load_dwordx4 v[{base+4*t}:{base+4*t+3}], v6, s[40:43], s{52+t//4} offen offset:{(t%4)*1024} {kvflag}")
    ST(22)
    nlev = 16 // gran
    lev = 0
    for t in range(16):
        if kwin and t >= kwin:
            I(f"s_waitcnt vmcnt({kwin-1})")
        tload(KB, t)
        if kwin and t >= kwin and (t - kwin + 1) % gran == 0:
            lev = (t - kwin + 1) // gran
            I(f"v_mov_b32 v12, {lev}")
            I(f"ds_write_b32 v165, v12 offset:{L_KS}")
    ST(25)
    I("s_mov_b32 s88, 0xcccccccc"); I("s_mov_b32 s89, 0xcccccccc")
    I("s_mov_b32 s90, 0xaaaaaaaa"); I("s_mov_b32 s91, 0xaaaaaaaa")
    if stamp: srd(36, 26, WSN)
    for k in range(lev + 1, nlev + 1):
        I(f"v_mov_b32 v12, {k}")
        I(f"s_waitcnt vmcnt({16 - k*gran})")
        I(f"ds_write_b32 v165, v12 offset:{L_KS}")
    ST(26)
    if abl:
        I(f"s_cmp_eq_u32 s30, {sw}")
        I("s_cbranch_scc0 L_end")
        flush_stamps()
        I("s_endpgm")
    lds_spin(L_FQ, 1, 16, sleep=1)
    I(f"ds_read_b128 v[12:15], v166 offset:{L_Q}")
    ST(2)
    I("s_waitcnt lgkmcnt(0)")
    for t in range(0, 16, 2):
        for i in range(4):
            for tt in (t, t + 1):
                c = "0" if i == 0 else f"v{ACC+tt}"
                I(f"v_dot2_f32_bf16 v{ACC+tt}, v{KB+4*tt+i}, v{12+i}, {c}")
    for t in range(8):
        I(f"v_add_f32_dpp v{ACC+t}, v{ACC+t}, v{ACC+t} row_ror:8 row_mask:0xf bank_mask:0x3")
    for t in range(8):
        I(f"v_add_f32_dpp v{ACC+t}, v{ACC+t+8}, v{ACC+t+8} row_ror:8 row_mask:0xf bank_mask:0xc")
    for t in range(4):
        I(f"v_add_f32_dpp v{ACC+t}, v{ACC+t}, v{ACC+t} row_shl:4 row_mask:0xf bank_mask:0x5")
    for t in range(4):
        I(f"v_add_f32_dpp v{ACC+t}, v{ACC+t+4}, v{ACC+t+4} row_shr:4 row_mask:0xf bank_mask:0xa")
    for t in range(4):
        I(f"v_add_f32_dpp v{ACC+t}, v{ACC+t}, v{ACC+t} quad_perm:[2,3,0,1] {DPP}")
    I(f"v_cndmask_b32 v{ACC}, v{ACC}, v{ACC+2}, s[88:89]")
    I(f"v_cndmask_b32 v{ACC+1}, v{ACC+1}, v{ACC+3}, s[88:89]")
    for t in range(2):
        I(f"v_add_f32_dpp v{ACC+t}, v{ACC+t}, v{ACC+t} quad_perm:[1,0,3,2] {DPP}")
    I(f"v_cndmask_b32 v16, v16, v17, s[90:91]")
    I("v_cvt_pk_bf16_f32 v16, v16, v16")
    I("v_and_b32 v16, 0xffff0000, v16")
    I(f"v_mul_f32 v16, {hex(f2u(128 ** -0.5))}, v16")
    I("v_cvt_pk_bf16_f32 v16, v16, v16")
    I("v_and_b32 v16, 0xffff0000, v16")
    I(f"v_max_f32_dpp v17, v16, v16 row_ror:8 {DPP}")
    for r in (4, 2, 1):
        I(f"v_max_f32_dpp v17, v17, v17 row_ror:{r} {DPP}")
    I("v_mov_b32 v18, v17")
    I("v_permlane16_swap_b32 v17, v18")
    I("v_max_f32 v17, v17, v18")
    I("v_mov_b32 v18, v17")
    I("v_permlane32_swap_b32 v17, v18")
    I("v_max_f32 v17, v17, v18")
    I(f"ds_write_b32 v165, v17 offset:{L_M}")
    ST(23)
    lds_spin(L_M, 4, 20)
    I("v_max3_f32 v17, v20, v21, v22")
    I("v_max_f32 v17, v17, v23")
    I("v_sub_f32 v16, v16, v17")
    I(f"v_mul_f32 v16, {hex(f2u(1.4426950408889634))}, v16")
    I("v_exp_f32 v16, v16")
    I("v_cvt_pk_bf16_f32 v19, v16, v16")
    I(f"ds_write_b32 v167, v19 offset:{L_P2}")
    I(f"v_add_f32_dpp v17, v16, v16 row_ror:8 {DPP}")
    for r in (4, 2, 1):
        I(f"v_add_f32_dpp v17, v17, v17 row_ror:{r} {DPP}")
    I("v_mov_b32 v18, v17")
    I("v_permlane16_swap_b32 v17, v18")
    I("v_add_f32 v17, v17, v18")
    I("v_mov_b32 v18, v17")
    I("v_permlane32_swap_b32 v17, v18")
    I("v_add_f32 v17, v17, v18")
    I(f"ds_write_b32 v165, v17 offset:{L_L}")
    ST(27)
    if stamp:
        I(f"s_cmp_eq_u32 s30, {sw}")
        I("s_cbranch_scc0 L_end")
        flush_stamps()
    I("s_endpgm")

    a.label("L_V")
    stamps.clear(); sreg[0] = 66
    I("v_and_b32 v12, 1, v2")
    I("v_lshlrev_b32 v12, 4, v12")
    I("v_mov_b32 v13, 0xffff")
    I("v_lshlrev_b32 v12, v12, v13")
    I("v_lshrrev_b32 v13, 1, v2")
    for i in range(4):
        I(f"v_cmp_eq_u32 vcc, {i}, v13")
        I(f"v_cndmask_b32 v{8+i}, 0, v12, vcc")
    I("v_and_b32 v7, 1, v3")
    I("v_lshlrev_b32 v7, 4, v7")
    I("v_lshl_add_u32 v7, v2, 5, v7")
    I("s_lshl_b32 s56, s30, 9")
    I("v_add_u32 v164, s56, v7")
    I(f"s_lshl_b32 s57, s35, 9")
    I(f"s_add_u32 s57, s57, {H1O}")
    I("v_mov_b32 v12, 1")
    I("s_load_dword s31, s[26:27], 0")
    I("s_mov_b32 s40, s8"); I("s_mov_b32 s41, s9")
    srd(36, 26, WSN)
    I("s_waitcnt lgkmcnt(0)")
    I("s_mul_i32 s31, s31, 1664525")
    I("s_add_u32 s31, s31, 1013904223")
    for t in range(16):
        if t % gran == 0:
            lev = t // gran + 1 + lag
            if 1 <= lev <= nlev: ks_wait(13, lev, one="v165")
        if vwin and t >= vwin: I(f"s_waitcnt vmcnt({vwin-1})")
        tload(VB, t)
    if wotrig: I(f"s_waitcnt vmcnt({16 - wotrig})")
    I("s_mov_b64 exec, 1")
    I(f"ds_add_u32 v4, v12 offset:{L_TRIG}")
    I("s_mov_b64 exec, -1")
    ST(1)
    if abl:
        I("s_waitcnt vmcnt(0)"); ST(21)
        I(f"s_cmp_eq_u32 s30, {sw}")
        I("s_cbranch_scc0 L_end")
        flush_stamps()
        I("s_endpgm")
    lds_spin(L_P2, 1, 19, addr="v167")
    I(f"ds_read_b32 v16, v4 offset:{L_FQ}")
    for t in range(16):
        for i in range(4):
            I(f"v_and_b32_dpp v{KB+4*t+i}, v19, v{8+i} row_newbcast:{t} {DPP}")
    I("s_waitcnt lgkmcnt(0)")
    I("v_readfirstlane_b32 s58, v16")
    ST(3)
    for t in range(16):
        I(f"s_waitcnt vmcnt({15-t})")
        if t == 15: ST(21)
        c = "0" if t == 0 else f"v[{D}:{D+3}]"
        I(f"v_mfma_f32_16x16x32_bf16 v[{D}:{D+3}], v[{KB+4*t}:{KB+4*t+3}], v[{VB+4*t}:{VB+4*t+3}], {c}")
    EX("0xffffffff")
    I(f"ds_write_b128 v164, v[{D}:{D+3}] offset:{L_PART}")
    EX(1)
    I(f"ds_add_rtn_u32 v13, v4, v12 offset:{L_OCNT}")
    EX("0xffffffff")
    for w in range(4):
        I(f"ds_read_b128 v[{16+4*w}:{19+4*w}], v7 offset:{L_PART+512*w}")
    I("s_waitcnt lgkmcnt(0)")
    I("v_readfirstlane_b32 s56, v13")
    I("v_pk_add_f32 v[16:17], v[16:17], v[20:21]")
    I("v_pk_add_f32 v[18:19], v[18:19], v[22:23]")
    I("s_cmp_eq_u32 s56, 2")
    I("s_cbranch_scc0 L_s_end")
    I("v_pk_add_f32 v[24:25], v[24:25], v[28:29]")
    I("v_pk_add_f32 v[26:27], v[26:27], v[30:31]")
    I("v_pk_add_f32 v[16:17], v[16:17], v[24:25]")
    I("v_pk_add_f32 v[18:19], v[18:19], v[26:27]")
    I("s_cmp_eq_u32 s58, 1")
    for r in range(4):
        I(f"v_bfi_b32 v{16+r}, v5, s31, v{16+r}")
    I("s_cbranch_scc1 L_s_fast")
    I("buffer_store_dwordx4 v[16:19], v7, s[36:39], s57 offen sc1")
    I("s_branch L_s_pub")
    a.label("L_s_fast")
    I("buffer_store_dwordx4 v[16:19], v7, s[36:39], s57 offen")
    a.label("L_s_pub")
    I(f"ds_write_b32 v4, v4 offset:{L_OPUB}")
    if stamp:
        keep = dict(stamps); stamps.clear(); ST(4); sv = sreg[0]; flush_stamps(); stamps.update(keep); sreg[0] = sv
    a.label("L_s_end")
    if stamp:
        I(f"s_cmp_eq_u32 s30, {sw}")
        I("s_cbranch_scc0 L_end")
        flush_stamps()
    I("s_endpgm")

    a.raw("@@PBEG@@")
    stamps.clear(); sreg[0] = 66
    if prio: I("s_setprio 2")
    AB, BB, SEL = 32, 96, 10
    I("s_lshr_b32 s56, s28, 1")
    I("s_cmp_eq_u32 s30, 0")
    I("s_movk_i32 s52, 2752"); I("s_movk_i32 s53, 192"); I("s_movk_i32 s55, 172"); I("s_mov_b32 s42, 1409024")
    I("s_cselect_b32 s52, 8192, s52")
    I("s_cselect_b32 s53, 256, s53")
    I("s_cselect_b32 s54, 16, 12")
    I("s_cselect_b32 s55, 512, s55")
    I("s_cselect_b32 s42, 0x400000, s42")
    I("s_cselect_b32 s56, s28, s56")
    I("s_mul_i32 s57, s56, s54")
    I("s_sub_i32 s55, s55, s57")
    I("s_min_i32 s54, s54, s55")
    I("s_mul_i32 s53, s53, s56")
    I("s_lshl_b32 s56, s29, 6")
    I("s_mul_i32 s56, s56, s52")
    I("s_add_u32 s53, s53, s56")
    I("s_lshl_b32 s56, s52, 4")
    I("v_mul_lo_u32 v6, v3, s56")
    I("v_lshl_add_u32 v6, v2, 4, v6")
    I("v_cmp_gt_i32 vcc, s54, v2")
    I("v_mov_b32 v7, 0x80000000")
    I("v_cndmask_b32 v6, v7, v6, vcc")
    I("v_lshrrev_b32 v9, 3, v2")
    I("v_and_b32 v26, 7, v2")
    I("v_lshlrev_b32 v9, 10, v9")
    I("v_lshl_add_u32 v7, v3, 8, v9")
    I("v_lshl_add_u32 v7, v26, 5, v7")
    I("v_lshl_add_u32 v8, v3, 5, v9")
    I("v_lshl_add_u32 v8, v26, 2, v8")
    I("s_lshl_b32 s56, s29, 7")
    I("s_mov_b32 s46, 2048"); I("s_mov_b32 s47, 0x20000"); I("s_mov_b32 s43, 0x20000")
    I("s_bitcmp1_b32 s28, 0")
    I("s_waitcnt lgkmcnt(0)")
    ST(16)
    I("s_mov_b32 s44, s4"); I("s_mov_b32 s45, s5")
    I("buffer_load_dwordx4 v[18:21], v7, s[44:47], 0 offen")
    I("buffer_load_dwordx4 v[22:25], v7, s[44:47], 0 offen offset:16")
    I("buffer_load_dword v26, v8, s[44:47], s56 offen")
    I("s_cselect_b32 s40, s18, s16")
    I("s_cselect_b32 s41, s19, s17")
    I("s_cmp_eq_u32 s30, 0")
    I("s_cselect_b32 s40, s10, s40")
    I("s_cselect_b32 s41, s11, s41")
    for t in range(16):
        I(f"buffer_load_dwordx4 v[{BB+4*t}:{BB+4*t+3}], v6, s[40:43], s53 offen {wflag}")
        if t < 15: I("s_add_u32 s53, s53, s52")
    I("s_barrier")
    I("s_load_dword s31, s[26:27], 0")
    srd(36, 26, WSN)
    I("s_getreg_b32 s59, hwreg(HW_REG_XCC_ID, 0, 4)")
    make_sel(SEL, 27)
    I("v_mov_b32 v27, 0x3f803f80")
    I("s_waitcnt vmcnt(16)")
    ST(17)
    I("v_dot2_f32_bf16 v28, v18, v27, 0")
    I("v_dot2_f32_bf16 v29, v19, v27, 0")
    for k in range(2, 8, 2):
        I(f"v_dot2_f32_bf16 v28, v{18+k}, v27, v28")
        I(f"v_dot2_f32_bf16 v29, v{19+k}, v27, v29")
    for k in range(8):
        I(f"v_lshlrev_b32 v{32+2*k}, 16, v{18+k}")
        I(f"v_and_b32 v{33+2*k}, 0xffff0000, v{18+k}")
    I("v_add_f32 v28, v28, v29")
    def red32(r, t):
        I(f"v_add_f32_dpp v{r}, v{r}, v{r} quad_perm:[1,0,3,2] {DPP}")
        I(f"v_add_f32_dpp v{r}, v{r}, v{r} quad_perm:[2,3,0,1] {DPP}")
        I(f"v_add_f32_dpp v{r}, v{r}, v{r} row_half_mirror {DPP}")
        I(f"v_mov_b32 v{t}, v{r}")
        I(f"v_permlane16_swap_b32 v{r}, v{t}")
        I(f"v_add_f32 v{r}, v{r}, v{t}")
        I(f"v_mov_b32 v{t}, v{r}")
        I(f"v_permlane32_swap_b32 v{r}, v{t}")
        I(f"v_add_f32 v{r}, v{r}, v{t}")
    red32(28, 29)
    I(f"v_mul_f32 v28, {hex(f2u(1/512))}, v28")
    I("v_mov_b32 v29, v28")
    for k in range(8):
        I(f"v_pk_add_f32 v[{32+2*k}:{33+2*k}], v[{32+2*k}:{33+2*k}], v[28:29] neg_lo:[0,1] neg_hi:[0,1]")
    I("v_pk_mul_f32 v[30:31], v[32:33], v[32:33]")
    for k in range(1, 8):
        I(f"v_pk_fma_f32 v[30:31], v[{32+2*k}:{33+2*k}], v[{32+2*k}:{33+2*k}], v[30:31]")
    I("v_add_f32 v30, v30, v31")
    red32(30, 31)
    I(f"v_mul_f32 v30, {hex(f2u(1/512))}, v30")
    I("v_cvt_pk_bf16_f32 v28, v28, v30")
    I("v_and_b32 v30, 0xffff0000, v28")
    I("v_lshlrev_b32 v28, 16, v28")
    I(f"v_add_f32 v30, {hex(f2u(1e-5))}, v30")
    I("v_cvt_pk_bf16_f32 v30, v30, v30")
    I("v_and_b32 v30, 0xffff0000, v30")
    I("v_sqrt_f32 v30, v30")
    I("v_lshlrev_b32 v32, 16, v26")
    I("v_and_b32 v33, 0xffff0000, v26")
    I("v_cvt_pk_bf16_f32 v30, v30, v30")
    I("v_and_b32 v30, 0xffff0000, v30")
    I("v_rcp_f32 v30, v30")
    I("v_sub_f32 v32, v32, v28")
    I("v_sub_f32 v33, v33, v28")
    I("v_cvt_pk_bf16_f32 v26, v32, v33")
    I("v_lshlrev_b32 v32, 16, v26")
    I("v_and_b32 v33, 0xffff0000, v26")
    I("v_mul_f32 v32, v32, v30")
    I("v_mul_f32 v33, v33, v30")
    I("v_cvt_pk_bf16_f32 v26, v32, v33")
    ST(18)
    for u in range(8):
        I(f"v_mov_b32_dpp v{18+u}, v26 row_newbcast:{u} row_mask:0xf bank_mask:0x3")
        I(f"v_mov_b32_dpp v{18+u}, v26 row_newbcast:{8+u} row_mask:0xf bank_mask:0xc")
    def pperm(t):
        for i in range(4):
            I(f"v_perm_b32 v{AB+4*t+i}, v{18+t//2}, v{18+t//2}, v{SEL+4*(t%2)+i}")
    pperm(0)
    for t in range(16):
        if t < 15: pperm(t + 1)
        I(f"s_waitcnt vmcnt({15-t})")
        c = "0" if t == 0 else f"v[{D}:{D+3}]"
        I(f"v_mfma_f32_16x16x32_bf16 v[{D}:{D+3}], v[{AB+4*t}:{AB+4*t+3}], v[{BB+4*t}:{BB+4*t+3}], {c}")
    I("s_waitcnt lgkmcnt(0)")
    I("s_mul_i32 s31, s31, 1664525")
    I("s_add_u32 s31, s31, 1013904223")
    I("v_and_b32 v7, 1, v3")
    I("v_lshlrev_b32 v7, 4, v7")
    I("v_lshl_add_u32 v7, v2, 5, v7")
    I("v_lshrrev_b32 v8, 1, v3")
    I("v_lshl_add_u32 v7, v8, 9, v7")
    I("s_lshl_b32 s56, s30, 18")
    I("s_lshl_b32 s57, s35, 10")
    I("s_add_u32 s56, s56, s57")
    I(f"s_add_u32 s56, s56, {P0}")
    I("s_and_b32 s57, s31, 15")
    for r in range(3):
        I(f"s_bfe_u32 s{92+r}, s59, {hex(0x10000 + r)}")
        I(f"s_lshl_b32 s{92+r}, s{92+r}, 4")
        I(f"s_or_b32 s{92+r}, s{92+r}, s57")
    for r in range(3):
        I(f"v_bfi_b32 v{D+r}, 31, s{92+r}, v{D+r}")
    I(f"v_bfi_b32 v{D+3}, 15, s31, v{D+3}")
    I("s_cmp_eq_u32 s30, 1")
    I("s_cbranch_scc1 L_PG")
    if qfast:
        I(f"s_add_u32 s57, s56, {PX - P0}")
        I(f"buffer_store_dwordx4 v[{D}:{D+3}], v7, s[36:39], s57 offen")
    I(f"buffer_store_dwordx4 v[{D}:{D+3}], v7, s[36:39], s56 offen sc1")

    ST(5)
    a.label("L_PQ_tail")
    if abl:
        flush_stamps()
        I("s_endpgm")
    I("v_lshrrev_b32 v6, 5, v1")
    I("v_and_b32 v8, 31, v1")
    I("v_lshlrev_b32 v9, 3, v8")
    I("v_lshl_add_u32 v9, v6, 2, v9")
    I("v_lshlrev_b32 v6, 12, v6")
    I("v_lshl_add_u32 v6, v8, 4, v6")
    I("s_lshl_b32 s56, s28, 13")
    I("s_lshl_b32 s57, s32, 9")
    I("s_add_u32 s56, s56, s57")
    I(f"s_add_u32 s56, s56, {P0}")
    I(f"s_add_u32 s57, s56, {PX - P0 if qfast else 0}")
    def qloads(base, so="s56"):
        return [f"buffer_load_dwordx4 v[{base+4*k}:{base+3+4*k}], v6, s[36:39], {so} offen offset:{1024*k} sc1" for k in range(4)]
    def qsum(base):
        I(f"v_xor_b32 v28, s92, v{base}")
        for k in range(4):
            for r in range(3):
                if k or r: I(f"v_bitop3_b32 v28, v28, v{base+4*k+r}, s{92+r} bitop3:0xf6")
        I(f"v_pk_add_f32 v[32:33], v[{base}:{base+1}], v[{base+4}:{base+5}]")
        I(f"v_pk_add_f32 v[34:35], v[{base+2}:{base+3}], v[{base+6}:{base+7}]")
        I(f"v_pk_add_f32 v[40:41], v[{base+8}:{base+9}], v[{base+12}:{base+13}]")
        I(f"v_pk_add_f32 v[42:43], v[{base+10}:{base+11}], v[{base+14}:{base+15}]")
    ns = len(qlev)
    for k in range(ns):
        if qrel:
            if k == 0: ks_cur(28, "s60")
            I(f"s_add_u32 s61, s60, {qlev[k]}")
            I(f"s_min_u32 s61, s61, {16 // gran}")
            ks_wait(28, "s61")
        elif qlev[k]: ks_wait(28, qlev[k])
        if k == 0: ST(20)
        for l in qloads(48 + 16 * k, "s57"): I(l)
    for k in range(ns):
        I(f"s_waitcnt vmcnt({4*(ns-1-k)})")
        tagcheck(list(range(48 + 16 * k, 64 + 16 * k)), "15", 27)
        nx = lab("qn")
        I(f"s_cbranch_vccnz {nx}")
        qsum(48 + 16 * k)
        I("s_branch L_q_ok")
        a.label(nx)
    gpoll(qloads(32), list(range(32, 48)), "15", 27)
    qsum(32)
    a.label("L_q_ok")
    I("v_pk_add_f32 v[32:33], v[32:33], v[40:41]")
    I("v_pk_add_f32 v[34:35], v[34:35], v[42:43]")
    I("v_and_b32 v28, 31, v28")
    I("v_cmp_ne_u32 vcc, 0, v28")
    I("v_permlane32_swap_b32 v32, v34")
    I("v_permlane32_swap_b32 v33, v35")
    I("v_add_f32 v32, v32, v34")
    I("v_add_f32 v33, v33, v35")
    I("v_cvt_pk_bf16_f32 v32, v32, v33")
    I("s_cmp_eq_u64 vcc, 0")
    I(f"s_cselect_b32 s58, {1 if fast else 0}, 0")
    I(f"ds_write_b32 v9, v32 offset:{L_Q}")
    I("v_mov_b32 v33, s58")
    I(f"ds_write_b32 v4, v33 offset:{L_FQ}")
    ST(6)
    I("v_and_b32 v6, 7, v1")
    I("v_lshlrev_b32 v9, 2, v6")
    I("v_lshlrev_b32 v6, 7, v6")
    I("s_lshl_b32 s56, s35, 7")
    I(f"s_add_u32 s56, s56, {H1S}")
    I("s_lshl_b32 s57, s28, 10")
    I(f"s_add_u32 s57, s57, {H1S}")
    I("v_lshlrev_b32 v7, 4, v1")
    lds_spin(L_L, 4, 32, sleep=1)
    I(f"ds_read_b128 v[40:43], v4 offset:{L_M}")
    I("v_add_f32 v33, v32, v33")
    I("v_add_f32 v34, v34, v35")
    I("v_add_f32 v33, v33, v34")
    I("s_waitcnt lgkmcnt(0)")
    I("v_max3_f32 v32, v40, v41, v42")
    I("v_max_f32 v32, v32, v43")
    I("v_bfi_b32 v32, v5, s31, v32")
    I("v_bfi_b32 v33, v5, s31, v33")
    I("v_mov_b32 v34, v32")
    I("v_mov_b32 v35, v33")
    EX("0xff")
    I("s_cmp_eq_u32 s58, 1")
    I("s_cbranch_scc1 L_st_fast")
    I("buffer_store_dwordx4 v[32:35], v7, s[36:39], s56 offen sc1")
    I("s_branch L_st_pub")
    a.label("L_st_fast")
    I("buffer_store_dwordx4 v[32:35], v7, s[36:39], s56 offen")
    a.label("L_st_pub")
    EX(-1)
    ST(19)
    gpoll(["buffer_load_dwordx4 v[36:39], v6, s[36:39], s57 offen sc1"], [36, 37, 38, 39], "v5", 27)
    I("v_and_b32 v36, 0xffffff00, v36")
    I(f"v_max_f32_dpp v40, v36, v36 quad_perm:[1,0,3,2] {DPP}")
    I(f"v_max_f32_dpp v40, v40, v40 quad_perm:[2,3,0,1] {DPP}")
    I("v_sub_f32 v36, v36, v40")
    I(f"v_mul_f32 v36, {hex(f2u(1.4426950408889634))}, v36")
    I("v_exp_f32 v36, v36")
    I("v_mul_f32 v37, v36, v37")
    I(f"v_add_f32_dpp v37, v37, v37 quad_perm:[1,0,3,2] {DPP}")
    I(f"v_add_f32_dpp v37, v37, v37 quad_perm:[2,3,0,1] {DPP}")
    I("v_rcp_f32 v37, v37")
    I("v_mul_f32 v36, v36, v37")
    I(f"ds_write_b32 v9, v36 offset:{L_W}")
    dry_next("L_S_tail")
    ST(7)
    flush_stamps()
    I("s_endpgm")

    lg = {1: 0, 2: 1, 4: 2, 8: 3}
    def my_piece(sp, spc):
        I(f"s_lshr_b32 {sp}, s29, {lg[ncg]}")
        I(f"s_lshl_b32 {spc}, s28, {lg[nrb]}")
        I(f"s_add_u32 {sp}, {sp}, {spc}")
        I(f"s_and_b32 {spc}, s29, {ncg-1}")
        I(f"s_lshl_b32 {spc}, {spc}, {lg[nch]+6}")
        I(f"s_add_u32 {spc}, {spc}, {sp}")
    def out_off(dst, spc, tmp):
        I(f"s_lshr_b32 {dst}, {spc}, 6"); I(f"s_lshl_b32 {dst}, {dst}, 8")
        I(f"s_bfe_u32 {tmp}, {spc}, 0x10005"); I(f"s_lshl_b32 {tmp}, {tmp}, 10"); I(f"s_add_u32 {dst}, {dst}, {tmp}")
        I(f"s_and_b32 {tmp}, {spc}, 15"); I(f"s_lshl_b32 {tmp}, {tmp}, 4"); I(f"s_add_u32 {dst}, {dst}, {tmp}")
        I(f"s_bfe_u32 {tmp}, {spc}, 0x10004"); I(f"s_lshl_b32 {tmp}, {tmp}, 3"); I(f"s_add_u32 {dst}, {dst}, {tmp}")

    a.label("L_PG")
    stamps.clear(); sreg[0] = 80
    I(f"buffer_store_dwordx4 v[{D}:{D+3}], v7, s[36:39], s56 offen sc1")
    srd(40, 20, 1376 * 1024)
    I("v_mul_u32_u24 v6, 6144, v3")
    I("v_lshl_add_u32 v6, v2, 4, v6")
    I("s_lshl_b32 s58, s28, 1")
    I("s_add_u32 s58, s58, s32")
    I("s_mul_i32 s52, s58, 24576")
    I("s_lshl_b32 s53, s33, 8")
    I("s_add_u32 s52, s52, s53")
    I("s_add_u32 s53, s52, 0x1000")
    def wdloads():
        for t in range(6):
            I(f"buffer_load_dwordx4 v[{BB+4*t}:{BB+4*t+3}], v6, s[40:43], s{52+t//4} offen offset:{(t%4)*1024} {wflag}")
    if not wdlate: wdloads()
    my_piece("s56", "s57")
    I("v_lshlrev_b32 v9, 4, v1")
    out_off("s56", "s57", "s58")
    I("v_lshlrev_b32 v7, 1, v3")
    I("buffer_load_ushort v124, v7, s[44:47], s56 offen")
    I("v_lshrrev_b32 v7, 3, v2")
    I("v_lshlrev_b32 v7, 9, v7")
    I("v_and_b32 v27, 7, v2")
    I("v_min_u32 v27, 2, v27")
    I("v_lshl_add_u32 v7, v27, 3, v7")
    I("v_mad_u32_u24 v7, v3, 24, v7")
    I("s_and_b32 s56, s28, 30")
    I("s_lshl_b32 s56, s56, 13")
    I("s_and_b32 s57, s28, 1")
    I("s_lshl_b32 s57, s57, 1")
    I("s_add_u32 s57, s57, s32")
    I("s_mul_i32 s57, s57, 96")
    I("s_add_u32 s56, s56, s57")
    for k in range(4):
        I(f"s_add_u32 s{60+k}, s56, {P1 + 0x1000*k}")
    G0 = 128
    a.label("L_PG_tail")
    if abl or noffn == 1:
        I("s_waitcnt vmcnt(0)"); ST(13)
        flush_stamps()
        I("s_endpgm")
    if qrel:
        ks_cur(28, "s56")
        I(f"s_add_u32 s56, s56, {glev}")
        I(f"s_min_u32 s56, s56, {16 // gran}")
        ks_wait(28, "s56")
    else: ks_wait(28, glev)
    gpoll([f"buffer_load_dwordx2 v[{G0+2*k}:{G0+1+2*k}], v7, s[36:39], s{60+k//4} offen offset:{1024*(k%4)} sc1" for k in range(16)],
          list(range(G0, G0 + 32)), "15", 27)
    ST(13)
    for base in (G0, G0 + 16):
        for k in range(4):
            I(f"v_pk_add_f32 v[{base+2*k}:{base+2*k+1}], v[{base+2*k}:{base+2*k+1}], v[{base+8+2*k}:{base+9+2*k}]")
        for k in range(2):
            I(f"v_pk_add_f32 v[{base+2*k}:{base+2*k+1}], v[{base+2*k}:{base+2*k+1}], v[{base+4+2*k}:{base+5+2*k}]")
        I(f"v_pk_add_f32 v[{base}:{base+1}], v[{base}:{base+1}], v[{base+2}:{base+3}]")
    I(f"v_cvt_pk_bf16_f32 v28, v{G0}, v{G0+1}")
    I(f"v_cvt_pk_bf16_f32 v29, v{G0+16}, v{G0+17}")
    I("v_lshlrev_b32 v30, 16, v28")
    I("v_and_b32 v31, 0xffff0000, v28")
    I(f"v_mul_f32 v30, {hex(f2u(-1.4426950408889634))}, v30")
    I(f"v_mul_f32 v31, {hex(f2u(-1.4426950408889634))}, v31")
    I("v_exp_f32 v30, v30")
    I("v_exp_f32 v31, v31")
    I("v_add_f32 v30, 1.0, v30")
    I("v_add_f32 v31, 1.0, v31")
    I("v_rcp_f32 v30, v30")
    I("v_rcp_f32 v31, v31")
    I("v_lshlrev_b32 v32, 16, v29")
    I("v_and_b32 v33, 0xffff0000, v29")
    I("v_cvt_pk_bf16_f32 v28, v30, v31")
    I("v_lshlrev_b32 v30, 16, v28")
    I("v_and_b32 v31, 0xffff0000, v28")
    I("v_mul_f32 v30, v30, v32")
    I("v_mul_f32 v31, v31, v33")
    I("v_cvt_pk_bf16_f32 v26, v30, v31")
    if wdlate:
        trig_wait(27, 1)
        wdloads()
        I("s_waitcnt vmcnt(0)")
    build_mfma(26, SEL, 18, AB, BB, D, 3)
    if merge:
        I("v_lshlrev_b32 v32, 16, v124")
        I("v_mov_b32 v33, 0")
        I("v_lshlrev_b32 v7, 3, v3")
        I(f"ds_write_b128 v9, v[{D}:{D+3}] offset:{L_YF}")
        I(f"ds_write_b64 v7, v[32:33] offset:{L_FX}")
        ST(14)
        flush_stamps()
        I("s_endpgm")

    a.raw("@@PEND@@")
    a.label("L_T")
    stamps.clear(); sreg[0] = 66
    tmode[0] = True
    if stamp == "dbg": stamps[0] = 64
    if prio: I("s_setprio 3")
    DT = 80 if nch > 1 else D
    I("v_lshlrev_b32 v6, 2, v1")
    for r in range(4): I(f"v_mov_b32 v{12+r}, -1")
    I("v_lshlrev_b32 v7, 4, v1")
    I(f"ds_write_b32 v6, v12 offset:{L_M}")
    I(f"ds_write_b128 v7, v[12:15] offset:{L_P2}")
    I("s_waitcnt lgkmcnt(0)")
    I("s_barrier")
    I(f"v_lshlrev_b32 v6, {10 + lg[nch == 4 and 4 or 1] * 0 + {16:4, 8:3, 4:2}[nt]}, v3")
    I("v_lshl_add_u32 v6, v2, 4, v6")
    my_piece("s58", "s59")
    I(f"s_lshl_b32 s52, s58, {10 + {64:6, 32:5, 16:4}[R]}")
    I(f"s_and_b32 s53, s29, {ncg-1}")
    I(f"s_lshl_b32 s53, s53, {8 + lg[nch]}")
    I("s_add_u32 s52, s52, s53")
    I("s_add_u32 s53, s52, 0x1000")
    I("s_add_u32 s54, s52, 0x2000")
    I("s_add_u32 s55, s52, 0x3000")
    I("s_mov_b32 s42, 0x400000"); I("s_mov_b32 s43, 0x20000")
    I("s_waitcnt lgkmcnt(0)")
    I("s_load_dword s31, s[26:27], 0")
    I("s_mov_b32 s40, s12"); I("s_mov_b32 s41, s13")
    def woload(k):
        t, cb = k // nch, k % nch
        I(f"buffer_load_dwordx4 v[{BB+4*k}:{BB+4*k+3}], v6, s[40:43], s{52+t//4} offen offset:{(t%4)*1024 + cb*256} {wflag}")
    for k in range(wopre): woload(k)
    srd(36, 26, WSN); srd(48, 22, 2048)
    make_sel(SEL, 27)
    assert nch == 1
    m2 = 1 if merge == 2 else 0
    HY = H2F if m2 else H2A
    I(f"v_lshlrev_b32 v8, {10 + m2}, v1")
    I(f"s_and_b32 s60, s29, {ncg-1}")
    I(f"s_lshl_b32 s60, s60, {16 + m2}")
    I(f"s_lshl_b32 s61, s58, {4 + m2}")
    I("s_add_u32 s60, s60, s61")
    I(f"s_add_u32 s60, s60, {HY}")
    I(f"v_lshlrev_b32 v9, {4 + m2}, v1")
    I("v_lshlrev_b32 v167, 4, v1")
    I(f"s_lshl_b32 s61, s59, {10 + m2}")
    I(f"s_add_u32 s61, s61, {HY}")
    out_off("s62", "s59", "s57")
    I("v_lshlrev_b32 v164, 1, v3")
    I("v_lshlrev_b32 v165, 3, v3")
    I("v_lshrrev_b32 v27, 3, v2")
    I("v_lshlrev_b32 v166, 4, v27")
    I("v_lshlrev_b32 v7, 11, v27")
    I(f"v_lshl_add_u32 v7, v3, {2 + {16:4, 8:3, 4:2}[nt]}, v7")
    I("v_and_b32 v27, 7, v2")
    if nt < 16: I(f"v_min_u32 v27, {nt//2 - 1}, v27")
    I("v_lshl_add_u32 v7, v27, 3, v7")
    I("s_lshl_b32 s56, s28, 12")
    I(f"s_lshr_b32 s57, s29, {lg[ncg]}")
    I(f"s_lshl_b32 s57, s57, {2 + {64:6, 32:5, 16:4}[R]}")
    I("s_add_u32 s56, s56, s57")
    I(f"s_add_u32 s56, s56, {H1O}")
    I("s_waitcnt lgkmcnt(0)")
    I("s_mul_i32 s31, s31, 1664525")
    I("s_add_u32 s31, s31, 1013904223")
    a.label("L_T_tail")
    I("s_mov_b32 s88, 0x00010001")
    I("s_mov_b32 s89, 0x00010001")
    trig_wait(27, 1)
    ST(24)
    for k in range(wopre, 16): woload(k)
    ST(8)
    if abl:
        I("s_waitcnt vmcnt(0)"); ST(9)
        flush_stamps()
        I("s_endpgm")
    FD = 28 if m2 else DT
    lds_spin(L_FX, 2, 44, addr="v165", sleep=1)
    I(f"ds_read_b128 v[{FD}:{FD+3}], v167 offset:{L_YF}")
    I("v_mov_b32 v167, v44")
    if m2:
        I("s_waitcnt lgkmcnt(0)")
        for r in range(4):
            I(f"v_bfi_b32 v{FD+r}, v5, s31, v{FD+r}")
    ST(15)
    lds_spin(L_OPUB, 1, 27)
    ST(28)
    gpoll([f"buffer_load_dwordx2 v[{32+2*s}:{33+2*s}], v7, s[36:39], s56 offen offset:{512*s} sc1" for s in range(4)],
          list(range(32, 40)), "v5", 27)
    ST(9)
    if noy == 1:
        flush_stamps()
        I("s_endpgm")
    lds_spin(L_W, 4, 40, addr="v166")
    I("v_mul_f32 v32, v32, v40")
    I("v_mul_f32 v33, v33, v40")
    for s in range(1, 4):
        I(f"v_fmac_f32 v32, v{32+2*s}, v{40+s}")
        I(f"v_fmac_f32 v33, v{33+2*s}, v{40+s}")
    I("v_cvt_pk_bf16_f32 v26, v32, v33")
    build_mfma(26, SEL, 18, AB, BB, DT, nt // 2, nch, cinit=not m2)
    if m2 and fearly: I(f"buffer_store_dwordx4 v[{FD}:{FD+3}], v8, s[36:39], s60 offen offset:16 sc1")
    for r in range(4):
        I(f"v_bfi_b32 v{DT+r}, v5, s31, v{DT+r}")
    I(f"buffer_store_dwordx4 v[{DT}:{DT+3}], v8, s[36:39], s60 offen sc1")
    if m2 and not fearly: I(f"buffer_store_dwordx4 v[{FD}:{FD+3}], v8, s[36:39], s60 offen offset:16 sc1")
    ST(10)
    if noy == 2:
        flush_stamps()
        I("s_endpgm")
    gpoll([f"buffer_load_dwordx4 v[{32+4*k}:{35+4*k}], v9, s[36:39], s61 offen offset:{16*k} sc1" for k in range(1 + m2)],
          list(range(32, 36 + 4 * m2)), "v5", 27)
    ST(11)
    if m2:
        reduce4x2(32, 36)
        I("v_cvt_pk_bf16_f32 v32, v32, v36")
        I("v_and_b32 v36, 0xffff0000, v32")
        I("v_lshlrev_b32 v32, 16, v32")
        I("v_add_f32 v32, v167, v32")
        I("v_cvt_pk_bf16_f32 v32, v32, v32")
        I("v_and_b32 v32, 0xffff0000, v32")
        I("v_add_f32 v32, v32, v36")
    else:
        reduce4(32)
        I("v_add_f32 v32, v167, v32")
    I("v_cvt_pk_bf16_f32 v32, v32, v32")
    I("s_mov_b64 exec, s[88:89]")
    I("buffer_store_short v32, v164, s[48:51], s62 offen")
    I("s_cmp_eq_u32 s2, 0")
    I("s_cbranch_scc0 L_t_end")
    EX(1)
    I("v_mov_b32 v33, s31")
    I("buffer_store_dword v33, v4, s[36:39], 0 offen sc1")
    a.label("L_t_end")
    dry_next("L_PG_tail")
    ST(12)
    flush_stamps()
    I("s_endpgm")
    a.label("L_end")
    I("s_endpgm")

    nv = a.maxv + 1
    head = HDR + f"""; @launch grid=(256,1,1) block=(704,1,1) lds={LDS_BYTES}
.amdgcn_target "amdgcn-amd-amdhsa--gfx950"
.text
.globl {KN}_kernel
.p2align 8
.type {KN}_kernel,@function
{KN}_kernel:
"""
    foot = f""".section .rodata,"a"
.p2align 6
.amdhsa_kernel {KN}_kernel
  .amdhsa_next_free_vgpr {nv}
  .amdhsa_next_free_sgpr {max(a.maxs + 1, 16)}
  .amdhsa_accum_offset {(nv + 3) // 4 * 4}
  .amdhsa_group_segment_fixed_size 0
  .amdhsa_kernarg_size 96
  .amdhsa_user_sgpr_count 2
  .amdhsa_user_sgpr_kernarg_segment_ptr 1
  .amdhsa_system_sgpr_workgroup_id_x 1
  .amdhsa_float_denorm_mode_32 3
.end_amdhsa_kernel
"""
    txt = a.text()
    i0 = txt.index("@@PBEG@@\n"); i1 = txt.index("@@PEND@@\n")
    P = txt[i0 + 9:i1]
    txt = txt[:i0] + txt[i1 + 9:]
    txt = txt.replace("@@P@@\n", P)
    return head + txt + foot

if __name__ == "__main__":
    import json
    name = sys.argv[1]; kw = {}
    for x in sys.argv[2:]:
        k, v = x.split("="); kw[k] = eval(v)
    open(name, "w").write(gen(**kw))
```

```python
import sys, struct
from asmlib import Asm
from common import KN
def f2u(x): return struct.unpack("<I", struct.pack("<f", x))[0]

HDR = open("cdna_kernels/" + KN + ".s.ref").read().split("; Override launch")[0]

PX = 0x140000; P0 = 0x10000; P1 = 0x50000; H1S = 0x90000; H1O = 0xA0000; H2F = 0xC0000; H2A = 0x100000
L_Q = 0x000; L_M = 0x100; L_L = 0x110; L_W = 0x120; L_FX = 0x140; L_FQ = 0x160; L_TRIG = 0x164; L_OCNT = 0x168; L_OPUB = 0x16c; L_KS = 0x170; L_YPUB = 0x180; L_QP = 0x184; L_P2 = 0x200; L_PART = 0x600; L_YF = 0xE00
LDS_BYTES = 0x1200

def gen(stamp=False, kvflag="nt", wflag="nt", prio=True, R=64, fast=True, wopre=0, qfast=True, sw=0, abl=0, gran=4, lag=0, qlev=(2,), glev=2, kwin=0, vwin=0, rot=0, noffn=0, noy=0, ysleep=0, fdefer=0, qrel=0, wdlate=0, wotrig=0, merge=1, fearly=0, ncons=32, fin='F', fwait=1, ring=0, ldf='sc1', stf='sc1', smtest=0, k0=0, kmode=0, vq=0, ln2=0, dry=0, warm=0, pad=64, w2='', dbgs=(0, 22, 5, 6, 21, 9, 10, 12)):
    a = Asm(); I = a.i
    uid = [0]
    def lab(p):
        uid[0] += 1; return f"L_{p}_{uid[0]}"
    SC = "s34"
    stamps = {}
    sreg = [64]
    DBG = dict(zip(dbgs, range(8)))
    tmode = [False]
    def ST(slot):
        if not stamp: return
        if stamp == "dbg":
            if slot not in DBG: return
            slot = DBG[slot]
        r = sreg[0]; sreg[0] += 2
        stamps[slot] = r
        I(f"s_memrealtime s[{r}:{r+1}]")
    def flush_stamps():
        if not stamp: return
        if not stamps: return
        I("s_mov_b64 exec, 1")
        I("s_waitcnt lgkmcnt(0)")
        if stamp == "dbg":
            fin_ = 7 in stamps
            for slot, r in stamps.items():
                I(f"v_mov_b32 v6, s{r}")
                I(f"ds_write_b32 v4, v6 offset:{0x1c0 + 4*slot}")
            if tmode[0] or fin_:
                srd(96, 24, 256)
                I("s_mov_b64 exec, " + ("0x80" if fin_ else "0x7f"))
                I("v_lshlrev_b32 v7, 2, v1")
                I("ds_read_b32 v6, v7 offset:0x1c0")
                I("s_waitcnt lgkmcnt(0)")
                I("buffer_atomic_umax v6, v7, s[96:99], 0 offen sc1")
                I("v_not_b32 v8, v6")
                I("buffer_atomic_umax v8, v7, s[96:99], 0 offen offset:32 sc1")
            stamps.clear(); sreg[0] = 64
            return
        I("s_lshl_b32 s52, s2, 7")
        I("s_add_u32 s52, s52, 0x8000000")
        for slot, r in stamps.items():
            I(f"v_mov_b32 v6, s{r}")
            I(f"buffer_store_dword v6, v4, s[36:39], s52 offen offset:{4*slot}")
        stamps.clear(); sreg[0] = 64
    def lds_spin(off, n, dst, addr="v4", sleep=0):
        L = lab("spin"); O = lab("spino")
        a.label(L)
        if sleep: I(f"s_sleep {sleep}")
        if n == 1: I(f"ds_read_b32 v{dst}, {addr} offset:{off}")
        elif n == 2: I(f"ds_read_b64 v[{dst}:{dst+1}], {addr} offset:{off}")
        else: I(f"ds_read_b128 v[{dst}:{dst+3}], {addr} offset:{off}")
        I(f"s_sub_u32 {SC}, {SC}, 1")
        I("s_waitcnt lgkmcnt(0)")
        I("s_cbranch_scc1 L_end")
        t = dst
        if n == 2:
            t = dst + 2; I(f"v_max_u32 v{t}, v{dst}, v{dst+1}")
        if n == 4:
            t = dst + 4
            I(f"v_max3_u32 v{t}, v{dst}, v{dst+1}, v{dst+2}")
            I(f"v_max_u32 v{t}, v{t}, v{dst+3}")
        I(f"v_cmp_eq_u32 vcc, -1, v{t}")
        I(f"s_cbranch_vccnz {L}")
        a.label(O)
    def trig_wait(tmp, k):
        L = lab("trig"); O = lab("trigo")
        a.label(L)
        I("s_sleep 1")
        I(f"ds_read_b32 v{tmp}, v4 offset:{L_TRIG}")
        I(f"s_sub_u32 {SC}, {SC}, 1")
        I("s_waitcnt lgkmcnt(0)")
        I("s_cbranch_scc1 L_end")
        I(f"v_cmp_gt_i32 vcc, {4*k-1}, v{tmp}")
        I(f"s_cbranch_vccnz {L}")
        a.label(O)
    def ks_wait(tmp, lev, one=None):
        L = lab("ks")
        a.label(L)
        I("s_sleep 1")
        if one: I(f"ds_read_b32 v{tmp}, {one} offset:{L_KS}")
        else: I(f"ds_read_b128 v[{tmp}:{tmp+3}], v4 offset:{L_KS}")
        I(f"s_sub_u32 {SC}, {SC}, 1")
        I("s_waitcnt lgkmcnt(0)")
        I("s_cbranch_scc1 L_end")
        if not one:
            I(f"v_min3_i32 v{tmp}, v{tmp}, v{tmp+1}, v{tmp+2}")
            I(f"v_min_i32 v{tmp}, v{tmp}, v{tmp+3}")
        I(f"v_cmp_gt_i32 vcc, {lev}, v{tmp}")
        I(f"s_cbranch_vccnz {L}")
    def ks_cur(tmp, dst):
        I(f"ds_read_b128 v[{tmp}:{tmp+3}], v4 offset:{L_KS}")
        I("s_waitcnt lgkmcnt(0)")
        I(f"v_min3_i32 v{tmp}, v{tmp}, v{tmp+1}, v{tmp+2}")
        I(f"v_min_i32 v{tmp}, v{tmp}, v{tmp+3}")
        I(f"v_max_i32 v{tmp}, 0, v{tmp}")
        I(f"v_readfirstlane_b32 {dst}, v{tmp}")
    def gpoll(loads, words, tagmask, acc):
        L = lab("poll"); O = lab("pollo")
        a.label(L)
        for l in loads: I(l)
        I(f"s_sub_u32 {SC}, {SC}, 64")
        I("s_waitcnt vmcnt(0)")
        I("s_cbranch_scc1 L_end")
        I(f"v_xor_b32 v{acc}, s31, v{words[0]}")
        for w in words[1:]:
            I(f"v_bitop3_b32 v{acc}, v{acc}, v{w}, s31 bitop3:0xf6")
        I(f"v_and_b32 v{acc}, {tagmask}, v{acc}")
        I(f"v_cmp_ne_u32 vcc, 0, v{acc}")
        I(f"s_cbranch_vccnz {L}")
        a.label(O)
    def srd(d, lo, n):
        I(f"s_mov_b32 s{d}, s{lo}"); I(f"s_mov_b32 s{d+1}, s{lo+1}")
        I(f"s_mov_b32 s{d+2}, {hex(n)}"); I(f"s_mov_b32 s{d+3}, 0x20000")
    DPP = "row_mask:0xf bank_mask:0xf"
    def make_sel(S, t0):
        I(f"v_and_b32 v{t0}, 1, v2")
        I(f"v_cmp_eq_u32 vcc, 1, v{t0}")
        I(f"v_bfe_u32 v{t0}, v2, 1, 2")
        I(f"v_mov_b32 v{t0+3}, 0x0c0c0c0c")
        for e in range(2):
            ev = 0x0c0c0000 | (2*e+1) << 8 | (2*e)
            od = (2*e+1) << 24 | (2*e) << 16 | 0x0c0c
            I(f"v_mov_b32 v{S}, {hex(ev)}")
            I(f"v_mov_b32 v{S+1}, {hex(od)}")
            I(f"v_cndmask_b32 v{t0+1+e}, v{S}, v{S+1}, vcc")
        for i in range(4):
            I(f"v_cmp_eq_u32 vcc, {i}, v{t0}")
            for e in range(2):
                I(f"v_cndmask_b32 v{S+4*e+i}, v{t0+3}, v{t0+1+e}, vcc")
    def build_mfma(Q, S, TMP, AB, BB, D, npair, nch=1, cinit=False):
        for u in range(npair):
            I(f"v_mov_b32_dpp v{TMP+u}, v{Q} row_newbcast:{u} row_mask:0xf bank_mask:0x3")
            I(f"v_mov_b32_dpp v{TMP+u}, v{Q} row_newbcast:{8+u} row_mask:0xf bank_mask:0xc")
        n = 2 * npair
        def perm(t):
            for i in range(4):
                I(f"v_perm_b32 v{AB+4*t+i}, v{TMP+t//2}, v{TMP+t//2}, v{S+4*(t%2)+i}")
        def mf(t):
            for cb in range(nch):
                d = D + 4 * cb; bb = BB + 4 * (t * nch + cb)
                c = "0" if (t == 0 and not cinit) else f"v[{d}:{d+3}]"
                I(f"v_mfma_f32_16x16x32_bf16 v[{d}:{d+3}], v[{AB+4*t}:{AB+4*t+3}], v[{bb}:{bb+3}], {c}")
        perm(0)
        for t in range(n):
            if t + 1 < n: perm(t + 1)
            mf(t)
    def tagcheck(words, tagmask, acc):
        I(f"v_xor_b32 v{acc}, s31, v{words[0]}")
        for w in words[1:]:
            I(f"v_bitop3_b32 v{acc}, v{acc}, v{w}, s31 bitop3:0xf6")
        I(f"v_and_b32 v{acc}, {tagmask}, v{acc}")
        I(f"v_cmp_ne_u32 vcc, 0, v{acc}")
    def reduce4(V):
        I(f"v_permlane32_swap_b32 v{V}, v{V+2}")
        I(f"v_permlane32_swap_b32 v{V+1}, v{V+3}")
        I(f"v_add_f32 v{V}, v{V}, v{V+2}")
        I(f"v_add_f32 v{V+1}, v{V+1}, v{V+3}")
        I(f"v_permlane16_swap_b32 v{V}, v{V+1}")
        I(f"v_add_f32 v{V}, v{V}, v{V+1}")
        for r in (8, 4, 2, 1):
            I(f"v_add_f32_dpp v{V}, v{V}, v{V} row_ror:{r} {DPP}")

    def reduce4x2(V, W):
        for X in (V, W):
            I(f"v_permlane32_swap_b32 v{X}, v{X+2}")
            I(f"v_permlane32_swap_b32 v{X+1}, v{X+3}")
        for X in (V, W):
            I(f"v_add_f32 v{X}, v{X}, v{X+2}")
            I(f"v_add_f32 v{X+1}, v{X+1}, v{X+3}")
        for X in (V, W): I(f"v_permlane16_swap_b32 v{X}, v{X+1}")
        for X in (V, W): I(f"v_add_f32 v{X}, v{X}, v{X+1}")
        for r in (8, 4, 2, 1):
            for X in (V, W): I(f"v_add_f32_dpp v{X}, v{X}, v{X} row_ror:{r} {DPP}")

    def seg(k, end=False):
        if not dry: return
        if k > 0: I("s_cbranch_execz L_dret")
        if not end: a.label(f"L_seg{k}")
    WSN = 0x10000000 if stamp else 0x200000
    nch = 64 // R; ncg = 4 // nch; nrb = 128 // R; nt = R // 4
    def EX(m): I(f"s_mov_b64 exec, {m}")
    def dry_next(lbl): pass
    ST(0)
    I("s_load_dwordx16 s[4:19], s[0:1], 0")
    I("s_load_dwordx8 s[20:27], s[0:1], 64")
    I("v_lshrrev_b32 v6, 6, v0")
    I("s_cmp_ge_u32 s2, 256")
    I("v_readfirstlane_b32 s30, v6")
    I("s_cbranch_scc1 L_end")
    I("v_and_b32 v1, 63, v0")
    I("s_and_b32 s28, s2, 7")
    I("s_lshl_b32 s28, s28, 2")
    I("s_lshr_b32 s29, s2, 6")
    I("s_add_u32 s28, s28, s29")
    I("s_bfe_u32 s29, s2, 0x30003")
    I("s_lshr_b32 s32, s29, 2")
    I("s_and_b32 s33, s29, 3")
    I("s_lshl_b32 s35, s28, 3")
    I("s_add_u32 s35, s35, s29")
    I(f"s_mov_b32 {SC}, 0x100000")
    I("v_and_b32 v2, 15, v1")
    I("v_lshrrev_b32 v3, 4, v1")
    I("v_mov_b32 v4, 0")
    I("v_mov_b32 v5, 0xff")
    def stage1(wr, w0):
        G = lab("wpc")
        I("s_getpc_b64 s[96:97]")
        a.label(G)
        I(f"s_sub_u32 s98, {wr}, {w0}")
        I("s_lshl_b32 s98, s98, 5")
        I("s_lshr_b32 s99, s2, 3")
        I("s_add_u32 s98, s98, s99")
        I("s_cmp_ge_u32 s98, @@W1LIM@@")
        I("s_cbranch_scc1 L_w1_done")
        I("s_lshl_b32 s98, s98, 7")
        I(f"s_add_u32 s96, s96, @@OFF:L_P:{G}@@")
        I(f"s_addc_u32 s97, s97, @@OFFH:L_P:{G}@@")
        I("s_add_u32 s98, s98, s96")
        I("s_addc_u32 s99, s97, 0")
        a.raw("@@NOPAD@@")
        EX(0)
        I("s_swappc_b64 s[100:101], s[98:99]")
        EX(-1)
        a.raw("@@PADOK@@")
        a.label("L_w1_done")
        s1lab.append(G)
    s1lab = []
    if warm:
        I("s_cmp_lt_u32 s30, 2")
        I("s_cbranch_scc1 L_P")
        if warm == 1: stage1("s30", 6)
        I("s_cmp_eq_u32 s30, 10")
        I("s_cbranch_scc1 L_T")
        I("s_branch L_S")
        a.label("L_wret")
        I("s_setpc_b64 s[100:101]")
        a.label("L_P")
        a.raw("@@PADSTART@@")
    else:
        I("s_cmp_eq_u32 s30, 10")
        I("s_cbranch_scc1 L_T")
        I("s_cmp_ge_u32 s30, 2")
        I("s_cbranch_scc1 L_S")
    a.raw("@@P@@")
    def walk(l0, l1, nw=1, wreg=None):
        L = lab("walk"); E = lab("walke"); G = lab("wpc")
        I("s_getpc_b64 s[98:99]")
        a.label(G)
        I(f"s_add_u32 s98, s98, @@OFF:{l0}:{G}@@")
        I(f"s_addc_u32 s99, s99, @@OFFH:{l0}:{G}@@")
        if wreg:
            I(f"s_mul_i32 s96, {wreg}, {pad}")
            I("s_add_u32 s98, s98, s96")
            I("s_addc_u32 s99, s99, 0")
            I(f"s_sub_i32 s97, @@CNT:{l0}:{l1}:{G}@@, {wreg}")
        else:
            I(f"s_and_b32 s97, s2, 0x10000")
            I(f"s_sub_i32 s97, @@CNT:{l0}:{l1}:{G}@@, s97")
        a.raw("@@NOPAD@@")
        EX(0)
        a.label(L)
        I("s_cmp_le_i32 s97, 0")
        I(f"s_cbranch_scc1 {E}")
        I("s_swappc_b64 s[100:101], s[98:99]")
        I(f"s_add_u32 s98, s98, {pad * nw}")
        I("s_addc_u32 s99, s99, 0")
        I(f"s_sub_i32 s97, s97, {nw}")
        I(f"s_branch {L}")
        a.label(E)
        EX(-1)
        a.raw("@@PADOK@@")

    a.label("L_S")
    KB, VB, ACC, D = 32, 96, 16, 160
    I("s_sub_u32 s30, s30, 2")
    I("s_lshr_b32 s59, s30, 2")
    I("s_and_b32 s30, s30, 3")
    I("v_lshlrev_b32 v6, 4, v1")
    I("s_lshl_b32 s52, s32, 25")
    I("s_lshl_b32 s53, s28, 20")
    I("s_add_u32 s52, s52, s53")
    I("s_lshl_b32 s53, s33, 16")
    I("s_add_u32 s52, s52, s53")
    I("s_lshl_b32 s53, s30, 14")
    I("s_add_u32 s52, s52, s53")
    I("s_add_u32 s52, s52, 0xC0000")
    if rot == 1:
        I("s_add_u32 s60, s28, s29")
        for k in (3, 2, 1, 0):
            I(f"s_add_u32 s61, s60, {k}"); I("s_and_b32 s61, s61, 3"); I("s_lshl_b32 s61, s61, 12")
            I(f"s_add_u32 s{52+k}, s52, s61")
    elif rot == 2:
        I("s_lshl_b32 s60, s29, 1"); I("s_xor_b32 s60, s60, s28"); I("s_and_b32 s60, s60, 15"); I("s_lshl_b32 s60, s60, 10")
        for k in range(16):
            I(f"s_xor_b32 s{96-16-12+k if False else 44+k if k < 8 else 72+k}, s60, {k << 10}")
            r = 44 + k if k < 8 else 72 + k
            I(f"s_add_u32 s{r}, s{r}, s52")
    else:
        I("s_add_u32 s53, s52, 0x1000")
        I("s_add_u32 s54, s52, 0x2000")
        I("s_add_u32 s55, s52, 0x3000")
    I("s_mov_b32 s42, 0x4000000"); I("s_mov_b32 s43, 0x20000")
    I("s_lshl_b32 s56, s30, 2")
    I("v_mov_b32 v165, s56")
    I("s_lshl_b32 s56, s30, 8")
    I("v_lshl_add_u32 v167, v1, 2, s56")
    I("v_lshlrev_b32 v166, 4, v2")
    def dryjump():
        EX(0)
        for k in range(3):
            I(f"s_cmp_eq_u32 s30, {k}")
            I(f"s_cbranch_scc1 L_seg{k}")
        I("s_branch L_seg3")
        a.label("L_dret")
        EX(-1)
    if dry == 2:
        I("s_cmp_eq_u32 s59, 1")
        I("s_cbranch_scc0 L_nodry")
        dryjump()
        a.label("L_nodry")
    I("s_waitcnt lgkmcnt(0)")
    I("s_mov_b32 s40, s6"); I("s_mov_b32 s41, s7")
    I("s_cmp_eq_u32 s59, 1")
    I("s_barrier")
    I("s_cbranch_scc1 L_V")
    def tload(base, t):
        if rot == 2:
            r = 44 + t if t < 8 else 72 + t
            I(f"buffer_load_dwordx4 v[{base+4*t}:{base+4*t+3}], v6, s[40:43], s{r} offen {kvflag}")
            return
        I(f"buffer_load_dwordx4 v[{base+4*t}:{base+4*t+3}], v6, s[40:43], s{52+t//4} offen offset:{(t%4)*1024} {kvflag}")
    ST(22)
    nlev = 16 // gran
    lev = 0
    for t in range(16):
        if k0 and t == k0:
            if kmode == 0: I(f"s_waitcnt vmcnt({k0-1})")
            else: lds_spin(L_QP, 1, 12, sleep=1)
        if kwin and t >= kwin:
            I(f"s_waitcnt vmcnt({kwin-1})")
        tload(KB, t)
        if kwin and t >= kwin and (t - kwin + 1) % gran == 0:
            lev = (t - kwin + 1) // gran
            I(f"v_mov_b32 v12, {lev}")
            I(f"ds_write_b32 v165, v12 offset:{L_KS}")
    ST(25)
    I("s_mov_b32 s88, 0xcccccccc"); I("s_mov_b32 s89, 0xcccccccc")
    I("s_mov_b32 s90, 0xaaaaaaaa"); I("s_mov_b32 s91, 0xaaaaaaaa")
    if stamp: srd(36, 26, WSN)
    for k in range(lev + 1, nlev + 1):
        I(f"v_mov_b32 v12, {k}")
        I(f"s_waitcnt vmcnt({16 - k*gran})")
        I(f"ds_write_b32 v165, v12 offset:{L_KS}")
    ST(26)
    if abl:
        I(f"s_cmp_eq_u32 s30, {sw}")
        I("s_cbranch_scc0 L_end")
        flush_stamps()
        I("s_endpgm")
    a.label("L_Ksm")
    lds_spin(L_FQ, 1, 16, sleep=1)
    I(f"ds_read_b128 v[12:15], v166 offset:{L_Q}")
    ST(2)
    I("s_waitcnt lgkmcnt(0)")
    for t in range(0, 16, 2):
        for i in range(4):
            for tt in (t, t + 1):
                c = "0" if i == 0 else f"v{ACC+tt}"
                I(f"v_dot2_f32_bf16 v{ACC+tt}, v{KB+4*tt+i}, v{12+i}, {c}")
    for t in range(8):
        I(f"v_add_f32_dpp v{ACC+t}, v{ACC+t}, v{ACC+t} row_ror:8 row_mask:0xf bank_mask:0x3")
    for t in range(8):
        I(f"v_add_f32_dpp v{ACC+t}, v{ACC+t+8}, v{ACC+t+8} row_ror:8 row_mask:0xf bank_mask:0xc")
    for t in range(4):
        I(f"v_add_f32_dpp v{ACC+t}, v{ACC+t}, v{ACC+t} row_shl:4 row_mask:0xf bank_mask:0x5")
    for t in range(4):
        I(f"v_add_f32_dpp v{ACC+t}, v{ACC+t+4}, v{ACC+t+4} row_shr:4 row_mask:0xf bank_mask:0xa")
    for t in range(4):
        I(f"v_add_f32_dpp v{ACC+t}, v{ACC+t}, v{ACC+t} quad_perm:[2,3,0,1] {DPP}")
    I(f"v_cndmask_b32 v{ACC}, v{ACC}, v{ACC+2}, s[88:89]")
    I(f"v_cndmask_b32 v{ACC+1}, v{ACC+1}, v{ACC+3}, s[88:89]")
    for t in range(2):
        I(f"v_add_f32_dpp v{ACC+t}, v{ACC+t}, v{ACC+t} quad_perm:[1,0,3,2] {DPP}")
    I(f"v_cndmask_b32 v16, v16, v17, s[90:91]")
    I("v_cvt_pk_bf16_f32 v16, v16, v16")
    I("v_and_b32 v16, 0xffff0000, v16")
    I(f"v_mul_f32 v16, {hex(f2u(128 ** -0.5))}, v16")
    I("v_cvt_pk_bf16_f32 v16, v16, v16")
    I("v_and_b32 v16, 0xffff0000, v16")
    I(f"v_max_f32_dpp v17, v16, v16 row_ror:8 {DPP}")
    for r in (4, 2, 1):
        I(f"v_max_f32_dpp v17, v17, v17 row_ror:{r} {DPP}")
    I("v_mov_b32 v18, v17")
    I("v_permlane16_swap_b32 v17, v18")
    I("v_max_f32 v17, v17, v18")
    I("v_mov_b32 v18, v17")
    I("v_permlane32_swap_b32 v17, v18")
    I("v_max_f32 v17, v17, v18")
    I(f"ds_write_b32 v165, v17 offset:{L_M}")
    if not smtest: ST(23)
    lds_spin(L_M, 4, 20)
    I("v_max3_f32 v17, v20, v21, v22")
    I("v_max_f32 v17, v17, v23")
    I("v_sub_f32 v16, v16, v17")
    I(f"v_mul_f32 v16, {hex(f2u(1.4426950408889634))}, v16")
    I("v_exp_f32 v16, v16")
    I("v_cvt_pk_bf16_f32 v19, v16, v16")
    I(f"ds_write_b32 v167, v19 offset:{L_P2}")
    I(f"v_add_f32_dpp v17, v16, v16 row_ror:8 {DPP}")
    for r in (4, 2, 1):
        I(f"v_add_f32_dpp v17, v17, v17 row_ror:{r} {DPP}")
    I("v_mov_b32 v18, v17")
    I("v_permlane16_swap_b32 v17, v18")
    I("v_add_f32 v17, v17, v18")
    I("v_mov_b32 v18, v17")
    I("v_permlane32_swap_b32 v17, v18")
    I("v_add_f32 v17, v17, v18")
    I(f"ds_write_b32 v165, v17 offset:{L_L}")
    ST(27)
    if stamp:
        I(f"s_cmp_eq_u32 s30, {sw}")
        I("s_cbranch_scc0 L_end")
        flush_stamps()
    I("s_endpgm")

    a.label("L_V")
    stamps.clear(); sreg[0] = 66
    if dry == 1: dryjump()
    if warm == 2: stage1("s30", 0)
    if 'v' in w2: walk("L_V", "L_T", 4, "s30")
    if 'k' in w2: walk("L_Ksm", "L_V", 4, "s30")
    I("v_and_b32 v12, 1, v2")
    I("v_lshlrev_b32 v12, 4, v12")
    I("v_mov_b32 v13, 0xffff")
    I("v_lshlrev_b32 v12, v12, v13")
    I("v_lshrrev_b32 v13, 1, v2")
    for i in range(4):
        I(f"v_cmp_eq_u32 vcc, {i}, v13")
        I(f"v_cndmask_b32 v{8+i}, 0, v12, vcc")
    I("v_and_b32 v7, 1, v3")
    I("v_lshlrev_b32 v7, 4, v7")
    I("v_lshl_add_u32 v7, v2, 5, v7")
    I("s_lshl_b32 s56, s30, 9")
    I("v_add_u32 v164, s56, v7")
    I(f"s_lshl_b32 s57, s35, 9")
    I(f"s_add_u32 s57, s57, {H1O}")
    I("v_mov_b32 v12, 1")
    I("s_load_dword s31, s[26:27], 0")
    I("s_mov_b32 s40, s8"); I("s_mov_b32 s41, s9")
    srd(36, 26, WSN)
    I("s_waitcnt lgkmcnt(0)")
    I("s_mul_i32 s31, s31, 1664525")
    I("s_add_u32 s31, s31, 1013904223")
    for t in range(16):
        if t % gran == 0:
            lev = t // gran + 1 + lag
            if 1 <= lev <= nlev: ks_wait(13, lev, one="v165")
        if vwin and t >= vwin: I(f"s_waitcnt vmcnt({vwin-1})")
        tload(VB, t)
    if wotrig: I(f"s_waitcnt vmcnt({16 - wotrig})")
    I("s_mov_b64 exec, 1")
    I(f"ds_add_u32 v4, v12 offset:{L_TRIG}")
    I("s_mov_b64 exec, -1")
    ST(1)
    if abl:
        I("s_waitcnt vmcnt(0)"); ST(21)
        I(f"s_cmp_eq_u32 s30, {sw}")
        I("s_cbranch_scc0 L_end")
        flush_stamps()
        I("s_endpgm")
    lds_spin(L_P2, 1, 19, addr="v167")
    I(f"ds_read_b32 v16, v4 offset:{L_FQ}")
    for t in range(16):
        for i in range(4):
            I(f"v_and_b32_dpp v{KB+4*t+i}, v19, v{8+i} row_newbcast:{t} {DPP}")
    I("s_waitcnt lgkmcnt(0)")
    I("v_readfirstlane_b32 s58, v16")
    ST(3)
    for t in range(16):
        I(f"s_waitcnt vmcnt({15-t})")
        if t == 15: ST(21)
        c = "0" if t == 0 else f"v[{D}:{D+3}]"
        I(f"v_mfma_f32_16x16x32_bf16 v[{D}:{D+3}], v[{KB+4*t}:{KB+4*t+3}], v[{VB+4*t}:{VB+4*t+3}], {c}")
    EX("0xffffffff")
    I(f"ds_write_b128 v164, v[{D}:{D+3}] offset:{L_PART}")
    EX(1)
    I(f"ds_add_rtn_u32 v13, v4, v12 offset:{L_OCNT}")
    EX("0xffffffff")
    for w in range(4):
        I(f"ds_read_b128 v[{16+4*w}:{19+4*w}], v7 offset:{L_PART+512*w}")
    I("s_waitcnt lgkmcnt(0)")
    I("v_readfirstlane_b32 s56, v13")
    I("v_pk_add_f32 v[16:17], v[16:17], v[20:21]")
    I("v_pk_add_f32 v[18:19], v[18:19], v[22:23]")
    I("s_cmp_eq_u32 s56, 2")
    I("s_cbranch_scc0 L_s_end")
    I("v_pk_add_f32 v[24:25], v[24:25], v[28:29]")
    I("v_pk_add_f32 v[26:27], v[26:27], v[30:31]")
    I("v_pk_add_f32 v[16:17], v[16:17], v[24:25]")
    I("v_pk_add_f32 v[18:19], v[18:19], v[26:27]")
    I("s_cmp_eq_u32 s58, 1")
    for r in range(4):
        I(f"v_bfi_b32 v{16+r}, v5, s31, v{16+r}")
    I("s_cbranch_scc1 L_s_fast")
    I("buffer_store_dwordx4 v[16:19], v7, s[36:39], s57 offen sc1")
    I("s_branch L_s_pub")
    a.label("L_s_fast")
    I("buffer_store_dwordx4 v[16:19], v7, s[36:39], s57 offen")
    a.label("L_s_pub")
    I("v_and_b32 v20, v5, v16")
    I(f"ds_write_b32 v4, v20 offset:{L_OPUB}")
    if stamp:
        keep = dict(stamps); stamps.clear(); ST(4); sv = sreg[0]; flush_stamps(); stamps.update(keep); sreg[0] = sv
    a.label("L_s_end")
    if stamp:
        I(f"s_cmp_eq_u32 s30, {sw}")
        I("s_cbranch_scc0 L_end")
        flush_stamps()
    I("s_endpgm")

    a.raw("@@PBEG@@")
    stamps.clear(); sreg[0] = 66
    if prio: I("s_setprio 2")
    AB, BB, SEL = 32, 96, 10
    I("s_lshr_b32 s56, s28, 1")
    I("s_cmp_eq_u32 s30, 0")
    I("s_movk_i32 s52, 2752"); I("s_movk_i32 s53, 192"); I("s_movk_i32 s55, 172"); I("s_mov_b32 s42, 1409024")
    I("s_cselect_b32 s52, 8192, s52")
    I("s_cselect_b32 s53, 256, s53")
    I("s_cselect_b32 s54, 16, 12")
    I("s_cselect_b32 s55, 512, s55")
    I("s_cselect_b32 s42, 0x400000, s42")
    I("s_cselect_b32 s56, s28, s56")
    I("s_mul_i32 s57, s56, s54")
    I("s_sub_i32 s55, s55, s57")
    I("s_min_i32 s54, s54, s55")
    I("s_mul_i32 s53, s53, s56")
    I("s_lshl_b32 s56, s29, 6")
    I("s_mul_i32 s56, s56, s52")
    I("s_add_u32 s53, s53, s56")
    I("s_lshl_b32 s56, s52, 4")
    I("v_mul_lo_u32 v6, v3, s56")
    I("v_lshl_add_u32 v6, v2, 4, v6")
    I("v_cmp_gt_i32 vcc, s54, v2")
    I("v_mov_b32 v7, 0x80000000")
    I("v_cndmask_b32 v6, v7, v6, vcc")
    I("v_lshrrev_b32 v9, 3, v2")
    I("v_and_b32 v26, 7, v2")
    I("v_lshlrev_b32 v9, 10, v9")
    I("v_lshl_add_u32 v7, v3, 8, v9")
    I("v_lshl_add_u32 v7, v26, 5, v7")
    I("v_lshl_add_u32 v8, v3, 5, v9")
    I("v_lshl_add_u32 v8, v26, 2, v8")
    I("s_lshl_b32 s56, s29, 7")
    I("s_mov_b32 s46, 2048"); I("s_mov_b32 s47, 0x20000"); I("s_mov_b32 s43, 0x20000")
    I("s_bitcmp1_b32 s28, 0")
    I("s_waitcnt lgkmcnt(0)")
    ST(16)
    I("s_mov_b32 s44, s4"); I("s_mov_b32 s45, s5")
    I("buffer_load_dwordx4 v[18:21], v7, s[44:47], 0 offen")
    I("buffer_load_dwordx4 v[22:25], v7, s[44:47], 0 offen offset:16")
    I("buffer_load_dword v26, v8, s[44:47], s56 offen")
    I("s_cselect_b32 s40, s18, s16")
    I("s_cselect_b32 s41, s19, s17")
    I("s_cmp_eq_u32 s30, 0")
    I("s_cselect_b32 s40, s10, s40")
    I("s_cselect_b32 s41, s11, s41")
    for t in range(16):
        I(f"buffer_load_dwordx4 v[{BB+4*t}:{BB+4*t+3}], v6, s[40:43], s53 offen {wflag}")
        if t < 15: I("s_add_u32 s53, s53, s52")
    I("s_barrier")
    I("s_load_dword s31, s[26:27], 0")
    srd(36, 26, WSN)
    I("s_getreg_b32 s59, hwreg(HW_REG_XCC_ID, 0, 4)")
    make_sel(SEL, 27)
    I("v_mov_b32 v27, 0x3f803f80")
    I("s_waitcnt vmcnt(16)")
    ST(17)
    seg(0)
    if ln2:
        I("v_dot2_f32_bf16 v28, v18, v27, 0")
        I("v_dot2_f32_bf16 v30, v18, v18, 0")
        for k in range(1, 8):
            I(f"v_dot2_f32_bf16 v28, v{18+k}, v27, v28")
            I(f"v_dot2_f32_bf16 v30, v{18+k}, v{18+k}, v30")
        for m in ("quad_perm:[1,0,3,2]", "quad_perm:[2,3,0,1]", "row_half_mirror"):
            for r in (28, 30): I(f"v_add_f32_dpp v{r}, v{r}, v{r} {m} {DPP}")
        for sw_ in ("v_permlane16_swap_b32", "v_permlane32_swap_b32"):
            for r in (28, 30): I(f"v_mov_b32 v{r+1}, v{r}")
            for r in (28, 30): I(f"{sw_} v{r}, v{r+1}")
            for r in (28, 30): I(f"v_add_f32 v{r}, v{r}, v{r+1}")
        I(f"v_mul_f32 v28, {hex(f2u(1/512))}, v28")
        I(f"v_mul_f32 v30, {hex(f2u(1/512))}, v30")
        I("v_fma_f32 v30, -v28, v28, v30")
        I("v_max_f32 v30, 0, v30")
    else:
        I("v_dot2_f32_bf16 v28, v18, v27, 0")
        I("v_dot2_f32_bf16 v29, v19, v27, 0")
        for k in range(2, 8, 2):
            I(f"v_dot2_f32_bf16 v28, v{18+k}, v27, v28")
            I(f"v_dot2_f32_bf16 v29, v{19+k}, v27, v29")
        for k in range(8):
            I(f"v_lshlrev_b32 v{32+2*k}, 16, v{18+k}")
            I(f"v_and_b32 v{33+2*k}, 0xffff0000, v{18+k}")
        I("v_add_f32 v28, v28, v29")
        def red32(r, t):
            I(f"v_add_f32_dpp v{r}, v{r}, v{r} quad_perm:[1,0,3,2] {DPP}")
            I(f"v_add_f32_dpp v{r}, v{r}, v{r} quad_perm:[2,3,0,1] {DPP}")
            I(f"v_add_f32_dpp v{r}, v{r}, v{r} row_half_mirror {DPP}")
            I(f"v_mov_b32 v{t}, v{r}")
            I(f"v_permlane16_swap_b32 v{r}, v{t}")
            I(f"v_add_f32 v{r}, v{r}, v{t}")
            I(f"v_mov_b32 v{t}, v{r}")
            I(f"v_permlane32_swap_b32 v{r}, v{t}")
            I(f"v_add_f32 v{r}, v{r}, v{t}")
        red32(28, 29)
        I(f"v_mul_f32 v28, {hex(f2u(1/512))}, v28")
        I("v_mov_b32 v29, v28")
        for k in range(8):
            I(f"v_pk_add_f32 v[{32+2*k}:{33+2*k}], v[{32+2*k}:{33+2*k}], v[28:29] neg_lo:[0,1] neg_hi:[0,1]")
        I("v_pk_mul_f32 v[30:31], v[32:33], v[32:33]")
        for k in range(1, 8):
            I(f"v_pk_fma_f32 v[30:31], v[{32+2*k}:{33+2*k}], v[{32+2*k}:{33+2*k}], v[30:31]")
        I("v_add_f32 v30, v30, v31")
        red32(30, 31)
        I(f"v_mul_f32 v30, {hex(f2u(1/512))}, v30")
    I("v_cvt_pk_bf16_f32 v28, v28, v30")
    I("v_and_b32 v30, 0xffff0000, v28")
    I("v_lshlrev_b32 v28, 16, v28")
    I(f"v_add_f32 v30, {hex(f2u(1e-5))}, v30")
    I("v_cvt_pk_bf16_f32 v30, v30, v30")
    I("v_and_b32 v30, 0xffff0000, v30")
    I("v_sqrt_f32 v30, v30")
    I("v_lshlrev_b32 v32, 16, v26")
    I("v_and_b32 v33, 0xffff0000, v26")
    I("v_cvt_pk_bf16_f32 v30, v30, v30")
    I("v_and_b32 v30, 0xffff0000, v30")
    I("v_rcp_f32 v30, v30")
    I("v_sub_f32 v32, v32, v28")
    I("v_sub_f32 v33, v33, v28")
    I("v_cvt_pk_bf16_f32 v26, v32, v33")
    I("v_lshlrev_b32 v32, 16, v26")
    I("v_and_b32 v33, 0xffff0000, v26")
    I("v_mul_f32 v32, v32, v30")
    I("v_mul_f32 v33, v33, v30")
    I("v_cvt_pk_bf16_f32 v26, v32, v33")
    ST(18)
    seg(1)
    for u in range(8):
        I(f"v_mov_b32_dpp v{18+u}, v26 row_newbcast:{u} row_mask:0xf bank_mask:0x3")
        I(f"v_mov_b32_dpp v{18+u}, v26 row_newbcast:{8+u} row_mask:0xf bank_mask:0xc")
    def pperm(t):
        for i in range(4):
            I(f"v_perm_b32 v{AB+4*t+i}, v{18+t//2}, v{18+t//2}, v{SEL+4*(t%2)+i}")
    pperm(0)
    for t in range(16):
        if t == 4: seg(2)
        if t == 10: seg(3)
        if t < 15: pperm(t + 1)
        I(f"s_waitcnt vmcnt({15-t})")
        c = "0" if t == 0 else f"v[{D}:{D+3}]"
        I(f"v_mfma_f32_16x16x32_bf16 v[{D}:{D+3}], v[{AB+4*t}:{AB+4*t+3}], v[{BB+4*t}:{BB+4*t+3}], {c}")
    seg(4, end=True)
    I("s_waitcnt lgkmcnt(0)")
    I("s_mul_i32 s31, s31, 1664525")
    I("s_add_u32 s31, s31, 1013904223")
    I("v_and_b32 v7, 1, v3")
    I("v_lshlrev_b32 v7, 4, v7")
    I("v_lshl_add_u32 v7, v2, 5, v7")
    I("v_lshrrev_b32 v8, 1, v3")
    I("v_lshl_add_u32 v7, v8, 9, v7")
    I("s_lshl_b32 s56, s30, 18")
    I("s_lshl_b32 s57, s35, 10")
    I("s_add_u32 s56, s56, s57")
    I(f"s_add_u32 s56, s56, {P0}")
    I("s_and_b32 s57, s31, 15")
    for r in range(3):
        I(f"s_bfe_u32 s{92+r}, s59, {hex(0x10000 + r)}")
        I(f"s_lshl_b32 s{92+r}, s{92+r}, 4")
        I(f"s_or_b32 s{92+r}, s{92+r}, s57")
    for r in range(3):
        I(f"v_bfi_b32 v{D+r}, 31, s{92+r}, v{D+r}")
    I(f"v_bfi_b32 v{D+3}, 15, s31, v{D+3}")
    I("s_cmp_eq_u32 s30, 1")
    I("s_cbranch_scc1 L_PG")
    if qfast:
        I(f"s_add_u32 s57, s56, {PX - P0}")
        I(f"buffer_store_dwordx4 v[{D}:{D+3}], v7, s[36:39], s57 offen")
    I(f"buffer_store_dwordx4 v[{D}:{D+3}], v7, s[36:39], s56 offen sc1")

    if kmode == 1: I(f"ds_write_b32 v4, v4 offset:{L_QP}")
    if kmode == 2:
        I("s_waitcnt vmcnt(1)")
        I(f"ds_write_b32 v4, v4 offset:{L_QP}")
    ST(5)
    a.label("L_PQ_tail")
    if abl:
        flush_stamps()
        I("s_endpgm")
    I("v_lshrrev_b32 v6, 5, v1")
    I("v_and_b32 v8, 31, v1")
    I("v_lshlrev_b32 v9, 3, v8")
    I("v_lshl_add_u32 v9, v6, 2, v9")
    I("v_lshlrev_b32 v6, 12, v6")
    I("v_lshl_add_u32 v6, v8, 4, v6")
    I("s_lshl_b32 s56, s28, 13")
    I("s_lshl_b32 s57, s32, 9")
    I("s_add_u32 s56, s56, s57")
    I(f"s_add_u32 s56, s56, {P0}")
    I(f"s_add_u32 s57, s56, {PX - P0 if qfast else 0}")
    def qloads(base, so="s56"):
        return [f"buffer_load_dwordx4 v[{base+4*k}:{base+3+4*k}], v6, s[36:39], {so} offen offset:{1024*k} sc1" for k in range(4)]
    def qsum(base):
        I(f"v_xor_b32 v28, s92, v{base}")
        for k in range(4):
            for r in range(3):
                if k or r: I(f"v_bitop3_b32 v28, v28, v{base+4*k+r}, s{92+r} bitop3:0xf6")
        I(f"v_pk_add_f32 v[32:33], v[{base}:{base+1}], v[{base+4}:{base+5}]")
        I(f"v_pk_add_f32 v[34:35], v[{base+2}:{base+3}], v[{base+6}:{base+7}]")
        I(f"v_pk_add_f32 v[40:41], v[{base+8}:{base+9}], v[{base+12}:{base+13}]")
        I(f"v_pk_add_f32 v[42:43], v[{base+10}:{base+11}], v[{base+14}:{base+15}]")
    ns = len(qlev)
    for k in range(ns):
        if qrel:
            if k == 0: ks_cur(28, "s60")
            I(f"s_add_u32 s61, s60, {qlev[k]}")
            I(f"s_min_u32 s61, s61, {16 // gran}")
            ks_wait(28, "s61")
        elif qlev[k]: ks_wait(28, qlev[k])
        if k == 0: ST(20)
        for l in qloads(48 + 16 * k, "s57"): I(l)
    for k in range(ns):
        I(f"s_waitcnt vmcnt({4*(ns-1-k)})")
        tagcheck(list(range(48 + 16 * k, 64 + 16 * k)), "15", 27)
        nx = lab("qn")
        I(f"s_cbranch_vccnz {nx}")
        qsum(48 + 16 * k)
        I("s_branch L_q_ok")
        a.label(nx)
    gpoll(qloads(32), list(range(32, 48)), "15", 27)
    qsum(32)
    a.label("L_q_ok")
    I("v_pk_add_f32 v[32:33], v[32:33], v[40:41]")
    I("v_pk_add_f32 v[34:35], v[34:35], v[42:43]")
    I("v_and_b32 v28, 31, v28")
    I("v_cmp_ne_u32 vcc, 0, v28")
    I("v_permlane32_swap_b32 v32, v34")
    I("v_permlane32_swap_b32 v33, v35")
    I("v_add_f32 v32, v32, v34")
    I("v_add_f32 v33, v33, v35")
    I("v_cvt_pk_bf16_f32 v32, v32, v33")
    I("s_cmp_eq_u64 vcc, 0")
    I(f"s_cselect_b32 s58, {1 if fast else 0}, 0")
    I(f"ds_write_b32 v9, v32 offset:{L_Q}")
    I("v_mov_b32 v33, s58")
    I(f"ds_write_b32 v4, v33 offset:{L_FQ}")
    ST(6)
    I("v_and_b32 v6, 7, v1")
    I("v_lshlrev_b32 v9, 2, v6")
    I("v_lshlrev_b32 v6, 7, v6")
    I("s_lshl_b32 s56, s35, 7")
    I(f"s_add_u32 s56, s56, {H1S}")
    I("s_lshl_b32 s57, s28, 10")
    I(f"s_add_u32 s57, s57, {H1S}")
    I("v_lshlrev_b32 v7, 4, v1")
    lds_spin(L_L, 4, 32, sleep=1)
    I(f"ds_read_b128 v[40:43], v4 offset:{L_M}")
    I("v_add_f32 v33, v32, v33")
    I("v_add_f32 v34, v34, v35")
    I("v_add_f32 v33, v33, v34")
    I("s_waitcnt lgkmcnt(0)")
    I("v_max3_f32 v32, v40, v41, v42")
    I("v_max_f32 v32, v32, v43")
    I("v_bfi_b32 v32, v5, s31, v32")
    I("v_bfi_b32 v33, v5, s31, v33")
    I("v_mov_b32 v34, v32")
    I("v_mov_b32 v35, v33")
    EX("0xff")
    I("s_cmp_eq_u32 s58, 1")
    I("s_cbranch_scc1 L_st_fast")
    I("buffer_store_dwordx4 v[32:35], v7, s[36:39], s56 offen sc1")
    I("s_branch L_st_pub")
    a.label("L_st_fast")
    I("buffer_store_dwordx4 v[32:35], v7, s[36:39], s56 offen")
    a.label("L_st_pub")
    EX(-1)
    ST(19)
    gpoll(["buffer_load_dwordx4 v[36:39], v6, s[36:39], s57 offen sc1"], [36, 37, 38, 39], "v5", 27)
    I("v_and_b32 v36, 0xffffff00, v36")
    I(f"v_max_f32_dpp v40, v36, v36 quad_perm:[1,0,3,2] {DPP}")
    I(f"v_max_f32_dpp v40, v40, v40 quad_perm:[2,3,0,1] {DPP}")
    I("v_sub_f32 v36, v36, v40")
    I(f"v_mul_f32 v36, {hex(f2u(1.4426950408889634))}, v36")
    I("v_exp_f32 v36, v36")
    I("v_mul_f32 v37, v36, v37")
    I(f"v_add_f32_dpp v37, v37, v37 quad_perm:[1,0,3,2] {DPP}")
    I(f"v_add_f32_dpp v37, v37, v37 quad_perm:[2,3,0,1] {DPP}")
    I("v_rcp_f32 v37, v37")
    I("v_mul_f32 v36, v36, v37")
    I(f"ds_write_b32 v9, v36 offset:{L_W}")
    dry_next("L_S_tail")
    ST(7)
    flush_stamps()
    I("s_endpgm")

    lg = {1: 0, 2: 1, 4: 2, 8: 3}
    def my_piece(sp, spc):
        I(f"s_lshr_b32 {sp}, s29, {lg[ncg]}")
        I(f"s_lshl_b32 {spc}, s28, {lg[nrb]}")
        I(f"s_add_u32 {sp}, {sp}, {spc}")
        I(f"s_and_b32 {spc}, s29, {ncg-1}")
        I(f"s_lshl_b32 {spc}, {spc}, {lg[nch]+6}")
        I(f"s_add_u32 {spc}, {spc}, {sp}")
    def out_off(dst, spc, tmp):
        I(f"s_lshr_b32 {dst}, {spc}, 6"); I(f"s_lshl_b32 {dst}, {dst}, 8")
        I(f"s_bfe_u32 {tmp}, {spc}, 0x10005"); I(f"s_lshl_b32 {tmp}, {tmp}, 10"); I(f"s_add_u32 {dst}, {dst}, {tmp}")
        I(f"s_and_b32 {tmp}, {spc}, 15"); I(f"s_lshl_b32 {tmp}, {tmp}, 4"); I(f"s_add_u32 {dst}, {dst}, {tmp}")
        I(f"s_bfe_u32 {tmp}, {spc}, 0x10004"); I(f"s_lshl_b32 {tmp}, {tmp}, 3"); I(f"s_add_u32 {dst}, {dst}, {tmp}")

    MK = 56 + 6
    PB = 4096 // ncons; LP = PB // 16; lgPB = PB.bit_length() - 1
    def fin_setup(vx, vo, vl, sb, so):
        I(f"s_and_b32 s63, s2, {ncons - 1}")
        I(f"s_lshl_b32 {sb}, s63, {6 + lgPB}")
        I(f"s_add_u32 {sb}, {sb}, {H2A}")
        I(f"s_lshr_b32 {so}, s63, {10 - lgPB}")
        I(f"s_lshl_b32 {so}, {so}, 8")
        I(f"s_lshl_b32 s63, s63, {lgPB}")
        I("s_bfe_u32 s62, s63, 0x10009"); I("s_lshl_b32 s62, s62, 10"); I(f"s_add_u32 {so}, {so}, s62")
        I("s_and_b32 s63, s63, 511"); I("s_lshr_b32 s63, s63, 1"); I(f"s_add_u32 {so}, {so}, s63")
        I(f"v_and_b32 {vo}, {LP - 1}, v1")
        I(f"v_lshlrev_b32 {vo}, 3, {vo}")
        I(f"v_lshl_add_u32 {vo}, v3, 1, {vo}")
        I(f"v_lshlrev_b32 {vl}, 4, v1")
    def fin_run(vx, vo, vl, sb, sb2, so, B0):
        I(f"s_add_u32 {sb2}, {sb}, 0x1000")
        if not ring:
            gpoll([f"buffer_load_dwordx4 v[{B0+4*k}:{B0+3+4*k}], {vl}, s[36:39], {sb if k < 4 else sb2} offen offset:{1024*(k%4)} {ldf}" for k in range(LP)],
                  list(range(B0, B0 + 4 * LP)), "v5", 27)
        else:
            S0 = B0 + 32
            L = lab("ring")
            a.label(L)
            for k in range(LP):
                sk = lab("rs"); M = f"s[{MK+2*k}:{MK+2*k+1}]"; G = B0 + 4 * k; S = S0 + 4 * k
                I(f"s_mov_b64 exec, {M}")
                I(f"s_cbranch_execz {sk}")
                I(f"v_mov_b64 v[{G}:{G+1}], v[{S}:{S+1}]")
                I(f"v_mov_b64 v[{G+2}:{G+3}], v[{S+2}:{S+3}]")
                I(f"v_xor_b32 v27, s31, v{G}")
                for w in range(1, 4): I(f"v_bitop3_b32 v27, v27, v{G+w}, s31 bitop3:0xf6")
                I("v_and_b32 v27, v5, v27")
                I(f"v_cmpx_ne_u32_e64 {M}, 0, v27")
                I(f"s_cbranch_execz {sk}")
                I(f"buffer_load_dwordx4 v[{S}:{S+3}], {vl}, s[36:39], {sb if k < 4 else sb2} offen offset:{1024*(k%4)} {ldf}")
                a.label(sk)
            I(f"s_sub_u32 {SC}, {SC}, 8")
            I("s_cbranch_scc1 L_end")
            I(f"s_or_b64 s[{MK+16}:{MK+17}], s[{MK}:{MK+1}], s[{MK+2*(LP-1)}:{MK+2*(LP-1)+1}]")
            for k in range(1, LP - 1):
                I(f"s_or_b64 s[{MK+16}:{MK+17}], s[{MK+16}:{MK+17}], s[{MK+2*k}:{MK+2*k+1}]")
            d = lab("rd")
            I(f"s_cbranch_scc0 {d}")
            I(f"s_waitcnt vmcnt({ring})")
            I(f"s_branch {L}")
            a.label(d)
            EX(-1)
        ST(11)
        n = LP
        while n > 1:
            n //= 2
            for k in range(n):
                for hh in (0, 2):
                    I(f"v_pk_add_f32 v[{B0+4*k+hh}:{B0+4*k+hh+1}], v[{B0+4*k+hh}:{B0+4*k+hh+1}], v[{B0+4*(k+n)+hh}:{B0+4*(k+n)+hh+1}]")
        V = B0
        I(f"v_permlane32_swap_b32 v{V}, v{V+2}")
        I(f"v_permlane32_swap_b32 v{V+1}, v{V+3}")
        I(f"v_add_f32 v{V}, v{V}, v{V+2}")
        I(f"v_add_f32 v{V+1}, v{V+1}, v{V+3}")
        I(f"v_permlane16_swap_b32 v{V}, v{V+1}")
        I(f"v_add_f32 v{V}, v{V}, v{V+1}")
        for r in (8, 4, 2, 1):
            if r >= LP: I(f"v_add_f32_dpp v{V}, v{V}, v{V} row_ror:{r} {DPP}")
        I(f"v_add_f32 v{V}, {vx}, v{V}")
        I(f"v_cvt_pk_bf16_f32 v{V}, v{V}, v{V}")
        m = ((1 << LP) - 1) * 0x10001
        I(f"s_mov_b32 exec_lo, {hex(m)}"); I(f"s_mov_b32 exec_hi, {hex(m)}")
        I(f"buffer_store_short v{V}, {vo}, s[48:51], {so} offen")
        e = lab("fe")
        I("s_cmp_eq_u32 s2, 0")
        I(f"s_cbranch_scc0 {e}")
        EX(1)
        I("v_mov_b32 v33, s31")
        I("buffer_store_dword v33, v4, s[36:39], 0 offen sc1")
        a.label(e)
        ST(12)

    a.label("L_PG")
    stamps.clear(); sreg[0] = 80
    I(f"buffer_store_dwordx4 v[{D}:{D+3}], v7, s[36:39], s56 offen sc1")
    srd(40, 20, 1376 * 1024)
    I("v_mul_u32_u24 v6, 6144, v3")
    I("v_lshl_add_u32 v6, v2, 4, v6")
    I("s_lshl_b32 s58, s28, 1")
    I("s_add_u32 s58, s58, s32")
    I("s_mul_i32 s52, s58, 24576")
    I("s_lshl_b32 s53, s33, 8")
    I("s_add_u32 s52, s52, s53")
    I("s_add_u32 s53, s52, 0x1000")
    def wdloads():
        for t in range(6):
            I(f"buffer_load_dwordx4 v[{BB+4*t}:{BB+4*t+3}], v6, s[40:43], s{52+t//4} offen offset:{(t%4)*1024} {wflag}")
    if not wdlate: wdloads()
    fin_setup("v124", "v125", "v9", "s54", "s55")
    I("buffer_load_ushort v124, v125, s[44:47], s55 offen")
    srd(48, 22, 2048)
    I("v_lshrrev_b32 v7, 3, v2")
    I("v_lshlrev_b32 v7, 9, v7")
    I("v_and_b32 v27, 7, v2")
    I("v_min_u32 v27, 2, v27")
    I("v_lshl_add_u32 v7, v27, 3, v7")
    I("v_mad_u32_u24 v7, v3, 24, v7")
    I("s_and_b32 s56, s28, 30")
    I("s_lshl_b32 s56, s56, 13")
    I("s_and_b32 s57, s28, 1")
    I("s_lshl_b32 s57, s57, 1")
    I("s_add_u32 s57, s57, s32")
    I("s_mul_i32 s57, s57, 96")
    I("s_add_u32 s56, s56, s57")
    for k in range(4):
        I(f"s_add_u32 s{60+k}, s56, {P1 + 0x1000*k}")
    G0 = 128
    a.label("L_PG_tail")
    if abl or noffn == 1:
        I("s_waitcnt vmcnt(0)"); ST(13)
        flush_stamps()
        I("s_endpgm")
    if qrel:
        ks_cur(28, "s56")
        I(f"s_add_u32 s56, s56, {glev}")
        I(f"s_min_u32 s56, s56, {16 // gran}")
        ks_wait(28, "s56")
    else: ks_wait(28, glev)
    gpoll([f"buffer_load_dwordx2 v[{G0+2*k}:{G0+1+2*k}], v7, s[36:39], s{60+k//4} offen offset:{1024*(k%4)} sc1" for k in range(16)],
          list(range(G0, G0 + 32)), "15", 27)
    ST(13)
    for base in (G0, G0 + 16):
        for k in range(4):
            I(f"v_pk_add_f32 v[{base+2*k}:{base+2*k+1}], v[{base+2*k}:{base+2*k+1}], v[{base+8+2*k}:{base+9+2*k}]")
        for k in range(2):
            I(f"v_pk_add_f32 v[{base+2*k}:{base+2*k+1}], v[{base+2*k}:{base+2*k+1}], v[{base+4+2*k}:{base+5+2*k}]")
        I(f"v_pk_add_f32 v[{base}:{base+1}], v[{base}:{base+1}], v[{base+2}:{base+3}]")
    I(f"v_cvt_pk_bf16_f32 v28, v{G0}, v{G0+1}")
    I(f"v_cvt_pk_bf16_f32 v29, v{G0+16}, v{G0+17}")
    I("v_lshlrev_b32 v30, 16, v28")
    I("v_and_b32 v31, 0xffff0000, v28")
    I(f"v_mul_f32 v30, {hex(f2u(-1.4426950408889634))}, v30")
    I(f"v_mul_f32 v31, {hex(f2u(-1.4426950408889634))}, v31")
    I("v_exp_f32 v30, v30")
    I("v_exp_f32 v31, v31")
    I("v_add_f32 v30, 1.0, v30")
    I("v_add_f32 v31, 1.0, v31")
    I("v_rcp_f32 v30, v30")
    I("v_rcp_f32 v31, v31")
    I("v_lshlrev_b32 v32, 16, v29")
    I("v_and_b32 v33, 0xffff0000, v29")
    I("v_cvt_pk_bf16_f32 v28, v30, v31")
    I("v_lshlrev_b32 v30, 16, v28")
    I("v_and_b32 v31, 0xffff0000, v28")
    I("v_mul_f32 v30, v30, v32")
    I("v_mul_f32 v31, v31, v33")
    I("v_cvt_pk_bf16_f32 v26, v30, v31")
    if wdlate:
        trig_wait(27, 1)
        wdloads()
        I("s_waitcnt vmcnt(0)")
    build_mfma(26, SEL, 18, AB, BB, D, 3)
    I("v_lshlrev_b32 v124, 16, v124")
    I(f"ds_write_b128 v9, v[{D}:{D+3}] offset:{L_YF}")
    I(f"ds_write_b32 v4, v4 offset:{L_FX}")
    ST(14)
    if stamp:
        for q in (0, 2): I(f"s_memrealtime s[{sreg[0]+q}:{sreg[0]+q+1}]")
        I("s_waitcnt lgkmcnt(0)")
    I(f"s_cmp_lt_u32 s2, {ncons}")
    I("s_cbranch_scc0 L_end" if stamp == "dbg" else "s_cbranch_scc0 L_f_end")
    if ring:
        I("s_not_b32 s56, s31")
        for k in range(LP):
            I(f"s_mov_b64 s[{MK+2*k}:{MK+2*k+1}], -1")
            I(f"v_mov_b32 v{64+4*k}, s56")
    if 'f' in w2: walk("L_Ffin", "L_f_end")
    a.label("L_Ffin")
    if fwait == 1: lds_spin(L_OPUB, 1, 27, sleep=1)
    if fwait == 2: lds_spin(L_YPUB, 1, 27, sleep=1)
    fin_run("v124", "v125", "v9", "s54", "s53", "s55", 32)
    a.label("L_f_end")
    flush_stamps()
    I("s_endpgm")

    a.raw("@@PEND@@")
    a.label("L_T")
    stamps.clear(); sreg[0] = 66
    tmode[0] = True
    if prio: I("s_setprio 3")
    DT = 80 if nch > 1 else D
    I("v_lshlrev_b32 v6, 2, v1")
    for r in range(4): I(f"v_mov_b32 v{12+r}, -1")
    I("v_lshlrev_b32 v7, 4, v1")
    I(f"ds_write_b32 v6, v12 offset:{L_M}")
    I(f"ds_write_b128 v7, v[12:15] offset:{L_P2}")
    I("s_waitcnt lgkmcnt(0)")
    I("s_barrier")
    I(f"v_lshlrev_b32 v6, {10 + lg[nch == 4 and 4 or 1] * 0 + {16:4, 8:3, 4:2}[nt]}, v3")
    I("v_lshl_add_u32 v6, v2, 4, v6")
    my_piece("s58", "s59")
    I(f"s_lshl_b32 s52, s58, {10 + {64:6, 32:5, 16:4}[R]}")
    I(f"s_and_b32 s53, s29, {ncg-1}")
    I(f"s_lshl_b32 s53, s53, {8 + lg[nch]}")
    I("s_add_u32 s52, s52, s53")
    I("s_add_u32 s53, s52, 0x1000")
    I("s_add_u32 s54, s52, 0x2000")
    I("s_add_u32 s55, s52, 0x3000")
    I("s_mov_b32 s42, 0x400000"); I("s_mov_b32 s43, 0x20000")
    I("s_mov_b32 s40, s12"); I("s_mov_b32 s41, s13")
    def woload(k):
        t, cb = k // nch, k % nch
        I(f"buffer_load_dwordx4 v[{BB+4*k}:{BB+4*k+3}], v6, s[40:43], s{52+t//4} offen offset:{(t%4)*1024 + cb*256} {wflag}")
    for k in range(wopre): woload(k)
    srd(36, 26, WSN)
    make_sel(SEL, 27)
    assert nch == 1
    I("v_and_b32 v8, 1, v3")
    I("v_lshlrev_b32 v8, 4, v8")
    I("v_lshl_add_u32 v8, v2, 5, v8")
    I("v_lshrrev_b32 v9, 1, v3")
    I("v_lshl_add_u32 v8, v9, 9, v8")
    I(f"v_lshrrev_b32 v9, {lgPB}, v8")
    I(f"v_and_b32 v8, {PB - 1}, v8")
    I(f"v_lshl_add_u32 v8, v9, {6 + lgPB}, v8")
    I("s_lshl_b32 s60, s33, 16")
    I(f"s_lshl_b32 s61, s58, {lgPB}")
    I("s_add_u32 s60, s60, s61")
    I(f"s_add_u32 s60, s60, {H2A}")
    I("v_lshlrev_b32 v167, 4, v1")
    I("v_lshrrev_b32 v27, 3, v2")
    I("v_lshlrev_b32 v166, 4, v27")
    I("v_lshlrev_b32 v7, 11, v27")
    I(f"v_lshl_add_u32 v7, v3, {2 + {16:4, 8:3, 4:2}[nt]}, v7")
    I("v_and_b32 v27, 7, v2")
    if nt < 16: I(f"v_min_u32 v27, {nt//2 - 1}, v27")
    I("v_lshl_add_u32 v7, v27, 3, v7")
    I("s_lshl_b32 s56, s28, 12")
    I(f"s_lshr_b32 s57, s29, {lg[ncg]}")
    I(f"s_lshl_b32 s57, s57, {2 + {64:6, 32:5, 16:4}[R]}")
    I("s_add_u32 s56, s56, s57")
    I(f"s_add_u32 s56, s56, {H1O}")
    if 't' in w2: walk("L_T_tail", "L_end")
    a.label("L_T_tail")
    if smtest:
        ks_wait(28, smtest)
        I("s_lshl_b32 s44, s28, 13")
        I(f"s_add_u32 s44, s44, {PX}")
        ST(29); I("s_waitcnt lgkmcnt(0)")
        I("s_load_dwordx16 s[80:95], s[26:27], s44 glc"); I("s_waitcnt lgkmcnt(0)")
        ST(30); I("s_waitcnt lgkmcnt(0)")
        I("s_load_dwordx16 s[80:95], s[26:27], s44 glc"); I("s_waitcnt lgkmcnt(0)")
        ST(31); I("s_waitcnt lgkmcnt(0)")
        I("s_load_dwordx16 s[80:95], s[26:27], s44"); I("s_waitcnt lgkmcnt(0)")
        ST(23); I("s_waitcnt lgkmcnt(0)")
    trig_wait(27, 1)
    ST(24)
    for k in range(wopre, 16): woload(k)
    ST(8)
    if abl:
        I("s_waitcnt vmcnt(0)"); ST(9)
        flush_stamps()
        I("s_endpgm")
    lds_spin(L_FX, 1, 44, sleep=1)
    I(f"ds_read_b128 v[{DT}:{DT+3}], v167 offset:{L_YF}")
    ST(15)
    lds_spin(L_OPUB, 1, 27)
    I("v_readfirstlane_b32 s31, v27")
    ST(28)
    gpoll([f"buffer_load_dwordx2 v[{32+2*s}:{33+2*s}], v7, s[36:39], s56 offen offset:{512*s} sc1" for s in range(4)],
          list(range(32, 40)), "v5", 27)
    ST(9)
    lds_spin(L_W, 4, 40, addr="v166")
    I("v_mul_f32 v32, v32, v40")
    I("v_mul_f32 v33, v33, v40")
    for s in range(1, 4):
        I(f"v_fmac_f32 v32, v{32+2*s}, v{40+s}")
        I(f"v_fmac_f32 v33, v{33+2*s}, v{40+s}")
    I("v_cvt_pk_bf16_f32 v26, v32, v33")
    build_mfma(26, SEL, 18, AB, BB, DT, nt // 2, nch, cinit=True)
    for r in range(4):
        I(f"v_bfi_b32 v{DT+r}, v5, s31, v{DT+r}")
    I(f"buffer_store_dwordx4 v[{DT}:{DT+3}], v8, s[36:39], s60 offen {stf}")
    if fwait == 2: I(f"ds_write_b32 v4, v4 offset:{L_YPUB}")
    ST(10)
    flush_stamps()
    I("s_endpgm")
    a.label("L_end")
    I("s_endpgm")

    nv = a.maxv + 1
    head = HDR + f"""; @launch grid=(256,1,1) block=(704,1,1) lds={LDS_BYTES}
.amdgcn_target "amdgcn-amd-amdhsa--gfx950"
.text
.globl {KN}_kernel
.p2align 8
.type {KN}_kernel,@function
{KN}_kernel:
"""
    foot = f""".section .rodata,"a"
.p2align 6
.amdhsa_kernel {KN}_kernel
  .amdhsa_next_free_vgpr {nv}
  .amdhsa_next_free_sgpr {max(a.maxs + 1, 16)}
  .amdhsa_accum_offset {(nv + 3) // 4 * 4}
  .amdhsa_group_segment_fixed_size 0
  .amdhsa_kernarg_size 96
  .amdhsa_user_sgpr_count 2
  .amdhsa_user_sgpr_kernarg_segment_ptr 1
  .amdhsa_system_sgpr_workgroup_id_x 1
  .amdhsa_float_denorm_mode_32 3
.end_amdhsa_kernel
"""
    txt = a.text()
    i0 = txt.index("@@PBEG@@\n"); i1 = txt.index("@@PEND@@\n")
    P = txt[i0 + 9:i1]
    txt = txt[:i0] + txt[i1 + 9:]
    txt = txt.replace("@@P@@\n", P)
    if warm: txt = add_pads(head, txt, foot, pad, s1lab)
    return head + txt + foot

def add_pads(head, txt, foot, pad, s1lab):
    import re, subprocess
    lines = txt.rstrip("\n").split("\n")
    def isins(l):
        t = l.strip(); return t and not t.endswith(":") and not t.startswith((";", "@@"))
    tmp = re.sub(r"@@(W1SH)@@", "7", txt)
    tmp = re.sub(r"@@OFFH[^@]*@@", "0", tmp)
    tmp = re.sub(r"@@CNT[^@]*@@", "5", tmp)
    tmp = re.sub(r"(?m)^\s*@@[A-Z]*@@\n", "", tmp)
    tmp = re.sub(r"@@[^@]*@@", "0x12345", tmp)
    open("_pad.s", "w").write(head + tmp + foot)
    subprocess.check_call(["clang", "-x", "assembler", "-target", "amdgcn-amd-amdhsa", "-mcpu=gfx950", "-c", "_pad.s", "-o", "_pad.o"])
    d = subprocess.check_output(["llvm-objdump", "-d", "_pad.o"], text=True)
    sizes = [4 * len(m.group(1).split()) for m in re.finditer(r"// [0-9A-F]{12}: ([0-9A-F ]+)", d)]
    assert len(sizes) == sum(isins(l) for l in lines), (len(sizes), sum(isins(l) for l in lines))
    out = []; pos = 0; k = 0; on = False; labels = {}; pads = []
    i = 0
    while i < len(lines):
        l = lines[i]; t = l.strip()
        if t == "@@PADSTART@@": on = True; i += 1; continue
        if t == "@@PADOK@@": i += 1; continue
        if t == "@@NOPAD@@":
            j = i + 1; n = 0; kk = k
            while lines[j].strip() != "@@PADOK@@":
                if isins(lines[j]): n += sizes[kk]; kk += 1
                j += 1
            assert n + 4 <= pad
            if on and (pos % pad == 0 or (pos % pad) + n > pad):
                while pos % pad: out.append("  s_nop 0"); pos += 4
                pads.append(pos); out.append("  s_cbranch_execz L_wret"); pos += 4
            i += 1; continue
        if isins(l):
            sz = sizes[k]; k += 1
            if on:
                if pos % pad == pad - 4 and sz == 8: out.append("  s_nop 0"); pos += 4
                if pos % pad == 0:
                    tail = []
                    while out and out[-1].strip().endswith(":"): tail.insert(0, out.pop())
                    pads.append(pos); out.append("  s_cbranch_execz L_wret"); pos += 4
                    for x in tail:
                        out.append(x)
                        if not x.strip().startswith('L_wpc'): labels[x.strip()[:-1]] = pos
            out.append(l); pos += sz
        else:
            if t.endswith(":"): labels[t[:-1]] = pos
            out.append(l)
        i += 1
    assert pads == list(range(pads[0], pads[-1] + 1, pad)), "pad gap"
    txt = "\n".join(out) + "\n"
    up = lambda x: min((x + pad - 1) // pad * pad, pads[-1] + pad)
    def st(l0, g):
        x = up(labels[l0])
        while -16 <= x - labels[g] <= 64: x += pad
        return x
    txt = re.sub(r"@@OFF:([^:@]*):([^@]*)@@", lambda m: hex((st(m.group(1), m.group(2)) - labels[m.group(2)]) & 0xffffffff), txt)
    txt = re.sub(r"@@OFFH:([^:@]*):([^@]*)@@", lambda m: "-1" if st(m.group(1), m.group(2)) < labels[m.group(2)] else "0", txt)
    def f_cnt(m):
        c = (up(labels[m.group(2)]) - st(m.group(1), m.group(3))) // pad
        assert 1 <= c <= 64
        return str(c)
    txt = re.sub(r"@@CNT:([^:@]*):([^:@]*):([^@]*)@@", f_cnt, txt)
    if s1lab:
        n = (pads[-1] - st("L_P", s1lab[0])) // 128 + 1
        assert 64 < n <= 128
        txt = txt.replace("@@W1LIM@@", str(n))
    return txt

if __name__ == "__main__":
    import json
    name = sys.argv[1]; kw = {}
    for x in sys.argv[2:]:
        k, v = x.split("="); kw[k] = eval(v)
    open(name, "w").write(gen(**kw))
```

```python
import sys, struct
from asmlib import Asm
from common import KN
def f2u(x): return struct.unpack("<I", struct.pack("<f", x))[0]

HDR = open("cdna_kernels/" + KN + ".s.ref").read().split("; Override launch")[0]

PX = 0x140000; P0 = 0x10000; P1 = 0x50000; H1S = 0x90000; H1O = 0xA0000; H2F = 0xC0000; H2A = 0x100000
L_Q = 0x000; L_M = 0x100; L_L = 0x110; L_W = 0x120; L_FX = 0x140; L_FQ = 0x160; L_TRIG = 0x164; L_OCNT = 0x168; L_OPUB = 0x16c; L_KS = 0x170; L_YPUB = 0x180; L_QP = 0x184; L_P2 = 0x200; L_PART = 0x600; L_YF = 0xE00
LDS_BYTES = 0x1200

def gen(stamp=False, kvflag="nt", wflag="nt", prio=True, R=64, fast=True, wopre=0, qfast=True, sw=0, abl=0, gran=4, lag=0, qlev=(2,), glev=2, kwin=0, vwin=0, rot=0, noffn=0, noy=0, ysleep=0, fdefer=0, qrel=0, wdlate=0, wotrig=0, merge=1, fearly=0, ncons=32, fin='F', fwait=1, ring=0, ldf='sc1', stf='sc1', smtest=0, k0=0, kmode=0, vq=0, ln2=0, dry=0, warm=0, pad=64, w2='', dbgs=(0, 22, 5, 6, 21, 9, 10, 12), units=(8,7,7,6,4,3,4,4), dense=0):
    a = Asm(); I = a.i
    uid = [0]
    def lab(p):
        uid[0] += 1; return f"L_{p}_{uid[0]}"
    SC = "s34"
    stamps = {}
    sreg = [64]
    DBG = dict(zip(dbgs, range(8)))
    tmode = [False]
    def ST(slot):
        if not stamp: return
        if stamp == "dbg":
            if slot not in DBG: return
            slot = DBG[slot]
        r = sreg[0]; sreg[0] += 2
        stamps[slot] = r
        I(f"s_memrealtime s[{r}:{r+1}]")
    def flush_stamps():
        if not stamp: return
        if not stamps: return
        I("s_mov_b64 exec, 1")
        I("s_waitcnt lgkmcnt(0)")
        if stamp == "dbg":
            fin_ = 7 in stamps
            for slot, r in stamps.items():
                I(f"v_mov_b32 v6, s{r}")
                I(f"ds_write_b32 v4, v6 offset:{0x1c0 + 4*slot}")
            if tmode[0] or fin_:
                srd(96, 24, 256)
                I("s_mov_b64 exec, " + ("0x80" if fin_ else "0x7f"))
                I("v_lshlrev_b32 v7, 2, v1")
                I("ds_read_b32 v6, v7 offset:0x1c0")
                I("s_waitcnt lgkmcnt(0)")
                I("buffer_atomic_umax v6, v7, s[96:99], 0 offen sc1")
                I("v_not_b32 v8, v6")
                I("buffer_atomic_umax v8, v7, s[96:99], 0 offen offset:32 sc1")
            stamps.clear(); sreg[0] = 64
            return
        I("s_lshl_b32 s52, s2, 7")
        I("s_add_u32 s52, s52, 0x8000000")
        for slot, r in stamps.items():
            I(f"v_mov_b32 v6, s{r}")
            I(f"buffer_store_dword v6, v4, s[36:39], s52 offen offset:{4*slot}")
        stamps.clear(); sreg[0] = 64
    def lds_spin(off, n, dst, addr="v4", sleep=0):
        L = lab("spin"); O = lab("spino")
        a.label(L)
        if sleep: I(f"s_sleep {sleep}")
        if n == 1: I(f"ds_read_b32 v{dst}, {addr} offset:{off}")
        elif n == 2: I(f"ds_read_b64 v[{dst}:{dst+1}], {addr} offset:{off}")
        else: I(f"ds_read_b128 v[{dst}:{dst+3}], {addr} offset:{off}")
        I(f"s_sub_u32 {SC}, {SC}, 1")
        I("s_waitcnt lgkmcnt(0)")
        I("s_cbranch_scc1 L_end")
        t = dst
        if n == 2:
            t = dst + 2; I(f"v_max_u32 v{t}, v{dst}, v{dst+1}")
        if n == 4:
            t = dst + 4
            I(f"v_max3_u32 v{t}, v{dst}, v{dst+1}, v{dst+2}")
            I(f"v_max_u32 v{t}, v{t}, v{dst+3}")
        I(f"v_cmp_eq_u32 vcc, -1, v{t}")
        I(f"s_cbranch_vccnz {L}")
        a.label(O)
    def trig_wait(tmp, k):
        L = lab("trig"); O = lab("trigo")
        a.label(L)
        I("s_sleep 1")
        I(f"ds_read_b32 v{tmp}, v4 offset:{L_TRIG}")
        I(f"s_sub_u32 {SC}, {SC}, 1")
        I("s_waitcnt lgkmcnt(0)")
        I("s_cbranch_scc1 L_end")
        I(f"v_cmp_gt_i32 vcc, {4*k-1}, v{tmp}")
        I(f"s_cbranch_vccnz {L}")
        a.label(O)
    def ks_wait(tmp, lev, one=None):
        L = lab("ks")
        a.label(L)
        I("s_sleep 1")
        if one: I(f"ds_read_b32 v{tmp}, {one} offset:{L_KS}")
        else: I(f"ds_read_b128 v[{tmp}:{tmp+3}], v4 offset:{L_KS}")
        I(f"s_sub_u32 {SC}, {SC}, 1")
        I("s_waitcnt lgkmcnt(0)")
        I("s_cbranch_scc1 L_end")
        if not one:
            I(f"v_min3_i32 v{tmp}, v{tmp}, v{tmp+1}, v{tmp+2}")
            I(f"v_min_i32 v{tmp}, v{tmp}, v{tmp+3}")
        I(f"v_cmp_gt_i32 vcc, {lev}, v{tmp}")
        I(f"s_cbranch_vccnz {L}")
    def ks_cur(tmp, dst):
        I(f"ds_read_b128 v[{tmp}:{tmp+3}], v4 offset:{L_KS}")
        I("s_waitcnt lgkmcnt(0)")
        I(f"v_min3_i32 v{tmp}, v{tmp}, v{tmp+1}, v{tmp+2}")
        I(f"v_min_i32 v{tmp}, v{tmp}, v{tmp+3}")
        I(f"v_max_i32 v{tmp}, 0, v{tmp}")
        I(f"v_readfirstlane_b32 {dst}, v{tmp}")
    def gpoll(loads, words, tagmask, acc):
        L = lab("poll"); O = lab("pollo")
        a.label(L)
        for l in loads: I(l)
        I(f"s_sub_u32 {SC}, {SC}, 64")
        I("s_waitcnt vmcnt(0)")
        I("s_cbranch_scc1 L_end")
        I(f"v_xor_b32 v{acc}, s31, v{words[0]}")
        for w in words[1:]:
            I(f"v_bitop3_b32 v{acc}, v{acc}, v{w}, s31 bitop3:0xf6")
        I(f"v_and_b32 v{acc}, {tagmask}, v{acc}")
        I(f"v_cmp_ne_u32 vcc, 0, v{acc}")
        I(f"s_cbranch_vccnz {L}")
        a.label(O)
    def srd(d, lo, n):
        I(f"s_mov_b32 s{d}, s{lo}"); I(f"s_mov_b32 s{d+1}, s{lo+1}")
        I(f"s_mov_b32 s{d+2}, {hex(n)}"); I(f"s_mov_b32 s{d+3}, 0x20000")
    DPP = "row_mask:0xf bank_mask:0xf"
    def make_sel(S, t0):
        I(f"v_and_b32 v{t0}, 1, v2")
        I(f"v_cmp_eq_u32 vcc, 1, v{t0}")
        I(f"v_bfe_u32 v{t0}, v2, 1, 2")
        I(f"v_mov_b32 v{t0+3}, 0x0c0c0c0c")
        for e in range(2):
            ev = 0x0c0c0000 | (2*e+1) << 8 | (2*e)
            od = (2*e+1) << 24 | (2*e) << 16 | 0x0c0c
            I(f"v_mov_b32 v{S}, {hex(ev)}")
            I(f"v_mov_b32 v{S+1}, {hex(od)}")
            I(f"v_cndmask_b32 v{t0+1+e}, v{S}, v{S+1}, vcc")
        for i in range(4):
            I(f"v_cmp_eq_u32 vcc, {i}, v{t0}")
            for e in range(2):
                I(f"v_cndmask_b32 v{S+4*e+i}, v{t0+3}, v{t0+1+e}, vcc")
    def build_mfma(Q, S, TMP, AB, BB, D, npair, nch=1, cinit=False):
        for u in range(npair):
            I(f"v_mov_b32_dpp v{TMP+u}, v{Q} row_newbcast:{u} row_mask:0xf bank_mask:0x3")
            I(f"v_mov_b32_dpp v{TMP+u}, v{Q} row_newbcast:{8+u} row_mask:0xf bank_mask:0xc")
        n = 2 * npair
        def perm(t):
            for i in range(4):
                I(f"v_perm_b32 v{AB+4*t+i}, v{TMP+t//2}, v{TMP+t//2}, v{S+4*(t%2)+i}")
        def mf(t):
            for cb in range(nch):
                d = D + 4 * cb; bb = BB + 4 * (t * nch + cb)
                c = "0" if (t == 0 and not cinit) else f"v[{d}:{d+3}]"
                I(f"v_mfma_f32_16x16x32_bf16 v[{d}:{d+3}], v[{AB+4*t}:{AB+4*t+3}], v[{bb}:{bb+3}], {c}")
        perm(0)
        for t in range(n):
            if t + 1 < n: perm(t + 1)
            mf(t)
    def tagcheck(words, tagmask, acc):
        I(f"v_xor_b32 v{acc}, s31, v{words[0]}")
        for w in words[1:]:
            I(f"v_bitop3_b32 v{acc}, v{acc}, v{w}, s31 bitop3:0xf6")
        I(f"v_and_b32 v{acc}, {tagmask}, v{acc}")
        I(f"v_cmp_ne_u32 vcc, 0, v{acc}")
    def reduce4(V):
        I(f"v_permlane32_swap_b32 v{V}, v{V+2}")
        I(f"v_permlane32_swap_b32 v{V+1}, v{V+3}")
        I(f"v_add_f32 v{V}, v{V}, v{V+2}")
        I(f"v_add_f32 v{V+1}, v{V+1}, v{V+3}")
        I(f"v_permlane16_swap_b32 v{V}, v{V+1}")
        I(f"v_add_f32 v{V}, v{V}, v{V+1}")
        for r in (8, 4, 2, 1):
            I(f"v_add_f32_dpp v{V}, v{V}, v{V} row_ror:{r} {DPP}")

    def reduce4x2(V, W):
        for X in (V, W):
            I(f"v_permlane32_swap_b32 v{X}, v{X+2}")
            I(f"v_permlane32_swap_b32 v{X+1}, v{X+3}")
        for X in (V, W):
            I(f"v_add_f32 v{X}, v{X}, v{X+2}")
            I(f"v_add_f32 v{X+1}, v{X+1}, v{X+3}")
        for X in (V, W): I(f"v_permlane16_swap_b32 v{X}, v{X+1}")
        for X in (V, W): I(f"v_add_f32 v{X}, v{X}, v{X+1}")
        for r in (8, 4, 2, 1):
            for X in (V, W): I(f"v_add_f32_dpp v{X}, v{X}, v{X} row_ror:{r} {DPP}")

    def seg(k, end=False):
        if not dry: return
        if k > 0: I("s_cbranch_execz L_dret")
        if not end: a.label(f"L_seg{k}")
    WSN = 0x10000000 if stamp else 0x200000
    nch = 64 // R; ncg = 4 // nch; nrb = 128 // R; nt = R // 4
    def EX(m): I(f"s_mov_b64 exec, {m}")
    def dry_next(lbl): pass
    ST(0)
    I("s_load_dwordx16 s[4:19], s[0:1], 0")
    I("s_load_dwordx8 s[20:27], s[0:1], 64")
    I("v_lshrrev_b32 v6, 6, v0")
    I("s_cmp_ge_u32 s2, 256")
    I("v_readfirstlane_b32 s30, v6")
    I("s_cbranch_scc1 L_end")
    I("v_and_b32 v1, 63, v0")
    I("s_and_b32 s28, s2, 7")
    I("s_lshl_b32 s28, s28, 2")
    I("s_lshr_b32 s29, s2, 6")
    I("s_add_u32 s28, s28, s29")
    I("s_bfe_u32 s29, s2, 0x30003")
    I("s_lshr_b32 s32, s29, 2")
    I("s_and_b32 s33, s29, 3")
    I("s_lshl_b32 s35, s28, 3")
    I("s_add_u32 s35, s35, s29")
    I(f"s_mov_b32 {SC}, 0x100000")
    I("v_and_b32 v2, 15, v1")
    I("v_lshrrev_b32 v3, 4, v1")
    I("v_mov_b32 v4, 0")
    I("v_mov_b32 v5, 0xff")
    def stage1(wr, w0):
        G = lab("wpc")
        I("s_getpc_b64 s[96:97]")
        a.label(G)
        I(f"s_sub_u32 s98, {wr}, {w0}")
        I("s_lshl_b32 s98, s98, 5")
        I("s_lshr_b32 s99, s2, 3")
        I("s_add_u32 s98, s98, s99")
        I("s_cmp_ge_u32 s98, @@W1LIM@@")
        I("s_cbranch_scc1 L_w1_done")
        I("s_lshl_b32 s98, s98, 7")
        I(f"s_add_u32 s96, s96, @@OFF:L_P:{G}@@")
        I(f"s_addc_u32 s97, s97, @@OFFH:L_P:{G}@@")
        I("s_add_u32 s98, s98, s96")
        I("s_addc_u32 s99, s97, 0")
        a.raw("@@NOPAD@@")
        EX(0)
        I("s_swappc_b64 s[100:101], s[98:99]")
        EX(-1)
        a.raw("@@PADOK@@")
        a.label("L_w1_done")
        s1lab.append(G)
    s1lab = []
    if warm:
        I("s_cmp_lt_u32 s30, 2")
        I("s_cbranch_scc1 L_P")
        if warm == 1: stage1("s30", 6)
        I("s_cmp_eq_u32 s30, 10")
        I("s_cbranch_scc1 L_T")
        I("s_branch L_S")
        a.label("L_wret")
        I("s_setpc_b64 s[100:101]")
        a.label("L_P")
        a.raw("@@PADSTART@@")
    else:
        I("s_cmp_eq_u32 s30, 10")
        I("s_cbranch_scc1 L_T")
        I("s_cmp_ge_u32 s30, 2")
        I("s_cbranch_scc1 L_S")
    a.raw("@@P@@")
    def walk(l0, l1, nw=1, wreg=None):
        L = lab("walk"); E = lab("walke"); G = lab("wpc")
        I("s_getpc_b64 s[98:99]")
        a.label(G)
        I(f"s_add_u32 s98, s98, @@OFF:{l0}:{G}@@")
        I(f"s_addc_u32 s99, s99, @@OFFH:{l0}:{G}@@")
        if wreg:
            I(f"s_mul_i32 s96, {wreg}, {pad}")
            I("s_add_u32 s98, s98, s96")
            I("s_addc_u32 s99, s99, 0")
            I(f"s_sub_i32 s97, @@CNT:{l0}:{l1}:{G}@@, {wreg}")
        else:
            I(f"s_and_b32 s97, s2, 0x10000")
            I(f"s_sub_i32 s97, @@CNT:{l0}:{l1}:{G}@@, s97")
        a.raw("@@NOPAD@@")
        EX(0)
        a.label(L)
        I("s_cmp_le_i32 s97, 0")
        I(f"s_cbranch_scc1 {E}")
        I("s_swappc_b64 s[100:101], s[98:99]")
        I(f"s_add_u32 s98, s98, {pad * nw}")
        I("s_addc_u32 s99, s99, 0")
        I(f"s_sub_i32 s97, s97, {nw}")
        I(f"s_branch {L}")
        a.label(E)
        EX(-1)
        a.raw("@@PADOK@@")

    a.label("L_S")
    KB, VB, ACC, D = 32, 96, 16, 160
    I("s_sub_u32 s30, s30, 2")
    I("s_lshr_b32 s59, s30, 2")
    I("s_and_b32 s30, s30, 3")
    I("v_lshlrev_b32 v6, 4, v1")
    I("s_lshl_b32 s52, s32, 25")
    I("s_lshl_b32 s53, s28, 20")
    I("s_add_u32 s52, s52, s53")
    I("s_lshl_b32 s53, s33, 16")
    I("s_add_u32 s52, s52, s53")
    I("s_lshl_b32 s53, s30, 14")
    I("s_add_u32 s52, s52, s53")
    I("s_add_u32 s52, s52, 0xC0000")
    if rot == 1:
        I("s_add_u32 s60, s28, s29")
        for k in (3, 2, 1, 0):
            I(f"s_add_u32 s61, s60, {k}"); I("s_and_b32 s61, s61, 3"); I("s_lshl_b32 s61, s61, 12")
            I(f"s_add_u32 s{52+k}, s52, s61")
    elif rot == 2:
        I("s_lshl_b32 s60, s29, 1"); I("s_xor_b32 s60, s60, s28"); I("s_and_b32 s60, s60, 15"); I("s_lshl_b32 s60, s60, 10")
        for k in range(16):
            I(f"s_xor_b32 s{96-16-12+k if False else 44+k if k < 8 else 72+k}, s60, {k << 10}")
            r = 44 + k if k < 8 else 72 + k
            I(f"s_add_u32 s{r}, s{r}, s52")
    else:
        I("s_add_u32 s53, s52, 0x1000")
        I("s_add_u32 s54, s52, 0x2000")
        I("s_add_u32 s55, s52, 0x3000")
    I("s_mov_b32 s42, 0x4000000"); I("s_mov_b32 s43, 0x20000")
    I("s_lshl_b32 s56, s30, 2")
    I("v_mov_b32 v165, s56")
    I("s_lshl_b32 s56, s30, 8")
    I("v_lshl_add_u32 v167, v1, 2, s56")
    I("v_lshlrev_b32 v166, 4, v2")
    def dryjump():
        EX(0)
        for k in range(3):
            I(f"s_cmp_eq_u32 s30, {k}")
            I(f"s_cbranch_scc1 L_seg{k}")
        I("s_branch L_seg3")
        a.label("L_dret")
        EX(-1)
    if dry == 2:
        I("s_cmp_eq_u32 s59, 1")
        I("s_cbranch_scc0 L_nodry")
        dryjump()
        a.label("L_nodry")
    I("s_waitcnt lgkmcnt(0)")
    I("s_mov_b32 s40, s6"); I("s_mov_b32 s41, s7")
    I("s_cmp_eq_u32 s59, 1")
    I("s_barrier")
    I("s_cbranch_scc1 L_V")
    def tload(base, t):
        if rot == 2:
            r = 44 + t if t < 8 else 72 + t
            I(f"buffer_load_dwordx4 v[{base+4*t}:{base+4*t+3}], v6, s[40:43], s{r} offen {kvflag}")
            return
        I(f"buffer_load_dwordx4 v[{base+4*t}:{base+4*t+3}], v6, s[40:43], s{52+t//4} offen offset:{(t%4)*1024} {kvflag}")
    ST(22)
    nlev = 16 // gran
    lev = 0
    for t in range(16):
        if k0 and t == k0:
            if kmode == 0: I(f"s_waitcnt vmcnt({k0-1})")
            else: lds_spin(L_QP, 1, 12, sleep=1)
        if kwin and t >= kwin:
            I(f"s_waitcnt vmcnt({kwin-1})")
        tload(KB, t)
        if kwin and t >= kwin and (t - kwin + 1) % gran == 0:
            lev = (t - kwin + 1) // gran
            I(f"v_mov_b32 v12, {lev}")
            I(f"ds_write_b32 v165, v12 offset:{L_KS}")
    ST(25)
    I("s_mov_b32 s88, 0xcccccccc"); I("s_mov_b32 s89, 0xcccccccc")
    I("s_mov_b32 s90, 0xaaaaaaaa"); I("s_mov_b32 s91, 0xaaaaaaaa")
    if stamp: srd(36, 26, WSN)
    for k in range(lev + 1, nlev + 1):
        I(f"v_mov_b32 v12, {k}")
        I(f"s_waitcnt vmcnt({16 - k*gran})")
        I(f"ds_write_b32 v165, v12 offset:{L_KS}")
    ST(26)
    if abl:
        I(f"s_cmp_eq_u32 s30, {sw}")
        I("s_cbranch_scc0 L_end")
        flush_stamps()
        I("s_endpgm")
    a.label("L_Ksm")
    lds_spin(L_FQ, 1, 16, sleep=1)
    I(f"ds_read_b128 v[12:15], v166 offset:{L_Q}")
    ST(2)
    I("s_waitcnt lgkmcnt(0)")
    for t in range(0, 16, 2):
        for i in range(4):
            for tt in (t, t + 1):
                c = "0" if i == 0 else f"v{ACC+tt}"
                I(f"v_dot2_f32_bf16 v{ACC+tt}, v{KB+4*tt+i}, v{12+i}, {c}")
    for t in range(8):
        I(f"v_add_f32_dpp v{ACC+t}, v{ACC+t}, v{ACC+t} row_ror:8 row_mask:0xf bank_mask:0x3")
    for t in range(8):
        I(f"v_add_f32_dpp v{ACC+t}, v{ACC+t+8}, v{ACC+t+8} row_ror:8 row_mask:0xf bank_mask:0xc")
    for t in range(4):
        I(f"v_add_f32_dpp v{ACC+t}, v{ACC+t}, v{ACC+t} row_shl:4 row_mask:0xf bank_mask:0x5")
    for t in range(4):
        I(f"v_add_f32_dpp v{ACC+t}, v{ACC+t+4}, v{ACC+t+4} row_shr:4 row_mask:0xf bank_mask:0xa")
    for t in range(4):
        I(f"v_add_f32_dpp v{ACC+t}, v{ACC+t}, v{ACC+t} quad_perm:[2,3,0,1] {DPP}")
    I(f"v_cndmask_b32 v{ACC}, v{ACC}, v{ACC+2}, s[88:89]")
    I(f"v_cndmask_b32 v{ACC+1}, v{ACC+1}, v{ACC+3}, s[88:89]")
    for t in range(2):
        I(f"v_add_f32_dpp v{ACC+t}, v{ACC+t}, v{ACC+t} quad_perm:[1,0,3,2] {DPP}")
    I(f"v_cndmask_b32 v16, v16, v17, s[90:91]")
    I("v_cvt_pk_bf16_f32 v16, v16, v16")
    I("v_and_b32 v16, 0xffff0000, v16")
    I(f"v_mul_f32 v16, {hex(f2u(128 ** -0.5))}, v16")
    I("v_cvt_pk_bf16_f32 v16, v16, v16")
    I("v_and_b32 v16, 0xffff0000, v16")
    I(f"v_max_f32_dpp v17, v16, v16 row_ror:8 {DPP}")
    for r in (4, 2, 1):
        I(f"v_max_f32_dpp v17, v17, v17 row_ror:{r} {DPP}")
    I("v_mov_b32 v18, v17")
    I("v_permlane16_swap_b32 v17, v18")
    I("v_max_f32 v17, v17, v18")
    I("v_mov_b32 v18, v17")
    I("v_permlane32_swap_b32 v17, v18")
    I("v_max_f32 v17, v17, v18")
    I(f"ds_write_b32 v165, v17 offset:{L_M}")
    if not smtest: ST(23)
    lds_spin(L_M, 4, 20)
    I("v_max3_f32 v17, v20, v21, v22")
    I("v_max_f32 v17, v17, v23")
    I("v_sub_f32 v16, v16, v17")
    I(f"v_mul_f32 v16, {hex(f2u(1.4426950408889634))}, v16")
    I("v_exp_f32 v16, v16")
    I("v_cvt_pk_bf16_f32 v19, v16, v16")
    I(f"ds_write_b32 v167, v19 offset:{L_P2}")
    I(f"v_add_f32_dpp v17, v16, v16 row_ror:8 {DPP}")
    for r in (4, 2, 1):
        I(f"v_add_f32_dpp v17, v17, v17 row_ror:{r} {DPP}")
    I("v_mov_b32 v18, v17")
    I("v_permlane16_swap_b32 v17, v18")
    I("v_add_f32 v17, v17, v18")
    I("v_mov_b32 v18, v17")
    I("v_permlane32_swap_b32 v17, v18")
    I("v_add_f32 v17, v17, v18")
    I(f"ds_write_b32 v165, v17 offset:{L_L}")
    ST(27)
    if stamp:
        I(f"s_cmp_eq_u32 s30, {sw}")
        I("s_cbranch_scc0 L_end")
        flush_stamps()
    I("s_endpgm")

    a.label("L_V")
    stamps.clear(); sreg[0] = 66
    if dry == 1: dryjump()
    if warm == 2: stage1("s30", 0)
    if 'v' in w2: walk("L_V", "L_T", 4, "s30")
    if 'k' in w2: walk("L_Ksm", "L_V", 4, "s30")
    I("v_and_b32 v12, 1, v2")
    I("v_lshlrev_b32 v12, 4, v12")
    I("v_mov_b32 v13, 0xffff")
    I("v_lshlrev_b32 v12, v12, v13")
    I("v_lshrrev_b32 v13, 1, v2")
    for i in range(4):
        I(f"v_cmp_eq_u32 vcc, {i}, v13")
        I(f"v_cndmask_b32 v{8+i}, 0, v12, vcc")
    I("v_and_b32 v7, 1, v3")
    I("v_lshlrev_b32 v7, 4, v7")
    I("v_lshl_add_u32 v7, v2, 5, v7")
    I("s_lshl_b32 s56, s30, 9")
    I("v_add_u32 v164, s56, v7")
    I(f"s_lshl_b32 s57, s35, 9")
    I(f"s_add_u32 s57, s57, {H1O}")
    I("v_mov_b32 v12, 1")
    I("s_load_dword s31, s[26:27], 0")
    I("s_mov_b32 s40, s8"); I("s_mov_b32 s41, s9")
    srd(36, 26, WSN)
    I("s_waitcnt lgkmcnt(0)")
    I("s_mul_i32 s31, s31, 1664525")
    I("s_add_u32 s31, s31, 1013904223")
    for t in range(16):
        if t % gran == 0:
            lev = t // gran + 1 + lag
            if 1 <= lev <= nlev: ks_wait(13, lev, one="v165")
        if vwin and t >= vwin: I(f"s_waitcnt vmcnt({vwin-1})")
        tload(VB, t)
    if wotrig: I(f"s_waitcnt vmcnt({16 - wotrig})")
    I("s_mov_b64 exec, 1")
    I(f"ds_add_u32 v4, v12 offset:{L_TRIG}")
    I("s_mov_b64 exec, -1")
    ST(1)
    if abl:
        I("s_waitcnt vmcnt(0)"); ST(21)
        I(f"s_cmp_eq_u32 s30, {sw}")
        I("s_cbranch_scc0 L_end")
        flush_stamps()
        I("s_endpgm")
    lds_spin(L_P2, 1, 19, addr="v167")
    I(f"ds_read_b32 v16, v4 offset:{L_FQ}")
    for t in range(16):
        for i in range(4):
            I(f"v_and_b32_dpp v{KB+4*t+i}, v19, v{8+i} row_newbcast:{t} {DPP}")
    I("s_waitcnt lgkmcnt(0)")
    I("v_readfirstlane_b32 s58, v16")
    ST(3)
    for t in range(16):
        I(f"s_waitcnt vmcnt({15-t})")
        if t == 15: ST(21)
        c = "0" if t == 0 else f"v[{D}:{D+3}]"
        I(f"v_mfma_f32_16x16x32_bf16 v[{D}:{D+3}], v[{KB+4*t}:{KB+4*t+3}], v[{VB+4*t}:{VB+4*t+3}], {c}")
    EX("0xffffffff")
    I(f"ds_write_b128 v164, v[{D}:{D+3}] offset:{L_PART}")
    EX(1)
    I(f"ds_add_rtn_u32 v13, v4, v12 offset:{L_OCNT}")
    EX("0xffffffff")
    for w in range(4):
        I(f"ds_read_b128 v[{16+4*w}:{19+4*w}], v7 offset:{L_PART+512*w}")
    I("s_waitcnt lgkmcnt(0)")
    I("v_readfirstlane_b32 s56, v13")
    I("v_pk_add_f32 v[16:17], v[16:17], v[20:21]")
    I("v_pk_add_f32 v[18:19], v[18:19], v[22:23]")
    I("s_cmp_eq_u32 s56, 2")
    I("s_cbranch_scc0 L_s_end")
    I("v_pk_add_f32 v[24:25], v[24:25], v[28:29]")
    I("v_pk_add_f32 v[26:27], v[26:27], v[30:31]")
    I("v_pk_add_f32 v[16:17], v[16:17], v[24:25]")
    I("v_pk_add_f32 v[18:19], v[18:19], v[26:27]")
    I("s_cmp_eq_u32 s58, 1")
    for r in range(4):
        I(f"v_bfi_b32 v{16+r}, v5, s31, v{16+r}")
    I("s_cbranch_scc1 L_s_fast")
    I("buffer_store_dwordx4 v[16:19], v7, s[36:39], s57 offen sc1")
    I("s_branch L_s_pub")
    a.label("L_s_fast")
    I("buffer_store_dwordx4 v[16:19], v7, s[36:39], s57 offen")
    a.label("L_s_pub")
    I("v_and_b32 v20, v5, v16")
    I(f"ds_write_b32 v4, v20 offset:{L_OPUB}")
    if stamp:
        keep = dict(stamps); stamps.clear(); ST(4); sv = sreg[0]; flush_stamps(); stamps.update(keep); sreg[0] = sv
    a.label("L_s_end")
    if stamp:
        I(f"s_cmp_eq_u32 s30, {sw}")
        I("s_cbranch_scc0 L_end")
        flush_stamps()
    I("s_endpgm")

    a.raw("@@PBEG@@")
    stamps.clear(); sreg[0] = 66
    if prio: I("s_setprio 2")
    AB, BB, SEL = 32, 96, 10
    assert sum(units) == 43 and all(2 <= x <= 8 for x in units)
    us = []
    for x in units: us += [(x + 1) // 2, x // 2]
    tab = 0; acc = 0
    for k, x in enumerate(us):
        tab |= (acc | (x - 1) << 6) << (8 * k); acc += x
    tw = [(tab >> (32 * k)) & 0xffffffff for k in range(4)]
    I(f"s_mov_b32 s54, {hex(tw[0])}"); I(f"s_mov_b32 s55, {hex(tw[1])}")
    I("s_bitcmp1_b32 s28, 4")
    I(f"s_cselect_b32 s54, {hex(tw[2])}, s54"); I(f"s_cselect_b32 s55, {hex(tw[3])}, s55")
    I("s_lshl_b32 s56, s28, 2")
    I("s_and_b32 s56, s56, 56")
    I("s_lshr_b64 s[54:55], s[54:55], s56")
    I("s_bfe_u32 s90, s54, 0x20006")
    I("s_add_u32 s90, s90, 1")
    I("s_and_b32 s91, s54, 63")
    I("s_lshl_b32 s54, s90, 2")
    I("s_lshl_b32 s53, s91, 6")
    I("s_lshl_b32 s56, s28, 8")
    I("s_cmp_eq_u32 s30, 0")
    I("s_movk_i32 s52, 2752"); I("s_mov_b32 s42, 1409024")
    I("s_cselect_b32 s52, 8192, s52")
    I("s_cselect_b32 s53, s56, s53")
    I("s_cselect_b32 s54, 16, s54")
    I("s_cselect_b32 s42, 0x400000, s42")
    I("s_lshl_b32 s56, s29, 6")
    I("s_mul_i32 s56, s56, s52")
    I("s_add_u32 s53, s53, s56")
    I("s_lshl_b32 s56, s52, 4")
    I("v_mul_lo_u32 v6, v3, s56")
    I("v_lshl_add_u32 v6, v2, 4, v6")
    I("v_cmp_gt_i32 vcc, s54, v2")
    I("v_mov_b32 v7, 0x80000000")
    I("v_cndmask_b32 v6, v7, v6, vcc")
    I("v_lshrrev_b32 v9, 3, v2")
    I("v_and_b32 v26, 7, v2")
    I("v_lshlrev_b32 v9, 10, v9")
    I("v_lshl_add_u32 v7, v3, 8, v9")
    I("v_lshl_add_u32 v7, v26, 5, v7")
    I("v_lshl_add_u32 v8, v3, 5, v9")
    I("v_lshl_add_u32 v8, v26, 2, v8")
    I("s_lshl_b32 s56, s29, 7")
    I("s_mov_b32 s46, 2048"); I("s_mov_b32 s47, 0x20000"); I("s_mov_b32 s43, 0x20000")
    I("s_bitcmp1_b32 s28, 0")
    I("s_waitcnt lgkmcnt(0)")
    ST(16)
    I("s_mov_b32 s44, s4"); I("s_mov_b32 s45, s5")
    I("buffer_load_dwordx4 v[18:21], v7, s[44:47], 0 offen")
    I("buffer_load_dwordx4 v[22:25], v7, s[44:47], 0 offen offset:16")
    I("buffer_load_dword v26, v8, s[44:47], s56 offen")
    I("s_cselect_b32 s40, s18, s16")
    I("s_cselect_b32 s41, s19, s17")
    I("s_cmp_eq_u32 s30, 0")
    I("s_cselect_b32 s40, s10, s40")
    I("s_cselect_b32 s41, s11, s41")
    for t in range(16):
        I(f"buffer_load_dwordx4 v[{BB+4*t}:{BB+4*t+3}], v6, s[40:43], s53 offen {wflag}")
        if t < 15: I("s_add_u32 s53, s53, s52")
    I("s_barrier")
    I("s_load_dword s31, s[26:27], 0")
    srd(36, 26, WSN)
    I("s_getreg_b32 s59, hwreg(HW_REG_XCC_ID, 0, 4)")
    make_sel(SEL, 27)
    I("v_mov_b32 v27, 0x3f803f80")
    I("s_waitcnt vmcnt(16)")
    ST(17)
    seg(0)
    if ln2:
        I("v_dot2_f32_bf16 v28, v18, v27, 0")
        I("v_dot2_f32_bf16 v30, v18, v18, 0")
        for k in range(1, 8):
            I(f"v_dot2_f32_bf16 v28, v{18+k}, v27, v28")
            I(f"v_dot2_f32_bf16 v30, v{18+k}, v{18+k}, v30")
        for m in ("quad_perm:[1,0,3,2]", "quad_perm:[2,3,0,1]", "row_half_mirror"):
            for r in (28, 30): I(f"v_add_f32_dpp v{r}, v{r}, v{r} {m} {DPP}")
        for sw_ in ("v_permlane16_swap_b32", "v_permlane32_swap_b32"):
            for r in (28, 30): I(f"v_mov_b32 v{r+1}, v{r}")
            for r in (28, 30): I(f"{sw_} v{r}, v{r+1}")
            for r in (28, 30): I(f"v_add_f32 v{r}, v{r}, v{r+1}")
        I(f"v_mul_f32 v28, {hex(f2u(1/512))}, v28")
        I(f"v_mul_f32 v30, {hex(f2u(1/512))}, v30")
        I("v_fma_f32 v30, -v28, v28, v30")
        I("v_max_f32 v30, 0, v30")
    else:
        I("v_dot2_f32_bf16 v28, v18, v27, 0")
        I("v_dot2_f32_bf16 v29, v19, v27, 0")
        for k in range(2, 8, 2):
            I(f"v_dot2_f32_bf16 v28, v{18+k}, v27, v28")
            I(f"v_dot2_f32_bf16 v29, v{19+k}, v27, v29")
        for k in range(8):
            I(f"v_lshlrev_b32 v{32+2*k}, 16, v{18+k}")
            I(f"v_and_b32 v{33+2*k}, 0xffff0000, v{18+k}")
        I("v_add_f32 v28, v28, v29")
        def red32(r, t):
            I(f"v_add_f32_dpp v{r}, v{r}, v{r} quad_perm:[1,0,3,2] {DPP}")
            I(f"v_add_f32_dpp v{r}, v{r}, v{r} quad_perm:[2,3,0,1] {DPP}")
            I(f"v_add_f32_dpp v{r}, v{r}, v{r} row_half_mirror {DPP}")
            I(f"v_mov_b32 v{t}, v{r}")
            I(f"v_permlane16_swap_b32 v{r}, v{t}")
            I(f"v_add_f32 v{r}, v{r}, v{t}")
            I(f"v_mov_b32 v{t}, v{r}")
            I(f"v_permlane32_swap_b32 v{r}, v{t}")
            I(f"v_add_f32 v{r}, v{r}, v{t}")
        red32(28, 29)
        I(f"v_mul_f32 v28, {hex(f2u(1/512))}, v28")
        I("v_mov_b32 v29, v28")
        for k in range(8):
            I(f"v_pk_add_f32 v[{32+2*k}:{33+2*k}], v[{32+2*k}:{33+2*k}], v[28:29] neg_lo:[0,1] neg_hi:[0,1]")
        I("v_pk_mul_f32 v[30:31], v[32:33], v[32:33]")
        for k in range(1, 8):
            I(f"v_pk_fma_f32 v[30:31], v[{32+2*k}:{33+2*k}], v[{32+2*k}:{33+2*k}], v[30:31]")
        I("v_add_f32 v30, v30, v31")
        red32(30, 31)
        I(f"v_mul_f32 v30, {hex(f2u(1/512))}, v30")
    I("v_cvt_pk_bf16_f32 v28, v28, v30")
    I("v_and_b32 v30, 0xffff0000, v28")
    I("v_lshlrev_b32 v28, 16, v28")
    I(f"v_add_f32 v30, {hex(f2u(1e-5))}, v30")
    I("v_cvt_pk_bf16_f32 v30, v30, v30")
    I("v_and_b32 v30, 0xffff0000, v30")
    I("v_sqrt_f32 v30, v30")
    I("v_lshlrev_b32 v32, 16, v26")
    I("v_and_b32 v33, 0xffff0000, v26")
    I("v_cvt_pk_bf16_f32 v30, v30, v30")
    I("v_and_b32 v30, 0xffff0000, v30")
    I("v_rcp_f32 v30, v30")
    I("v_sub_f32 v32, v32, v28")
    I("v_sub_f32 v33, v33, v28")
    I("v_cvt_pk_bf16_f32 v26, v32, v33")
    I("v_lshlrev_b32 v32, 16, v26")
    I("v_and_b32 v33, 0xffff0000, v26")
    I("v_mul_f32 v32, v32, v30")
    I("v_mul_f32 v33, v33, v30")
    I("v_cvt_pk_bf16_f32 v26, v32, v33")
    ST(18)
    seg(1)
    for u in range(8):
        I(f"v_mov_b32_dpp v{18+u}, v26 row_newbcast:{u} row_mask:0xf bank_mask:0x3")
        I(f"v_mov_b32_dpp v{18+u}, v26 row_newbcast:{8+u} row_mask:0xf bank_mask:0xc")
    def pperm(t):
        for i in range(4):
            I(f"v_perm_b32 v{AB+4*t+i}, v{18+t//2}, v{18+t//2}, v{SEL+4*(t%2)+i}")
    pperm(0)
    for t in range(16):
        if t == 4: seg(2)
        if t == 10: seg(3)
        if t < 15: pperm(t + 1)
        I(f"s_waitcnt vmcnt({15-t})")
        c = "0" if t == 0 else f"v[{D}:{D+3}]"
        I(f"v_mfma_f32_16x16x32_bf16 v[{D}:{D+3}], v[{AB+4*t}:{AB+4*t+3}], v[{BB+4*t}:{BB+4*t+3}], {c}")
    seg(4, end=True)
    I("s_waitcnt lgkmcnt(0)")
    I("s_mul_i32 s31, s31, 1664525")
    I("s_add_u32 s31, s31, 1013904223")
    I("v_and_b32 v7, 1, v3")
    I("v_lshlrev_b32 v7, 4, v7")
    I("v_lshl_add_u32 v7, v2, 5, v7")
    I("v_lshrrev_b32 v8, 1, v3")
    I("v_lshl_add_u32 v7, v8, 9, v7")
    I("s_lshl_b32 s56, s30, 18")
    I("s_lshl_b32 s57, s35, 10")
    I("s_add_u32 s56, s56, s57")
    I(f"s_add_u32 s56, s56, {P0}")
    I("s_and_b32 s57, s31, 15")
    for r in range(3):
        I(f"s_bfe_u32 s{92+r}, s59, {hex(0x10000 + r)}")
        I(f"s_lshl_b32 s{92+r}, s{92+r}, 4")
        I(f"s_or_b32 s{92+r}, s{92+r}, s57")
    for r in range(3):
        I(f"v_bfi_b32 v{D+r}, 31, s{92+r}, v{D+r}")
    I(f"v_bfi_b32 v{D+3}, 15, s31, v{D+3}")
    I("s_cmp_eq_u32 s30, 1")
    I("s_cbranch_scc1 L_PG")
    if qfast:
        I(f"s_add_u32 s57, s56, {PX - P0}")
        I(f"buffer_store_dwordx4 v[{D}:{D+3}], v7, s[36:39], s57 offen")
    I(f"buffer_store_dwordx4 v[{D}:{D+3}], v7, s[36:39], s56 offen sc1")

    if kmode == 1: I(f"ds_write_b32 v4, v4 offset:{L_QP}")
    if kmode == 2:
        I("s_waitcnt vmcnt(1)")
        I(f"ds_write_b32 v4, v4 offset:{L_QP}")
    ST(5)
    a.label("L_PQ_tail")
    if abl:
        flush_stamps()
        I("s_endpgm")
    I("v_lshrrev_b32 v6, 5, v1")
    I("v_and_b32 v8, 31, v1")
    I("v_lshlrev_b32 v9, 3, v8")
    I("v_lshl_add_u32 v9, v6, 2, v9")
    I("v_lshlrev_b32 v6, 12, v6")
    I("v_lshl_add_u32 v6, v8, 4, v6")
    I("s_lshl_b32 s56, s28, 13")
    I("s_lshl_b32 s57, s32, 9")
    I("s_add_u32 s56, s56, s57")
    I(f"s_add_u32 s56, s56, {P0}")
    I(f"s_add_u32 s57, s56, {PX - P0 if qfast else 0}")
    def qloads(base, so="s56"):
        return [f"buffer_load_dwordx4 v[{base+4*k}:{base+3+4*k}], v6, s[36:39], {so} offen offset:{1024*k} sc1" for k in range(4)]
    def qsum(base):
        I(f"v_xor_b32 v28, s92, v{base}")
        for k in range(4):
            for r in range(3):
                if k or r: I(f"v_bitop3_b32 v28, v28, v{base+4*k+r}, s{92+r} bitop3:0xf6")
        I(f"v_pk_add_f32 v[32:33], v[{base}:{base+1}], v[{base+4}:{base+5}]")
        I(f"v_pk_add_f32 v[34:35], v[{base+2}:{base+3}], v[{base+6}:{base+7}]")
        I(f"v_pk_add_f32 v[40:41], v[{base+8}:{base+9}], v[{base+12}:{base+13}]")
        I(f"v_pk_add_f32 v[42:43], v[{base+10}:{base+11}], v[{base+14}:{base+15}]")
    ns = len(qlev)
    for k in range(ns):
        if qrel:
            if k == 0: ks_cur(28, "s60")
            I(f"s_add_u32 s61, s60, {qlev[k]}")
            I(f"s_min_u32 s61, s61, {16 // gran}")
            ks_wait(28, "s61")
        elif qlev[k]: ks_wait(28, qlev[k])
        if k == 0: ST(20)
        for l in qloads(48 + 16 * k, "s57"): I(l)
    for k in range(ns):
        I(f"s_waitcnt vmcnt({4*(ns-1-k)})")
        tagcheck(list(range(48 + 16 * k, 64 + 16 * k)), "15", 27)
        nx = lab("qn")
        I(f"s_cbranch_vccnz {nx}")
        qsum(48 + 16 * k)
        I("s_branch L_q_ok")
        a.label(nx)
    gpoll(qloads(32), list(range(32, 48)), "15", 27)
    qsum(32)
    a.label("L_q_ok")
    I("v_pk_add_f32 v[32:33], v[32:33], v[40:41]")
    I("v_pk_add_f32 v[34:35], v[34:35], v[42:43]")
    I("v_and_b32 v28, 31, v28")
    I("v_cmp_ne_u32 vcc, 0, v28")
    I("v_permlane32_swap_b32 v32, v34")
    I("v_permlane32_swap_b32 v33, v35")
    I("v_add_f32 v32, v32, v34")
    I("v_add_f32 v33, v33, v35")
    I("v_cvt_pk_bf16_f32 v32, v32, v33")
    I("s_cmp_eq_u64 vcc, 0")
    I(f"s_cselect_b32 s58, {1 if fast else 0}, 0")
    I(f"ds_write_b32 v9, v32 offset:{L_Q}")
    I("v_mov_b32 v33, s58")
    I(f"ds_write_b32 v4, v33 offset:{L_FQ}")
    ST(6)
    I("v_and_b32 v6, 7, v1")
    I("v_lshlrev_b32 v9, 2, v6")
    I("v_lshlrev_b32 v6, 7, v6")
    I("s_lshl_b32 s56, s35, 7")
    I(f"s_add_u32 s56, s56, {H1S}")
    I("s_lshl_b32 s57, s28, 10")
    I(f"s_add_u32 s57, s57, {H1S}")
    I("v_lshlrev_b32 v7, 4, v1")
    lds_spin(L_L, 4, 32, sleep=1)
    I(f"ds_read_b128 v[40:43], v4 offset:{L_M}")
    I("v_add_f32 v33, v32, v33")
    I("v_add_f32 v34, v34, v35")
    I("v_add_f32 v33, v33, v34")
    I("s_waitcnt lgkmcnt(0)")
    I("v_max3_f32 v32, v40, v41, v42")
    I("v_max_f32 v32, v32, v43")
    I("v_bfi_b32 v32, v5, s31, v32")
    I("v_bfi_b32 v33, v5, s31, v33")
    I("v_mov_b32 v34, v32")
    I("v_mov_b32 v35, v33")
    EX("0xff")
    I("s_cmp_eq_u32 s58, 1")
    I("s_cbranch_scc1 L_st_fast")
    I("buffer_store_dwordx4 v[32:35], v7, s[36:39], s56 offen sc1")
    I("s_branch L_st_pub")
    a.label("L_st_fast")
    I("buffer_store_dwordx4 v[32:35], v7, s[36:39], s56 offen")
    a.label("L_st_pub")
    EX(-1)
    ST(19)
    gpoll(["buffer_load_dwordx4 v[36:39], v6, s[36:39], s57 offen sc1"], [36, 37, 38, 39], "v5", 27)
    I("v_and_b32 v36, 0xffffff00, v36")
    I(f"v_max_f32_dpp v40, v36, v36 quad_perm:[1,0,3,2] {DPP}")
    I(f"v_max_f32_dpp v40, v40, v40 quad_perm:[2,3,0,1] {DPP}")
    I("v_sub_f32 v36, v36, v40")
    I(f"v_mul_f32 v36, {hex(f2u(1.4426950408889634))}, v36")
    I("v_exp_f32 v36, v36")
    I("v_mul_f32 v37, v36, v37")
    I(f"v_add_f32_dpp v37, v37, v37 quad_perm:[1,0,3,2] {DPP}")
    I(f"v_add_f32_dpp v37, v37, v37 quad_perm:[2,3,0,1] {DPP}")
    I("v_rcp_f32 v37, v37")
    I("v_mul_f32 v36, v36, v37")
    I(f"ds_write_b32 v9, v36 offset:{L_W}")
    dry_next("L_S_tail")
    ST(7)
    flush_stamps()
    I("s_endpgm")

    lg = {1: 0, 2: 1, 4: 2, 8: 3}
    def my_piece(sp, spc):
        I(f"s_lshr_b32 {sp}, s29, {lg[ncg]}")
        I(f"s_lshl_b32 {spc}, s28, {lg[nrb]}")
        I(f"s_add_u32 {sp}, {sp}, {spc}")
        I(f"s_and_b32 {spc}, s29, {ncg-1}")
        I(f"s_lshl_b32 {spc}, {spc}, {lg[nch]+6}")
        I(f"s_add_u32 {spc}, {spc}, {sp}")
    def out_off(dst, spc, tmp):
        I(f"s_lshr_b32 {dst}, {spc}, 6"); I(f"s_lshl_b32 {dst}, {dst}, 8")
        I(f"s_bfe_u32 {tmp}, {spc}, 0x10005"); I(f"s_lshl_b32 {tmp}, {tmp}, 10"); I(f"s_add_u32 {dst}, {dst}, {tmp}")
        I(f"s_and_b32 {tmp}, {spc}, 15"); I(f"s_lshl_b32 {tmp}, {tmp}, 4"); I(f"s_add_u32 {dst}, {dst}, {tmp}")
        I(f"s_bfe_u32 {tmp}, {spc}, 0x10004"); I(f"s_lshl_b32 {tmp}, {tmp}, 3"); I(f"s_add_u32 {dst}, {dst}, {tmp}")

    MK = 56 + 6
    PB = 4096 // ncons; LP = PB // 16; lgPB = PB.bit_length() - 1
    def fin_setup(vx, vo, vl, sb, so):
        I(f"s_and_b32 s63, s2, {ncons - 1}")
        I(f"s_lshl_b32 {sb}, s63, {6 + lgPB}")
        I(f"s_add_u32 {sb}, {sb}, {H2A}")
        I(f"s_lshr_b32 {so}, s63, {10 - lgPB}")
        I(f"s_lshl_b32 {so}, {so}, 8")
        I(f"s_lshl_b32 s63, s63, {lgPB}")
        I("s_bfe_u32 s62, s63, 0x10009"); I("s_lshl_b32 s62, s62, 10"); I(f"s_add_u32 {so}, {so}, s62")
        I("s_and_b32 s63, s63, 511"); I("s_lshr_b32 s63, s63, 1"); I(f"s_add_u32 {so}, {so}, s63")
        I(f"v_and_b32 {vo}, {LP - 1}, v1")
        I(f"v_lshlrev_b32 {vo}, 3, {vo}")
        I(f"v_lshl_add_u32 {vo}, v3, 1, {vo}")
        I(f"v_lshlrev_b32 {vl}, 4, v1")
    def fin_run(vx, vo, vl, sb, sb2, so, B0):
        I(f"s_add_u32 {sb2}, {sb}, 0x1000")
        if not ring:
            gpoll([f"buffer_load_dwordx4 v[{B0+4*k}:{B0+3+4*k}], {vl}, s[36:39], {sb if k < 4 else sb2} offen offset:{1024*(k%4)} {ldf}" for k in range(LP)],
                  list(range(B0, B0 + 4 * LP)), "v5", 27)
        else:
            S0 = B0 + 32
            L = lab("ring")
            a.label(L)
            for k in range(LP):
                sk = lab("rs"); M = f"s[{MK+2*k}:{MK+2*k+1}]"; G = B0 + 4 * k; S = S0 + 4 * k
                I(f"s_mov_b64 exec, {M}")
                I(f"s_cbranch_execz {sk}")
                I(f"v_mov_b64 v[{G}:{G+1}], v[{S}:{S+1}]")
                I(f"v_mov_b64 v[{G+2}:{G+3}], v[{S+2}:{S+3}]")
                I(f"v_xor_b32 v27, s31, v{G}")
                for w in range(1, 4): I(f"v_bitop3_b32 v27, v27, v{G+w}, s31 bitop3:0xf6")
                I("v_and_b32 v27, v5, v27")
                I(f"v_cmpx_ne_u32_e64 {M}, 0, v27")
                I(f"s_cbranch_execz {sk}")
                I(f"buffer_load_dwordx4 v[{S}:{S+3}], {vl}, s[36:39], {sb if k < 4 else sb2} offen offset:{1024*(k%4)} {ldf}")
                a.label(sk)
            I(f"s_sub_u32 {SC}, {SC}, 8")
            I("s_cbranch_scc1 L_end")
            I(f"s_or_b64 s[{MK+16}:{MK+17}], s[{MK}:{MK+1}], s[{MK+2*(LP-1)}:{MK+2*(LP-1)+1}]")
            for k in range(1, LP - 1):
                I(f"s_or_b64 s[{MK+16}:{MK+17}], s[{MK+16}:{MK+17}], s[{MK+2*k}:{MK+2*k+1}]")
            d = lab("rd")
            I(f"s_cbranch_scc0 {d}")
            I(f"s_waitcnt vmcnt({ring})")
            I(f"s_branch {L}")
            a.label(d)
            EX(-1)
        ST(11)
        n = LP
        while n > 1:
            n //= 2
            for k in range(n):
                for hh in (0, 2):
                    I(f"v_pk_add_f32 v[{B0+4*k+hh}:{B0+4*k+hh+1}], v[{B0+4*k+hh}:{B0+4*k+hh+1}], v[{B0+4*(k+n)+hh}:{B0+4*(k+n)+hh+1}]")
        V = B0
        I(f"v_permlane32_swap_b32 v{V}, v{V+2}")
        I(f"v_permlane32_swap_b32 v{V+1}, v{V+3}")
        I(f"v_add_f32 v{V}, v{V}, v{V+2}")
        I(f"v_add_f32 v{V+1}, v{V+1}, v{V+3}")
        I(f"v_permlane16_swap_b32 v{V}, v{V+1}")
        I(f"v_add_f32 v{V}, v{V}, v{V+1}")
        for r in (8, 4, 2, 1):
            if r >= LP: I(f"v_add_f32_dpp v{V}, v{V}, v{V} row_ror:{r} {DPP}")
        I(f"v_add_f32 v{V}, {vx}, v{V}")
        I(f"v_cvt_pk_bf16_f32 v{V}, v{V}, v{V}")
        m = ((1 << LP) - 1) * 0x10001
        I(f"s_mov_b32 exec_lo, {hex(m)}"); I(f"s_mov_b32 exec_hi, {hex(m)}")
        I(f"buffer_store_short v{V}, {vo}, s[48:51], {so} offen")
        e = lab("fe")
        I("s_cmp_eq_u32 s2, 0")
        I(f"s_cbranch_scc0 {e}")
        EX(1)
        I("v_mov_b32 v33, s31")
        I("buffer_store_dword v33, v4, s[36:39], 0 offen sc1")
        a.label(e)
        ST(12)

    a.label("L_PG")
    stamps.clear(); sreg[0] = 80
    I(f"buffer_store_dwordx4 v[{D}:{D+3}], v7, s[36:39], s56 offen sc1")
    srd(40, 20, 1376 * 1024)
    I("s_lshl_b32 s58, s90, 11")
    I("v_mul_lo_u32 v6, v3, s58")
    I("v_lshl_add_u32 v6, v2, 4, v6")
    I("s_and_b32 s57, s28, 1")
    I("s_lshl_b32 s57, s57, 1")
    I("s_add_u32 s57, s57, s32")
    I("s_mul_i32 s57, s57, s90")
    I("s_lshl_b32 s52, s91, 2")
    I("s_add_u32 s52, s52, s57")
    I("s_lshl_b32 s52, s52, 13")
    I("s_lshl_b32 s53, s33, 8")
    I("s_add_u32 s52, s52, s53")
    I("s_add_u32 s53, s52, 0x1000")
    def wdloads():
        e = lab("wde")
        for t in range(8):
            if t and t % 2 == 0:
                I(f"s_cmp_le_u32 s90, {t//2}")
                I(f"s_cbranch_scc1 {e}")
            I(f"buffer_load_dwordx4 v[{BB+4*t}:{BB+4*t+3}], v6, s[40:43], s{52+t//4} offen offset:{(t%4)*1024} {wflag}")
        a.label(e)
    if not wdlate: wdloads()
    fin_setup("v164", "v165", "v9", "s54", "s55")
    I("buffer_load_ushort v164, v165, s[44:47], s55 offen")
    srd(48, 22, 2048)
    I("v_lshrrev_b32 v7, 3, v2")
    I("v_lshlrev_b32 v7, 9, v7")
    I("v_and_b32 v27, 7, v2")
    I("s_sub_u32 s56, s90, 1")
    I("v_min_u32 v27, s56, v27")
    I("v_lshl_add_u32 v7, v27, 3, v7")
    I("s_lshl_b32 s56, s90, 3")
    I("v_mad_u32_u24 v7, v3, s56, v7")
    I("s_and_b32 s56, s28, 30")
    I("s_lshl_b32 s56, s56, 13")
    I("s_lshl_b32 s57, s57, 5")
    I("s_add_u32 s56, s56, s57")
    for k in range(4):
        I(f"s_add_u32 s{60+k}, s56, {P1 + 0x1000*k}")
    G0 = 128
    a.label("L_PG_tail")
    if abl or noffn == 1:
        I("s_waitcnt vmcnt(0)"); ST(13)
        flush_stamps()
        I("s_endpgm")
    if qrel:
        ks_cur(28, "s56")
        I(f"s_add_u32 s56, s56, {glev}")
        I(f"s_min_u32 s56, s56, {16 // gran}")
        ks_wait(28, "s56")
    else: ks_wait(28, glev)
    gpoll([f"buffer_load_dwordx2 v[{G0+2*k}:{G0+1+2*k}], v7, s[36:39], s{60+k//4} offen offset:{1024*(k%4)} sc1" for k in range(16)],
          list(range(G0, G0 + 32)), "15", 27)
    ST(13)
    for base in (G0, G0 + 16):
        for k in range(4):
            I(f"v_pk_add_f32 v[{base+2*k}:{base+2*k+1}], v[{base+2*k}:{base+2*k+1}], v[{base+8+2*k}:{base+9+2*k}]")
        for k in range(2):
            I(f"v_pk_add_f32 v[{base+2*k}:{base+2*k+1}], v[{base+2*k}:{base+2*k+1}], v[{base+4+2*k}:{base+5+2*k}]")
        I(f"v_pk_add_f32 v[{base}:{base+1}], v[{base}:{base+1}], v[{base+2}:{base+3}]")
    I(f"v_cvt_pk_bf16_f32 v28, v{G0}, v{G0+1}")
    I(f"v_cvt_pk_bf16_f32 v29, v{G0+16}, v{G0+17}")
    I("v_lshlrev_b32 v30, 16, v28")
    I("v_and_b32 v31, 0xffff0000, v28")
    I(f"v_mul_f32 v30, {hex(f2u(-1.4426950408889634))}, v30")
    I(f"v_mul_f32 v31, {hex(f2u(-1.4426950408889634))}, v31")
    I("v_exp_f32 v30, v30")
    I("v_exp_f32 v31, v31")
    I("v_add_f32 v30, 1.0, v30")
    I("v_add_f32 v31, 1.0, v31")
    I("v_rcp_f32 v30, v30")
    I("v_rcp_f32 v31, v31")
    I("v_lshlrev_b32 v32, 16, v29")
    I("v_and_b32 v33, 0xffff0000, v29")
    I("v_cvt_pk_bf16_f32 v28, v30, v31")
    I("v_lshlrev_b32 v30, 16, v28")
    I("v_and_b32 v31, 0xffff0000, v28")
    I("v_mul_f32 v30, v30, v32")
    I("v_mul_f32 v31, v31, v33")
    I("v_cvt_pk_bf16_f32 v26, v30, v31")
    if wdlate:
        trig_wait(27, 1)
        wdloads()
        I("s_waitcnt vmcnt(0)")
    for u in range(4):
        I(f"v_mov_b32_dpp v{18+u}, v26 row_newbcast:{u} row_mask:0xf bank_mask:0x3")
        I(f"v_mov_b32_dpp v{18+u}, v26 row_newbcast:{8+u} row_mask:0xf bank_mask:0xc")
    for u in range(4):
        if u:
            I(f"s_cmp_le_u32 s90, {u}")
            I("s_cbranch_scc1 L_wd_done")
        for t in (2*u, 2*u+1):
            for i in range(4):
                I(f"v_perm_b32 v{AB+4*t+i}, v{18+u}, v{18+u}, v{SEL+4*(t%2)+i}")
        for t in (2*u, 2*u+1):
            c = "0" if t == 0 else f"v[{D}:{D+3}]"
            I(f"v_mfma_f32_16x16x32_bf16 v[{D}:{D+3}], v[{AB+4*t}:{AB+4*t+3}], v[{BB+4*t}:{BB+4*t+3}], {c}")
    a.label("L_wd_done")
    I("s_nop 7")
    I("v_lshlrev_b32 v164, 16, v164")
    I(f"ds_write_b128 v9, v[{D}:{D+3}] offset:{L_YF}")
    I(f"ds_write_b32 v4, v4 offset:{L_FX}")
    ST(14)
    if stamp:
        for q in (0, 2): I(f"s_memrealtime s[{sreg[0]+q}:{sreg[0]+q+1}]")
        I("s_waitcnt lgkmcnt(0)")
    I(f"s_cmp_lt_u32 s2, {ncons}")
    I("s_cbranch_scc0 L_end" if stamp == "dbg" else "s_cbranch_scc0 L_f_end")
    if ring:
        I("s_not_b32 s56, s31")
        for k in range(LP):
            I(f"s_mov_b64 s[{MK+2*k}:{MK+2*k+1}], -1")
            I(f"v_mov_b32 v{64+4*k}, s56")
    if 'f' in w2: walk("L_Ffin", "L_f_end")
    a.label("L_Ffin")
    if fwait == 1: lds_spin(L_OPUB, 1, 27, sleep=1)
    if fwait == 2: lds_spin(L_YPUB, 1, 27, sleep=1)
    fin_run("v164", "v165", "v9", "s54", "s53", "s55", 32)
    a.label("L_f_end")
    flush_stamps()
    I("s_endpgm")

    a.raw("@@PEND@@")
    a.label("L_T")
    stamps.clear(); sreg[0] = 66
    tmode[0] = True
    if prio: I("s_setprio 3")
    DT = 80 if nch > 1 else D
    I("v_lshlrev_b32 v6, 2, v1")
    for r in range(4): I(f"v_mov_b32 v{12+r}, -1")
    I("v_lshlrev_b32 v7, 4, v1")
    I(f"ds_write_b32 v6, v12 offset:{L_M}")
    I(f"ds_write_b128 v7, v[12:15] offset:{L_P2}")
    I("s_waitcnt lgkmcnt(0)")
    I("s_barrier")
    I(f"v_lshlrev_b32 v6, {10 + lg[nch == 4 and 4 or 1] * 0 + {16:4, 8:3, 4:2}[nt]}, v3")
    I("v_lshl_add_u32 v6, v2, 4, v6")
    my_piece("s58", "s59")
    I(f"s_lshl_b32 s52, s58, {10 + {64:6, 32:5, 16:4}[R]}")
    I(f"s_and_b32 s53, s29, {ncg-1}")
    I(f"s_lshl_b32 s53, s53, {8 + lg[nch]}")
    I("s_add_u32 s52, s52, s53")
    I("s_add_u32 s53, s52, 0x1000")
    I("s_add_u32 s54, s52, 0x2000")
    I("s_add_u32 s55, s52, 0x3000")
    I("s_mov_b32 s42, 0x400000"); I("s_mov_b32 s43, 0x20000")
    I("s_mov_b32 s40, s12"); I("s_mov_b32 s41, s13")
    def woload(k):
        t, cb = k // nch, k % nch
        I(f"buffer_load_dwordx4 v[{BB+4*k}:{BB+4*k+3}], v6, s[40:43], s{52+t//4} offen offset:{(t%4)*1024 + cb*256} {wflag}")
    for k in range(wopre): woload(k)
    srd(36, 26, WSN)
    if dense:
        I("s_mov_b32 s86, 0x05040100"); I("s_mov_b32 s87, 0x07060302")
        I("s_mov_b32 s88, 0xffff0000"); I("s_mov_b32 s89, 0xffff0000")
    else: make_sel(SEL, 27)
    assert nch == 1
    I("v_and_b32 v8, 1, v3")
    I("v_lshlrev_b32 v8, 4, v8")
    I("v_lshl_add_u32 v8, v2, 5, v8")
    I("v_lshrrev_b32 v9, 1, v3")
    I("v_lshl_add_u32 v8, v9, 9, v8")
    I(f"v_lshrrev_b32 v9, {lgPB}, v8")
    I(f"v_and_b32 v8, {PB - 1}, v8")
    I(f"v_lshl_add_u32 v8, v9, {6 + lgPB}, v8")
    I("s_lshl_b32 s60, s33, 16")
    I(f"s_lshl_b32 s61, s58, {lgPB}")
    I("s_add_u32 s60, s60, s61")
    I(f"s_add_u32 s60, s60, {H2A}")
    I("v_lshlrev_b32 v167, 4, v1")
    I("v_lshrrev_b32 v27, 3, v2")
    I("v_lshlrev_b32 v166, 4, v27")
    I("v_lshlrev_b32 v7, 11, v27")
    I(f"v_lshl_add_u32 v7, v3, {2 + {16:4, 8:3, 4:2}[nt]}, v7")
    I("v_and_b32 v27, 7, v2")
    if nt < 16: I(f"v_min_u32 v27, {nt//2 - 1}, v27")
    I("v_lshl_add_u32 v7, v27, 3, v7")
    I("s_lshl_b32 s56, s28, 12")
    I(f"s_lshr_b32 s57, s29, {lg[ncg]}")
    I(f"s_lshl_b32 s57, s57, {2 + {64:6, 32:5, 16:4}[R]}")
    I("s_add_u32 s56, s56, s57")
    I(f"s_add_u32 s56, s56, {H1O}")
    if 't' in w2: walk("L_T_tail", "L_end")
    a.label("L_T_tail")
    if smtest:
        ks_wait(28, smtest)
        I("s_lshl_b32 s44, s28, 13")
        I(f"s_add_u32 s44, s44, {PX}")
        ST(29); I("s_waitcnt lgkmcnt(0)")
        I("s_load_dwordx16 s[80:95], s[26:27], s44 glc"); I("s_waitcnt lgkmcnt(0)")
        ST(30); I("s_waitcnt lgkmcnt(0)")
        I("s_load_dwordx16 s[80:95], s[26:27], s44 glc"); I("s_waitcnt lgkmcnt(0)")
        ST(31); I("s_waitcnt lgkmcnt(0)")
        I("s_load_dwordx16 s[80:95], s[26:27], s44"); I("s_waitcnt lgkmcnt(0)")
        ST(23); I("s_waitcnt lgkmcnt(0)")
    trig_wait(27, 1)
    ST(24)
    for k in range(wopre, 16): woload(k)
    ST(8)
    if abl:
        I("s_waitcnt vmcnt(0)"); ST(9)
        flush_stamps()
        I("s_endpgm")
    lds_spin(L_FX, 1, 44, sleep=1)
    I(f"ds_read_b128 v[{DT}:{DT+3}], v167 offset:{L_YF}")
    ST(15)
    lds_spin(L_OPUB, 1, 27)
    I("v_readfirstlane_b32 s31, v27")
    ST(28)
    if dense:
        ol = [f"buffer_load_dwordx2 v[{10+2*s}:{11+2*s}], v7, s[36:39], s56 offen offset:{512*s} sc1" for s in range(4)]
        for l in ol: I(l)
        TB, DA = 32, 96
        for kb in range(2):
            for i in range(4):
                I(f"s_waitcnt vmcnt({4 + 14 - 8*kb - 2*i})")
                for cb in range(8):
                    I(f"v_perm_b32 v{TB+32*kb+4*cb+i}, v{BB+4*(8*kb+2*i+1)+cb//2}, v{BB+4*(8*kb+2*i)+cb//2}, s{86+cb%2}")
            if kb == 0:
                for cb in range(8): I(f"v_mov_b32 v{DA+4*cb}, v{DT+cb%4}")
        lds_spin(L_W, 4, 26, addr="v166")
        I("s_waitcnt vmcnt(0)")
        tagcheck(list(range(10, 18)), "v5", 31)
        I("s_cbranch_vccz L_o_ok")
        gpoll(ol, list(range(10, 18)), "v5", 31)
        a.label("L_o_ok")
        ST(9)
        I("v_mul_f32 v10, v10, v26")
        I("v_mul_f32 v11, v11, v26")
        for s_ in range(1, 4):
            I(f"v_fmac_f32 v10, v{10+2*s_}, v{26+s_}")
            I(f"v_fmac_f32 v11, v{11+2*s_}, v{26+s_}")
        I("v_cvt_pk_bf16_f32 v9, v10, v11")
        def amov(k):
            u, hi = k // 2, k % 2
            I(f"v_mov_b32_dpp v{18+u}, v9 row_newbcast:{8*hi+u} row_mask:0xf bank_mask:{'0xc' if hi else '0x3'}")
        for k in range(8): amov(k)
        for kb in range(2):
            for cb in range(8):
                d = DA + 4 * cb
                I(f"v_mfma_f32_16x16x32_bf16 v[{d}:{d+3}], v[{18+4*kb}:{21+4*kb}], v[{TB+32*kb+4*cb}:{TB+32*kb+4*cb+3}], v[{d}:{d+3}]")
                if kb == 0 and cb < 4: amov(8 + 2 * cb); amov(9 + 2 * cb)
        for r in range(4):
            I(f"v_cndmask_b32 v{DT+r}, v{DA+4*r}, v{DA+16+4*r}, s[88:89]")
        for r in range(4):
            I(f"v_bfi_b32 v{DT+r}, v5, s31, v{DT+r}")
    else:
        gpoll([f"buffer_load_dwordx2 v[{32+2*s}:{33+2*s}], v7, s[36:39], s56 offen offset:{512*s} sc1" for s in range(4)],
              list(range(32, 40)), "v5", 27)
        ST(9)
        lds_spin(L_W, 4, 40, addr="v166")
        I("v_mul_f32 v32, v32, v40")
        I("v_mul_f32 v33, v33, v40")
        for s in range(1, 4):
            I(f"v_fmac_f32 v32, v{32+2*s}, v{40+s}")
            I(f"v_fmac_f32 v33, v{33+2*s}, v{40+s}")
        I("v_cvt_pk_bf16_f32 v26, v32, v33")
        build_mfma(26, SEL, 18, AB, BB, DT, nt // 2, nch, cinit=True)
        for r in range(4):
            I(f"v_bfi_b32 v{DT+r}, v5, s31, v{DT+r}")
    I(f"buffer_store_dwordx4 v[{DT}:{DT+3}], v8, s[36:39], s60 offen {stf}")
    if fwait == 2: I(f"ds_write_b32 v4, v4 offset:{L_YPUB}")
    ST(10)
    flush_stamps()
    I("s_endpgm")
    a.label("L_end")
    I("s_endpgm")

    nv = a.maxv + 1
    head = HDR + f"""; @launch grid=(256,1,1) block=(704,1,1) lds={LDS_BYTES}
.amdgcn_target "amdgcn-amd-amdhsa--gfx950"
.text
.globl {KN}_kernel
.p2align 8
.type {KN}_kernel,@function
{KN}_kernel:
"""
    foot = f""".section .rodata,"a"
.p2align 6
.amdhsa_kernel {KN}_kernel
  .amdhsa_next_free_vgpr {nv}
  .amdhsa_next_free_sgpr {max(a.maxs + 1, 16)}
  .amdhsa_accum_offset {(nv + 3) // 4 * 4}
  .amdhsa_group_segment_fixed_size 0
  .amdhsa_kernarg_size 96
  .amdhsa_user_sgpr_count 2
  .amdhsa_user_sgpr_kernarg_segment_ptr 1
  .amdhsa_system_sgpr_workgroup_id_x 1
  .amdhsa_float_denorm_mode_32 3
.end_amdhsa_kernel
"""
    txt = a.text()
    i0 = txt.index("@@PBEG@@\n"); i1 = txt.index("@@PEND@@\n")
    P = txt[i0 + 9:i1]
    txt = txt[:i0] + txt[i1 + 9:]
    txt = txt.replace("@@P@@\n", P)
    if warm: txt = add_pads(head, txt, foot, pad, s1lab)
    return head + txt + foot

def add_pads(head, txt, foot, pad, s1lab):
    import re, subprocess
    lines = txt.rstrip("\n").split("\n")
    def isins(l):
        t = l.strip(); return t and not t.endswith(":") and not t.startswith((";", "@@"))
    tmp = re.sub(r"@@(W1SH)@@", "7", txt)
    tmp = re.sub(r"@@OFFH[^@]*@@", "0", tmp)
    tmp = re.sub(r"@@CNT[^@]*@@", "5", tmp)
    tmp = re.sub(r"(?m)^\s*@@[A-Z]*@@\n", "", tmp)
    tmp = re.sub(r"@@[^@]*@@", "0x12345", tmp)
    open("_pad.s", "w").write(head + tmp + foot)
    subprocess.check_call(["clang", "-x", "assembler", "-target", "amdgcn-amd-amdhsa", "-mcpu=gfx950", "-c", "_pad.s", "-o", "_pad.o"])
    d = subprocess.check_output(["llvm-objdump", "-d", "_pad.o"], text=True)
    sizes = [4 * len(m.group(1).split()) for m in re.finditer(r"// [0-9A-F]{12}: ([0-9A-F ]+)", d)]
    assert len(sizes) == sum(isins(l) for l in lines), (len(sizes), sum(isins(l) for l in lines))
    out = []; pos = 0; k = 0; on = False; labels = {}; pads = []
    i = 0
    while i < len(lines):
        l = lines[i]; t = l.strip()
        if t == "@@PADSTART@@": on = True; i += 1; continue
        if t == "@@PADOK@@": i += 1; continue
        if t == "@@NOPAD@@":
            j = i + 1; n = 0; kk = k
            while lines[j].strip() != "@@PADOK@@":
                if isins(lines[j]): n += sizes[kk]; kk += 1
                j += 1
            assert n + 4 <= pad
            if on and (pos % pad == 0 or (pos % pad) + n > pad):
                while pos % pad: out.append("  s_nop 0"); pos += 4
                pads.append(pos); out.append("  s_cbranch_execz L_wret"); pos += 4
            i += 1; continue
        if isins(l):
            sz = sizes[k]; k += 1
            if on:
                if pos % pad == pad - 4 and sz == 8: out.append("  s_nop 0"); pos += 4
                if pos % pad == 0:
                    tail = []
                    while out and out[-1].strip().endswith(":"): tail.insert(0, out.pop())
                    pads.append(pos); out.append("  s_cbranch_execz L_wret"); pos += 4
                    for x in tail:
                        out.append(x)
                        if not x.strip().startswith('L_wpc'): labels[x.strip()[:-1]] = pos
            out.append(l); pos += sz
        else:
            if t.endswith(":"): labels[t[:-1]] = pos
            out.append(l)
        i += 1
    assert pads == list(range(pads[0], pads[-1] + 1, pad)), "pad gap"
    txt = "\n".join(out) + "\n"
    up = lambda x: min((x + pad - 1) // pad * pad, pads[-1] + pad)
    def st(l0, g):
        x = up(labels[l0])
        while -16 <= x - labels[g] <= 64: x += pad
        return x
    txt = re.sub(r"@@OFF:([^:@]*):([^@]*)@@", lambda m: hex((st(m.group(1), m.group(2)) - labels[m.group(2)]) & 0xffffffff), txt)
    txt = re.sub(r"@@OFFH:([^:@]*):([^@]*)@@", lambda m: "-1" if st(m.group(1), m.group(2)) < labels[m.group(2)] else "0", txt)
    def f_cnt(m):
        c = (up(labels[m.group(2)]) - st(m.group(1), m.group(3))) // pad
        assert 1 <= c <= 64
        return str(c)
    txt = re.sub(r"@@CNT:([^:@]*):([^:@]*):([^@]*)@@", f_cnt, txt)
    if s1lab:
        n = (pads[-1] - st("L_P", s1lab[0])) // 128 + 1
        assert 64 < n <= 128
        txt = txt.replace("@@W1LIM@@", str(n))
    return txt

if __name__ == "__main__":
    import json
    name = sys.argv[1]; kw = {}
    for x in sys.argv[2:]:
        k, v = x.split("="); kw[k] = eval(v)
    open(name, "w").write(gen(**kw))
```

```python
import sys, struct
from asmlib import Asm
from common import KN
def f2u(x): return struct.unpack("<I", struct.pack("<f", x))[0]

HDR = open("cdna_kernels/" + KN + ".s.ref").read().split("; Override launch")[0]

PX = 0x140000; P0 = 0x10000; P1 = 0x50000; H1S = 0x90000; H1O = 0xA0000; H2F = 0xC0000; H2A = 0x100000
L_Q = 0x000; L_M = 0x100; L_L = 0x110; L_W = 0x120; L_FX = 0x140; L_FQ = 0x160; L_TRIG = 0x164; L_OCNT = 0x168; L_OPUB = 0x16c; L_KS = 0x170; L_YPUB = 0x180; L_QP = 0x184; L_P2 = 0x200; L_PART = 0x600; L_YF = 0xE00
LDS_BYTES = 0x1200

def gen(stamp=False, kvflag="nt", wflag="nt", prio=True, R=64, fast=True, wopre=0, qfast=True, sw=0, abl=0, gran=4, lag=0, qlev=(2,), glev=2, kwin=0, vwin=0, rot=0, noffn=0, noy=0, ysleep=0, fdefer=0, qrel=0, wdlate=0, wotrig=0, merge=1, fearly=0, ncons=32, fin='F', fwait=1, ring=0, ldf='sc1', stf='sc1', smtest=0, k0=0, kmode=0, vq=0, ln2=0, dry=0, warm=0, pad=64, w2='', dbgs=(0, 22, 5, 6, 21, 9, 10, 12), units=(8,7,7,6,4,3,4,4), dense=0, dbgx=0):
    a = Asm(); I = a.i
    uid = [0]
    def lab(p):
        uid[0] += 1; return f"L_{p}_{uid[0]}"
    SC = "s34"
    stamps = {}
    sreg = [64]
    DBG = dict(zip(dbgs, range(8)))
    tmode = [False]
    def ST(slot):
        if not stamp: return
        if stamp == "dbg":
            if slot not in DBG: return
            slot = DBG[slot]
        r = sreg[0]; sreg[0] += 2
        stamps[slot] = r
        I(f"s_memrealtime s[{r}:{r+1}]")
    def flush_stamps():
        if not stamp: return
        if not stamps: return
        I("s_mov_b64 exec, 1")
        I("s_waitcnt lgkmcnt(0)")
        if stamp == "dbg":
            fin_ = 7 in stamps
            for slot, r in stamps.items():
                I(f"v_mov_b32 v6, s{r}")
                I(f"ds_write_b32 v4, v6 offset:{0x1c0 + 4*slot}")
            if dbgx and tmode[0]:
                srd(96, 24, 256)
                I("v_mov_b32 v7, 0")
                I(f"ds_read_b32 v6, v7 offset:{0x1c0 + 4*DBG[dbgx[0]]}")
                I(f"ds_read_b32 v8, v7 offset:{0x1c0 + 4*DBG[dbgx[1]]}")
                I("s_getreg_b32 s52, hwreg(HW_REG_XCC_ID, 0, 4)")
                I("s_and_b32 s53, s2, 7"); I("s_lshl_b32 s53, s53, 2")
                I("s_waitcnt lgkmcnt(0)")
                I("v_lshlrev_b32 v6, 4, v6"); I("v_or_b32 v6, s52, v6")
                I("v_lshlrev_b32 v8, 4, v8"); I("v_or_b32 v8, s52, v8")
                I("buffer_atomic_umax v6, v7, s[96:99], s53 offen sc1")
                I("buffer_atomic_umax v8, v7, s[96:99], s53 offen offset:32 sc1")
            elif dbgx: pass
            elif tmode[0] or fin_:
                srd(96, 24, 256)
                I("s_mov_b64 exec, " + ("0x80" if fin_ else "0x7f"))
                I("v_lshlrev_b32 v7, 2, v1")
                I("ds_read_b32 v6, v7 offset:0x1c0")
                I("s_waitcnt lgkmcnt(0)")
                I("buffer_atomic_umax v6, v7, s[96:99], 0 offen sc1")
                I("v_not_b32 v8, v6")
                I("buffer_atomic_umax v8, v7, s[96:99], 0 offen offset:32 sc1")
            stamps.clear(); sreg[0] = 64
            return
        I("s_lshl_b32 s52, s2, 7")
        I("s_add_u32 s52, s52, 0x8000000")
        for slot, r in stamps.items():
            I(f"v_mov_b32 v6, s{r}")
            I(f"buffer_store_dword v6, v4, s[36:39], s52 offen offset:{4*slot}")
        stamps.clear(); sreg[0] = 64
    def lds_spin(off, n, dst, addr="v4", sleep=0):
        L = lab("spin"); O = lab("spino")
        a.label(L)
        if sleep: I(f"s_sleep {sleep}")
        if n == 1: I(f"ds_read_b32 v{dst}, {addr} offset:{off}")
        elif n == 2: I(f"ds_read_b64 v[{dst}:{dst+1}], {addr} offset:{off}")
        else: I(f"ds_read_b128 v[{dst}:{dst+3}], {addr} offset:{off}")
        I(f"s_sub_u32 {SC}, {SC}, 1")
        I("s_waitcnt lgkmcnt(0)")
        I("s_cbranch_scc1 L_end")
        t = dst
        if n == 2:
            t = dst + 2; I(f"v_max_u32 v{t}, v{dst}, v{dst+1}")
        if n == 4:
            t = dst + 4
            I(f"v_max3_u32 v{t}, v{dst}, v{dst+1}, v{dst+2}")
            I(f"v_max_u32 v{t}, v{t}, v{dst+3}")
        I(f"v_cmp_eq_u32 vcc, -1, v{t}")
        I(f"s_cbranch_vccnz {L}")
        a.label(O)
    def trig_wait(tmp, k):
        L = lab("trig"); O = lab("trigo")
        a.label(L)
        I("s_sleep 1")
        I(f"ds_read_b32 v{tmp}, v4 offset:{L_TRIG}")
        I(f"s_sub_u32 {SC}, {SC}, 1")
        I("s_waitcnt lgkmcnt(0)")
        I("s_cbranch_scc1 L_end")
        I(f"v_cmp_gt_i32 vcc, {4*k-1}, v{tmp}")
        I(f"s_cbranch_vccnz {L}")
        a.label(O)
    def ks_wait(tmp, lev, one=None):
        L = lab("ks")
        a.label(L)
        I("s_sleep 1")
        if one: I(f"ds_read_b32 v{tmp}, {one} offset:{L_KS}")
        else: I(f"ds_read_b128 v[{tmp}:{tmp+3}], v4 offset:{L_KS}")
        I(f"s_sub_u32 {SC}, {SC}, 1")
        I("s_waitcnt lgkmcnt(0)")
        I("s_cbranch_scc1 L_end")
        if not one:
            I(f"v_min3_i32 v{tmp}, v{tmp}, v{tmp+1}, v{tmp+2}")
            I(f"v_min_i32 v{tmp}, v{tmp}, v{tmp+3}")
        I(f"v_cmp_gt_i32 vcc, {lev}, v{tmp}")
        I(f"s_cbranch_vccnz {L}")
    def ks_cur(tmp, dst):
        I(f"ds_read_b128 v[{tmp}:{tmp+3}], v4 offset:{L_KS}")
        I("s_waitcnt lgkmcnt(0)")
        I(f"v_min3_i32 v{tmp}, v{tmp}, v{tmp+1}, v{tmp+2}")
        I(f"v_min_i32 v{tmp}, v{tmp}, v{tmp+3}")
        I(f"v_max_i32 v{tmp}, 0, v{tmp}")
        I(f"v_readfirstlane_b32 {dst}, v{tmp}")
    def gpoll(loads, words, tagmask, acc):
        L = lab("poll"); O = lab("pollo")
        a.label(L)
        for l in loads: I(l)
        I(f"s_sub_u32 {SC}, {SC}, 64")
        I("s_waitcnt vmcnt(0)")
        I("s_cbranch_scc1 L_end")
        I(f"v_xor_b32 v{acc}, s31, v{words[0]}")
        for w in words[1:]:
            I(f"v_bitop3_b32 v{acc}, v{acc}, v{w}, s31 bitop3:0xf6")
        I(f"v_and_b32 v{acc}, {tagmask}, v{acc}")
        I(f"v_cmp_ne_u32 vcc, 0, v{acc}")
        I(f"s_cbranch_vccnz {L}")
        a.label(O)
    def srd(d, lo, n):
        I(f"s_mov_b32 s{d}, s{lo}"); I(f"s_mov_b32 s{d+1}, s{lo+1}")
        I(f"s_mov_b32 s{d+2}, {hex(n)}"); I(f"s_mov_b32 s{d+3}, 0x20000")
    DPP = "row_mask:0xf bank_mask:0xf"
    def make_sel(S, t0):
        I(f"v_and_b32 v{t0}, 1, v2")
        I(f"v_cmp_eq_u32 vcc, 1, v{t0}")
        I(f"v_bfe_u32 v{t0}, v2, 1, 2")
        I(f"v_mov_b32 v{t0+3}, 0x0c0c0c0c")
        for e in range(2):
            ev = 0x0c0c0000 | (2*e+1) << 8 | (2*e)
            od = (2*e+1) << 24 | (2*e) << 16 | 0x0c0c
            I(f"v_mov_b32 v{S}, {hex(ev)}")
            I(f"v_mov_b32 v{S+1}, {hex(od)}")
            I(f"v_cndmask_b32 v{t0+1+e}, v{S}, v{S+1}, vcc")
        for i in range(4):
            I(f"v_cmp_eq_u32 vcc, {i}, v{t0}")
            for e in range(2):
                I(f"v_cndmask_b32 v{S+4*e+i}, v{t0+3}, v{t0+1+e}, vcc")
    def build_mfma(Q, S, TMP, AB, BB, D, npair, nch=1, cinit=False):
        for u in range(npair):
            I(f"v_mov_b32_dpp v{TMP+u}, v{Q} row_newbcast:{u} row_mask:0xf bank_mask:0x3")
            I(f"v_mov_b32_dpp v{TMP+u}, v{Q} row_newbcast:{8+u} row_mask:0xf bank_mask:0xc")
        n = 2 * npair
        def perm(t):
            for i in range(4):
                I(f"v_perm_b32 v{AB+4*t+i}, v{TMP+t//2}, v{TMP+t//2}, v{S+4*(t%2)+i}")
        def mf(t):
            for cb in range(nch):
                d = D + 4 * cb; bb = BB + 4 * (t * nch + cb)
                c = "0" if (t == 0 and not cinit) else f"v[{d}:{d+3}]"
                I(f"v_mfma_f32_16x16x32_bf16 v[{d}:{d+3}], v[{AB+4*t}:{AB+4*t+3}], v[{bb}:{bb+3}], {c}")
        perm(0)
        for t in range(n):
            if t + 1 < n: perm(t + 1)
            mf(t)
    def tagcheck(words, tagmask, acc):
        I(f"v_xor_b32 v{acc}, s31, v{words[0]}")
        for w in words[1:]:
            I(f"v_bitop3_b32 v{acc}, v{acc}, v{w}, s31 bitop3:0xf6")
        I(f"v_and_b32 v{acc}, {tagmask}, v{acc}")
        I(f"v_cmp_ne_u32 vcc, 0, v{acc}")
    def reduce4(V):
        I(f"v_permlane32_swap_b32 v{V}, v{V+2}")
        I(f"v_permlane32_swap_b32 v{V+1}, v{V+3}")
        I(f"v_add_f32 v{V}, v{V}, v{V+2}")
        I(f"v_add_f32 v{V+1}, v{V+1}, v{V+3}")
        I(f"v_permlane16_swap_b32 v{V}, v{V+1}")
        I(f"v_add_f32 v{V}, v{V}, v{V+1}")
        for r in (8, 4, 2, 1):
            I(f"v_add_f32_dpp v{V}, v{V}, v{V} row_ror:{r} {DPP}")

    def reduce4x2(V, W):
        for X in (V, W):
            I(f"v_permlane32_swap_b32 v{X}, v{X+2}")
            I(f"v_permlane32_swap_b32 v{X+1}, v{X+3}")
        for X in (V, W):
            I(f"v_add_f32 v{X}, v{X}, v{X+2}")
            I(f"v_add_f32 v{X+1}, v{X+1}, v{X+3}")
        for X in (V, W): I(f"v_permlane16_swap_b32 v{X}, v{X+1}")
        for X in (V, W): I(f"v_add_f32 v{X}, v{X}, v{X+1}")
        for r in (8, 4, 2, 1):
            for X in (V, W): I(f"v_add_f32_dpp v{X}, v{X}, v{X} row_ror:{r} {DPP}")

    def seg(k, end=False):
        if not dry: return
        if k > 0: I("s_cbranch_execz L_dret")
        if not end: a.label(f"L_seg{k}")
    WSN = 0x10000000 if stamp else 0x200000
    nch = 64 // R; ncg = 4 // nch; nrb = 128 // R; nt = R // 4
    def EX(m): I(f"s_mov_b64 exec, {m}")
    def dry_next(lbl): pass
    ST(0)
    I("s_load_dwordx16 s[4:19], s[0:1], 0")
    I("s_load_dwordx8 s[20:27], s[0:1], 64")
    I("v_lshrrev_b32 v6, 6, v0")
    I("s_cmp_ge_u32 s2, 256")
    I("v_readfirstlane_b32 s30, v6")
    I("s_cbranch_scc1 L_end")
    I("v_and_b32 v1, 63, v0")
    I("s_and_b32 s28, s2, 7")
    I("s_lshl_b32 s28, s28, 2")
    I("s_lshr_b32 s29, s2, 6")
    I("s_add_u32 s28, s28, s29")
    I("s_bfe_u32 s29, s2, 0x30003")
    I("s_lshr_b32 s32, s29, 2")
    I("s_and_b32 s33, s29, 3")
    I("s_lshl_b32 s35, s28, 3")
    I("s_add_u32 s35, s35, s29")
    I(f"s_mov_b32 {SC}, 0x100000")
    I("v_and_b32 v2, 15, v1")
    I("v_lshrrev_b32 v3, 4, v1")
    I("v_mov_b32 v4, 0")
    I("v_mov_b32 v5, 0xff")
    def stage1(wr, w0):
        G = lab("wpc")
        I("s_getpc_b64 s[96:97]")
        a.label(G)
        I(f"s_sub_u32 s98, {wr}, {w0}")
        I("s_lshl_b32 s98, s98, 5")
        I("s_lshr_b32 s99, s2, 3")
        I("s_add_u32 s98, s98, s99")
        I("s_cmp_ge_u32 s98, @@W1LIM@@")
        I("s_cbranch_scc1 L_w1_done")
        I("s_lshl_b32 s98, s98, 7")
        I(f"s_add_u32 s96, s96, @@OFF:L_P:{G}@@")
        I(f"s_addc_u32 s97, s97, @@OFFH:L_P:{G}@@")
        I("s_add_u32 s98, s98, s96")
        I("s_addc_u32 s99, s97, 0")
        a.raw("@@NOPAD@@")
        EX(0)
        I("s_swappc_b64 s[100:101], s[98:99]")
        EX(-1)
        a.raw("@@PADOK@@")
        a.label("L_w1_done")
        s1lab.append(G)
    s1lab = []
    if warm:
        I("s_cmp_lt_u32 s30, 2")
        I("s_cbranch_scc1 L_P")
        if warm == 1: stage1("s30", 6)
        I("s_cmp_eq_u32 s30, 10")
        I("s_cbranch_scc1 L_T")
        I("s_branch L_S")
        a.label("L_wret")
        I("s_setpc_b64 s[100:101]")
        a.label("L_P")
        a.raw("@@PADSTART@@")
    else:
        I("s_cmp_eq_u32 s30, 10")
        I("s_cbranch_scc1 L_T")
        I("s_cmp_ge_u32 s30, 2")
        I("s_cbranch_scc1 L_S")
    a.raw("@@P@@")
    def walk(l0, l1, nw=1, wreg=None):
        L = lab("walk"); E = lab("walke"); G = lab("wpc")
        I("s_getpc_b64 s[98:99]")
        a.label(G)
        I(f"s_add_u32 s98, s98, @@OFF:{l0}:{G}@@")
        I(f"s_addc_u32 s99, s99, @@OFFH:{l0}:{G}@@")
        if wreg:
            I(f"s_mul_i32 s96, {wreg}, {pad}")
            I("s_add_u32 s98, s98, s96")
            I("s_addc_u32 s99, s99, 0")
            I(f"s_sub_i32 s97, @@CNT:{l0}:{l1}:{G}@@, {wreg}")
        else:
            I(f"s_and_b32 s97, s2, 0x10000")
            I(f"s_sub_i32 s97, @@CNT:{l0}:{l1}:{G}@@, s97")
        a.raw("@@NOPAD@@")
        EX(0)
        a.label(L)
        I("s_cmp_le_i32 s97, 0")
        I(f"s_cbranch_scc1 {E}")
        I("s_swappc_b64 s[100:101], s[98:99]")
        I(f"s_add_u32 s98, s98, {pad * nw}")
        I("s_addc_u32 s99, s99, 0")
        I(f"s_sub_i32 s97, s97, {nw}")
        I(f"s_branch {L}")
        a.label(E)
        EX(-1)
        a.raw("@@PADOK@@")

    a.label("L_S")
    KB, VB, ACC, D = 32, 96, 16, 160
    I("s_sub_u32 s30, s30, 2")
    I("s_lshr_b32 s59, s30, 2")
    I("s_and_b32 s30, s30, 3")
    I("v_lshlrev_b32 v6, 4, v1")
    I("s_lshl_b32 s52, s32, 25")
    I("s_lshl_b32 s53, s28, 20")
    I("s_add_u32 s52, s52, s53")
    I("s_lshl_b32 s53, s33, 16")
    I("s_add_u32 s52, s52, s53")
    I("s_lshl_b32 s53, s30, 14")
    I("s_add_u32 s52, s52, s53")
    I("s_add_u32 s52, s52, 0xC0000")
    if rot == 1:
        I("s_add_u32 s60, s28, s29")
        for k in (3, 2, 1, 0):
            I(f"s_add_u32 s61, s60, {k}"); I("s_and_b32 s61, s61, 3"); I("s_lshl_b32 s61, s61, 12")
            I(f"s_add_u32 s{52+k}, s52, s61")
    elif rot == 2:
        I("s_lshl_b32 s60, s29, 1"); I("s_xor_b32 s60, s60, s28"); I("s_and_b32 s60, s60, 15"); I("s_lshl_b32 s60, s60, 10")
        for k in range(16):
            I(f"s_xor_b32 s{96-16-12+k if False else 44+k if k < 8 else 72+k}, s60, {k << 10}")
            r = 44 + k if k < 8 else 72 + k
            I(f"s_add_u32 s{r}, s{r}, s52")
    else:
        I("s_add_u32 s53, s52, 0x1000")
        I("s_add_u32 s54, s52, 0x2000")
        I("s_add_u32 s55, s52, 0x3000")
    I("s_mov_b32 s42, 0x4000000"); I("s_mov_b32 s43, 0x20000")
    I("s_lshl_b32 s56, s30, 2")
    I("v_mov_b32 v165, s56")
    I("s_lshl_b32 s56, s30, 8")
    I("v_lshl_add_u32 v167, v1, 2, s56")
    I("v_lshlrev_b32 v166, 4, v2")
    def dryjump():
        EX(0)
        for k in range(3):
            I(f"s_cmp_eq_u32 s30, {k}")
            I(f"s_cbranch_scc1 L_seg{k}")
        I("s_branch L_seg3")
        a.label("L_dret")
        EX(-1)
    if dry == 2:
        I("s_cmp_eq_u32 s59, 1")
        I("s_cbranch_scc0 L_nodry")
        dryjump()
        a.label("L_nodry")
    I("s_waitcnt lgkmcnt(0)")
    I("s_mov_b32 s40, s6"); I("s_mov_b32 s41, s7")
    I("s_cmp_eq_u32 s59, 1")
    I("s_barrier")
    I("s_cbranch_scc1 L_V")
    def tload(base, t):
        if rot == 2:
            r = 44 + t if t < 8 else 72 + t
            I(f"buffer_load_dwordx4 v[{base+4*t}:{base+4*t+3}], v6, s[40:43], s{r} offen {kvflag}")
            return
        I(f"buffer_load_dwordx4 v[{base+4*t}:{base+4*t+3}], v6, s[40:43], s{52+t//4} offen offset:{(t%4)*1024} {kvflag}")
    ST(22)
    nlev = 16 // gran
    lev = 0
    for t in range(16):
        if k0 and t == k0:
            if kmode == 0: I(f"s_waitcnt vmcnt({k0-1})")
            else: lds_spin(L_QP, 1, 12, sleep=1)
        if kwin and t >= kwin:
            I(f"s_waitcnt vmcnt({kwin-1})")
        tload(KB, t)
        if kwin and t >= kwin and (t - kwin + 1) % gran == 0:
            lev = (t - kwin + 1) // gran
            I(f"v_mov_b32 v12, {lev}")
            I(f"ds_write_b32 v165, v12 offset:{L_KS}")
    ST(25)
    I("s_mov_b32 s88, 0xcccccccc"); I("s_mov_b32 s89, 0xcccccccc")
    I("s_mov_b32 s90, 0xaaaaaaaa"); I("s_mov_b32 s91, 0xaaaaaaaa")
    if stamp: srd(36, 26, WSN)
    for k in range(lev + 1, nlev + 1):
        I(f"v_mov_b32 v12, {k}")
        I(f"s_waitcnt vmcnt({16 - k*gran})")
        I(f"ds_write_b32 v165, v12 offset:{L_KS}")
    ST(26)
    if abl:
        I(f"s_cmp_eq_u32 s30, {sw}")
        I("s_cbranch_scc0 L_end")
        flush_stamps()
        I("s_endpgm")
    a.label("L_Ksm")
    lds_spin(L_FQ, 1, 16, sleep=1)
    I(f"ds_read_b128 v[12:15], v166 offset:{L_Q}")
    ST(2)
    I("s_waitcnt lgkmcnt(0)")
    for t in range(0, 16, 2):
        for i in range(4):
            for tt in (t, t + 1):
                c = "0" if i == 0 else f"v{ACC+tt}"
                I(f"v_dot2_f32_bf16 v{ACC+tt}, v{KB+4*tt+i}, v{12+i}, {c}")
    for t in range(8):
        I(f"v_add_f32_dpp v{ACC+t}, v{ACC+t}, v{ACC+t} row_ror:8 row_mask:0xf bank_mask:0x3")
    for t in range(8):
        I(f"v_add_f32_dpp v{ACC+t}, v{ACC+t+8}, v{ACC+t+8} row_ror:8 row_mask:0xf bank_mask:0xc")
    for t in range(4):
        I(f"v_add_f32_dpp v{ACC+t}, v{ACC+t}, v{ACC+t} row_shl:4 row_mask:0xf bank_mask:0x5")
    for t in range(4):
        I(f"v_add_f32_dpp v{ACC+t}, v{ACC+t+4}, v{ACC+t+4} row_shr:4 row_mask:0xf bank_mask:0xa")
    for t in range(4):
        I(f"v_add_f32_dpp v{ACC+t}, v{ACC+t}, v{ACC+t} quad_perm:[2,3,0,1] {DPP}")
    I(f"v_cndmask_b32 v{ACC}, v{ACC}, v{ACC+2}, s[88:89]")
    I(f"v_cndmask_b32 v{ACC+1}, v{ACC+1}, v{ACC+3}, s[88:89]")
    for t in range(2):
        I(f"v_add_f32_dpp v{ACC+t}, v{ACC+t}, v{ACC+t} quad_perm:[1,0,3,2] {DPP}")
    I(f"v_cndmask_b32 v16, v16, v17, s[90:91]")
    I("v_cvt_pk_bf16_f32 v16, v16, v16")
    I("v_and_b32 v16, 0xffff0000, v16")
    I(f"v_mul_f32 v16, {hex(f2u(128 ** -0.5))}, v16")
    I("v_cvt_pk_bf16_f32 v16, v16, v16")
    I("v_and_b32 v16, 0xffff0000, v16")
    I(f"v_max_f32_dpp v17, v16, v16 row_ror:8 {DPP}")
    for r in (4, 2, 1):
        I(f"v_max_f32_dpp v17, v17, v17 row_ror:{r} {DPP}")
    I("v_mov_b32 v18, v17")
    I("v_permlane16_swap_b32 v17, v18")
    I("v_max_f32 v17, v17, v18")
    I("v_mov_b32 v18, v17")
    I("v_permlane32_swap_b32 v17, v18")
    I("v_max_f32 v17, v17, v18")
    I(f"ds_write_b32 v165, v17 offset:{L_M}")
    if not smtest: ST(23)
    lds_spin(L_M, 4, 20)
    I("v_max3_f32 v17, v20, v21, v22")
    I("v_max_f32 v17, v17, v23")
    I("v_sub_f32 v16, v16, v17")
    I(f"v_mul_f32 v16, {hex(f2u(1.4426950408889634))}, v16")
    I("v_exp_f32 v16, v16")
    I("v_cvt_pk_bf16_f32 v19, v16, v16")
    I(f"ds_write_b32 v167, v19 offset:{L_P2}")
    I(f"v_add_f32_dpp v17, v16, v16 row_ror:8 {DPP}")
    for r in (4, 2, 1):
        I(f"v_add_f32_dpp v17, v17, v17 row_ror:{r} {DPP}")
    I("v_mov_b32 v18, v17")
    I("v_permlane16_swap_b32 v17, v18")
    I("v_add_f32 v17, v17, v18")
    I("v_mov_b32 v18, v17")
    I("v_permlane32_swap_b32 v17, v18")
    I("v_add_f32 v17, v17, v18")
    I(f"ds_write_b32 v165, v17 offset:{L_L}")
    ST(27)
    if stamp:
        I(f"s_cmp_eq_u32 s30, {sw}")
        I("s_cbranch_scc0 L_end")
        flush_stamps()
    I("s_endpgm")

    a.label("L_V")
    stamps.clear(); sreg[0] = 66
    if dry == 1: dryjump()
    if warm == 2: stage1("s30", 0)
    if 'v' in w2: walk("L_V", "L_T", 4, "s30")
    if 'k' in w2: walk("L_Ksm", "L_V", 4, "s30")
    I("v_and_b32 v12, 1, v2")
    I("v_lshlrev_b32 v12, 4, v12")
    I("v_mov_b32 v13, 0xffff")
    I("v_lshlrev_b32 v12, v12, v13")
    I("v_lshrrev_b32 v13, 1, v2")
    for i in range(4):
        I(f"v_cmp_eq_u32 vcc, {i}, v13")
        I(f"v_cndmask_b32 v{8+i}, 0, v12, vcc")
    I("v_and_b32 v7, 1, v3")
    I("v_lshlrev_b32 v7, 4, v7")
    I("v_lshl_add_u32 v7, v2, 5, v7")
    I("s_lshl_b32 s56, s30, 9")
    I("v_add_u32 v164, s56, v7")
    I(f"s_lshl_b32 s57, s35, 9")
    I(f"s_add_u32 s57, s57, {H1O}")
    I("v_mov_b32 v12, 1")
    I("s_load_dword s31, s[26:27], 0")
    I("s_mov_b32 s40, s8"); I("s_mov_b32 s41, s9")
    srd(36, 26, WSN)
    I("s_waitcnt lgkmcnt(0)")
    I("s_mul_i32 s31, s31, 1664525")
    I("s_add_u32 s31, s31, 1013904223")
    for t in range(16):
        if t % gran == 0:
            lev = t // gran + 1 + lag
            if 1 <= lev <= nlev: ks_wait(13, lev, one="v165")
        if vwin and t >= vwin: I(f"s_waitcnt vmcnt({vwin-1})")
        tload(VB, t)
    if wotrig: I(f"s_waitcnt vmcnt({16 - wotrig})")
    I("s_mov_b64 exec, 1")
    I(f"ds_add_u32 v4, v12 offset:{L_TRIG}")
    I("s_mov_b64 exec, -1")
    ST(1)
    if abl:
        I("s_waitcnt vmcnt(0)"); ST(21)
        I(f"s_cmp_eq_u32 s30, {sw}")
        I("s_cbranch_scc0 L_end")
        flush_stamps()
        I("s_endpgm")
    lds_spin(L_P2, 1, 19, addr="v167")
    I(f"ds_read_b32 v16, v4 offset:{L_FQ}")
    for t in range(16):
        for i in range(4):
            I(f"v_and_b32_dpp v{KB+4*t+i}, v19, v{8+i} row_newbcast:{t} {DPP}")
    I("s_waitcnt lgkmcnt(0)")
    I("v_readfirstlane_b32 s58, v16")
    ST(3)
    for t in range(16):
        I(f"s_waitcnt vmcnt({15-t})")
        if t == 15: ST(21)
        c = "0" if t == 0 else f"v[{D}:{D+3}]"
        I(f"v_mfma_f32_16x16x32_bf16 v[{D}:{D+3}], v[{KB+4*t}:{KB+4*t+3}], v[{VB+4*t}:{VB+4*t+3}], {c}")
    EX("0xffffffff")
    I(f"ds_write_b128 v164, v[{D}:{D+3}] offset:{L_PART}")
    EX(1)
    I(f"ds_add_rtn_u32 v13, v4, v12 offset:{L_OCNT}")
    EX("0xffffffff")
    for w in range(4):
        I(f"ds_read_b128 v[{16+4*w}:{19+4*w}], v7 offset:{L_PART+512*w}")
    I("s_waitcnt lgkmcnt(0)")
    I("v_readfirstlane_b32 s56, v13")
    I("v_pk_add_f32 v[16:17], v[16:17], v[20:21]")
    I("v_pk_add_f32 v[18:19], v[18:19], v[22:23]")
    I("s_cmp_eq_u32 s56, 2")
    I("s_cbranch_scc0 L_s_end")
    I("v_pk_add_f32 v[24:25], v[24:25], v[28:29]")
    I("v_pk_add_f32 v[26:27], v[26:27], v[30:31]")
    I("v_pk_add_f32 v[16:17], v[16:17], v[24:25]")
    I("v_pk_add_f32 v[18:19], v[18:19], v[26:27]")
    I("s_cmp_eq_u32 s58, 1")
    for r in range(4):
        I(f"v_bfi_b32 v{16+r}, v5, s31, v{16+r}")
    I("s_cbranch_scc1 L_s_fast")
    I("buffer_store_dwordx4 v[16:19], v7, s[36:39], s57 offen sc1")
    I("s_branch L_s_pub")
    a.label("L_s_fast")
    I("buffer_store_dwordx4 v[16:19], v7, s[36:39], s57 offen")
    a.label("L_s_pub")
    I("v_and_b32 v20, v5, v16")
    I(f"ds_write_b32 v4, v20 offset:{L_OPUB}")
    if stamp:
        keep = dict(stamps); stamps.clear(); ST(4); sv = sreg[0]; flush_stamps(); stamps.update(keep); sreg[0] = sv
    a.label("L_s_end")
    if stamp:
        I(f"s_cmp_eq_u32 s30, {sw}")
        I("s_cbranch_scc0 L_end")
        flush_stamps()
    I("s_endpgm")

    a.raw("@@PBEG@@")
    stamps.clear(); sreg[0] = 66
    if prio: I("s_setprio 2")
    AB, BB, SEL = 32, 96, 10
    assert sum(units) == 43 and all(2 <= x <= 8 for x in units)
    us = []
    for x in units: us += [(x + 1) // 2, x // 2]
    tab = 0; acc = 0
    for k, x in enumerate(us):
        tab |= (acc | (x - 1) << 6) << (8 * k); acc += x
    tw = [(tab >> (32 * k)) & 0xffffffff for k in range(4)]
    I(f"s_mov_b32 s54, {hex(tw[0])}"); I(f"s_mov_b32 s55, {hex(tw[1])}")
    I("s_bitcmp1_b32 s28, 4")
    I(f"s_cselect_b32 s54, {hex(tw[2])}, s54"); I(f"s_cselect_b32 s55, {hex(tw[3])}, s55")
    I("s_lshl_b32 s56, s28, 2")
    I("s_and_b32 s56, s56, 56")
    I("s_lshr_b64 s[54:55], s[54:55], s56")
    I("s_bfe_u32 s90, s54, 0x20006")
    I("s_add_u32 s90, s90, 1")
    I("s_and_b32 s91, s54, 63")
    I("s_lshl_b32 s54, s90, 2")
    I("s_lshl_b32 s53, s91, 6")
    I("s_lshl_b32 s56, s28, 8")
    I("s_cmp_eq_u32 s30, 0")
    I("s_movk_i32 s52, 2752"); I("s_mov_b32 s42, 1409024")
    I("s_cselect_b32 s52, 8192, s52")
    I("s_cselect_b32 s53, s56, s53")
    I("s_cselect_b32 s54, 16, s54")
    I("s_cselect_b32 s42, 0x400000, s42")
    I("s_lshl_b32 s56, s29, 6")
    I("s_mul_i32 s56, s56, s52")
    I("s_add_u32 s53, s53, s56")
    I("s_lshl_b32 s56, s52, 4")
    I("v_mul_lo_u32 v6, v3, s56")
    I("v_lshl_add_u32 v6, v2, 4, v6")
    I("v_cmp_gt_i32 vcc, s54, v2")
    I("v_mov_b32 v7, 0x80000000")
    I("v_cndmask_b32 v6, v7, v6, vcc")
    I("v_lshrrev_b32 v9, 3, v2")
    I("v_and_b32 v26, 7, v2")
    I("v_lshlrev_b32 v9, 10, v9")
    I("v_lshl_add_u32 v7, v3, 8, v9")
    I("v_lshl_add_u32 v7, v26, 5, v7")
    I("v_lshl_add_u32 v8, v3, 5, v9")
    I("v_lshl_add_u32 v8, v26, 2, v8")
    I("s_lshl_b32 s56, s29, 7")
    I("s_mov_b32 s46, 2048"); I("s_mov_b32 s47, 0x20000"); I("s_mov_b32 s43, 0x20000")
    I("s_bitcmp1_b32 s28, 0")
    I("s_waitcnt lgkmcnt(0)")
    ST(16)
    I("s_mov_b32 s44, s4"); I("s_mov_b32 s45, s5")
    I("buffer_load_dwordx4 v[18:21], v7, s[44:47], 0 offen")
    I("buffer_load_dwordx4 v[22:25], v7, s[44:47], 0 offen offset:16")
    I("buffer_load_dword v26, v8, s[44:47], s56 offen")
    I("s_cselect_b32 s40, s18, s16")
    I("s_cselect_b32 s41, s19, s17")
    I("s_cmp_eq_u32 s30, 0")
    I("s_cselect_b32 s40, s10, s40")
    I("s_cselect_b32 s41, s11, s41")
    for t in range(16):
        I(f"buffer_load_dwordx4 v[{BB+4*t}:{BB+4*t+3}], v6, s[40:43], s53 offen {wflag}")
        if t < 15: I("s_add_u32 s53, s53, s52")
    I("s_barrier")
    I("s_load_dword s31, s[26:27], 0")
    srd(36, 26, WSN)
    I("s_getreg_b32 s59, hwreg(HW_REG_XCC_ID, 0, 4)")
    make_sel(SEL, 27)
    I("v_mov_b32 v27, 0x3f803f80")
    I("s_waitcnt vmcnt(16)")
    ST(17)
    seg(0)
    if ln2:
        I("v_dot2_f32_bf16 v28, v18, v27, 0")
        I("v_dot2_f32_bf16 v30, v18, v18, 0")
        for k in range(1, 8):
            I(f"v_dot2_f32_bf16 v28, v{18+k}, v27, v28")
            I(f"v_dot2_f32_bf16 v30, v{18+k}, v{18+k}, v30")
        for m in ("quad_perm:[1,0,3,2]", "quad_perm:[2,3,0,1]", "row_half_mirror"):
            for r in (28, 30): I(f"v_add_f32_dpp v{r}, v{r}, v{r} {m} {DPP}")
        for sw_ in ("v_permlane16_swap_b32", "v_permlane32_swap_b32"):
            for r in (28, 30): I(f"v_mov_b32 v{r+1}, v{r}")
            for r in (28, 30): I(f"{sw_} v{r}, v{r+1}")
            for r in (28, 30): I(f"v_add_f32 v{r}, v{r}, v{r+1}")
        I(f"v_mul_f32 v28, {hex(f2u(1/512))}, v28")
        I(f"v_mul_f32 v30, {hex(f2u(1/512))}, v30")
        I("v_fma_f32 v30, -v28, v28, v30")
        I("v_max_f32 v30, 0, v30")
    else:
        I("v_dot2_f32_bf16 v28, v18, v27, 0")
        I("v_dot2_f32_bf16 v29, v19, v27, 0")
        for k in range(2, 8, 2):
            I(f"v_dot2_f32_bf16 v28, v{18+k}, v27, v28")
            I(f"v_dot2_f32_bf16 v29, v{19+k}, v27, v29")
        for k in range(8):
            I(f"v_lshlrev_b32 v{32+2*k}, 16, v{18+k}")
            I(f"v_and_b32 v{33+2*k}, 0xffff0000, v{18+k}")
        I("v_add_f32 v28, v28, v29")
        def red32(r, t):
            I(f"v_add_f32_dpp v{r}, v{r}, v{r} quad_perm:[1,0,3,2] {DPP}")
            I(f"v_add_f32_dpp v{r}, v{r}, v{r} quad_perm:[2,3,0,1] {DPP}")
            I(f"v_add_f32_dpp v{r}, v{r}, v{r} row_half_mirror {DPP}")
            I(f"v_mov_b32 v{t}, v{r}")
            I(f"v_permlane16_swap_b32 v{r}, v{t}")
            I(f"v_add_f32 v{r}, v{r}, v{t}")
            I(f"v_mov_b32 v{t}, v{r}")
            I(f"v_permlane32_swap_b32 v{r}, v{t}")
            I(f"v_add_f32 v{r}, v{r}, v{t}")
        red32(28, 29)
        I(f"v_mul_f32 v28, {hex(f2u(1/512))}, v28")
        I("v_mov_b32 v29, v28")
        for k in range(8):
            I(f"v_pk_add_f32 v[{32+2*k}:{33+2*k}], v[{32+2*k}:{33+2*k}], v[28:29] neg_lo:[0,1] neg_hi:[0,1]")
        I("v_pk_mul_f32 v[30:31], v[32:33], v[32:33]")
        for k in range(1, 8):
            I(f"v_pk_fma_f32 v[30:31], v[{32+2*k}:{33+2*k}], v[{32+2*k}:{33+2*k}], v[30:31]")
        I("v_add_f32 v30, v30, v31")
        red32(30, 31)
        I(f"v_mul_f32 v30, {hex(f2u(1/512))}, v30")
    I("v_cvt_pk_bf16_f32 v28, v28, v30")
    I("v_and_b32 v30, 0xffff0000, v28")
    I("v_lshlrev_b32 v28, 16, v28")
    I(f"v_add_f32 v30, {hex(f2u(1e-5))}, v30")
    I("v_cvt_pk_bf16_f32 v30, v30, v30")
    I("v_and_b32 v30, 0xffff0000, v30")
    I("v_sqrt_f32 v30, v30")
    I("v_lshlrev_b32 v32, 16, v26")
    I("v_and_b32 v33, 0xffff0000, v26")
    I("v_cvt_pk_bf16_f32 v30, v30, v30")
    I("v_and_b32 v30, 0xffff0000, v30")
    I("v_rcp_f32 v30, v30")
    I("v_sub_f32 v32, v32, v28")
    I("v_sub_f32 v33, v33, v28")
    I("v_cvt_pk_bf16_f32 v26, v32, v33")
    I("v_lshlrev_b32 v32, 16, v26")
    I("v_and_b32 v33, 0xffff0000, v26")
    I("v_mul_f32 v32, v32, v30")
    I("v_mul_f32 v33, v33, v30")
    I("v_cvt_pk_bf16_f32 v26, v32, v33")
    ST(18)
    seg(1)
    for u in range(8):
        I(f"v_mov_b32_dpp v{18+u}, v26 row_newbcast:{u} row_mask:0xf bank_mask:0x3")
        I(f"v_mov_b32_dpp v{18+u}, v26 row_newbcast:{8+u} row_mask:0xf bank_mask:0xc")
    def pperm(t):
        for i in range(4):
            I(f"v_perm_b32 v{AB+4*t+i}, v{18+t//2}, v{18+t//2}, v{SEL+4*(t%2)+i}")
    pperm(0)
    for t in range(16):
        if t == 4: seg(2)
        if t == 10: seg(3)
        if t < 15: pperm(t + 1)
        I(f"s_waitcnt vmcnt({15-t})")
        c = "0" if t == 0 else f"v[{D}:{D+3}]"
        I(f"v_mfma_f32_16x16x32_bf16 v[{D}:{D+3}], v[{AB+4*t}:{AB+4*t+3}], v[{BB+4*t}:{BB+4*t+3}], {c}")
    seg(4, end=True)
    I("s_waitcnt lgkmcnt(0)")
    I("s_mul_i32 s31, s31, 1664525")
    I("s_add_u32 s31, s31, 1013904223")
    I("v_and_b32 v7, 1, v3")
    I("v_lshlrev_b32 v7, 4, v7")
    I("v_lshl_add_u32 v7, v2, 5, v7")
    I("v_lshrrev_b32 v8, 1, v3")
    I("v_lshl_add_u32 v7, v8, 9, v7")
    I("s_lshl_b32 s56, s30, 18")
    I("s_lshl_b32 s57, s35, 10")
    I("s_add_u32 s56, s56, s57")
    I(f"s_add_u32 s56, s56, {P0}")
    I("s_and_b32 s57, s31, 15")
    for r in range(3):
        I(f"s_bfe_u32 s{92+r}, s59, {hex(0x10000 + r)}")
        I(f"s_lshl_b32 s{92+r}, s{92+r}, 4")
        I(f"s_or_b32 s{92+r}, s{92+r}, s57")
    for r in range(3):
        I(f"v_bfi_b32 v{D+r}, 31, s{92+r}, v{D+r}")
    I(f"v_bfi_b32 v{D+3}, 15, s31, v{D+3}")
    I("s_cmp_eq_u32 s30, 1")
    I("s_cbranch_scc1 L_PG")
    if qfast:
        I(f"s_add_u32 s57, s56, {PX - P0}")
        I(f"buffer_store_dwordx4 v[{D}:{D+3}], v7, s[36:39], s57 offen")
    I(f"buffer_store_dwordx4 v[{D}:{D+3}], v7, s[36:39], s56 offen sc1")

    if kmode == 1: I(f"ds_write_b32 v4, v4 offset:{L_QP}")
    if kmode == 2:
        I("s_waitcnt vmcnt(1)")
        I(f"ds_write_b32 v4, v4 offset:{L_QP}")
    ST(5)
    a.label("L_PQ_tail")
    if abl:
        flush_stamps()
        I("s_endpgm")
    I("v_lshrrev_b32 v6, 5, v1")
    I("v_and_b32 v8, 31, v1")
    I("v_lshlrev_b32 v9, 3, v8")
    I("v_lshl_add_u32 v9, v6, 2, v9")
    I("v_lshlrev_b32 v6, 12, v6")
    I("v_lshl_add_u32 v6, v8, 4, v6")
    I("s_lshl_b32 s56, s28, 13")
    I("s_lshl_b32 s57, s32, 9")
    I("s_add_u32 s56, s56, s57")
    I(f"s_add_u32 s56, s56, {P0}")
    I(f"s_add_u32 s57, s56, {PX - P0 if qfast else 0}")
    def qloads(base, so="s56"):
        return [f"buffer_load_dwordx4 v[{base+4*k}:{base+3+4*k}], v6, s[36:39], {so} offen offset:{1024*k} sc1" for k in range(4)]
    def qsum(base):
        I(f"v_xor_b32 v28, s92, v{base}")
        for k in range(4):
            for r in range(3):
                if k or r: I(f"v_bitop3_b32 v28, v28, v{base+4*k+r}, s{92+r} bitop3:0xf6")
        I(f"v_pk_add_f32 v[32:33], v[{base}:{base+1}], v[{base+4}:{base+5}]")
        I(f"v_pk_add_f32 v[34:35], v[{base+2}:{base+3}], v[{base+6}:{base+7}]")
        I(f"v_pk_add_f32 v[40:41], v[{base+8}:{base+9}], v[{base+12}:{base+13}]")
        I(f"v_pk_add_f32 v[42:43], v[{base+10}:{base+11}], v[{base+14}:{base+15}]")
    ns = len(qlev)
    for k in range(ns):
        if qrel:
            if k == 0: ks_cur(28, "s60")
            I(f"s_add_u32 s61, s60, {qlev[k]}")
            I(f"s_min_u32 s61, s61, {16 // gran}")
            ks_wait(28, "s61")
        elif qlev[k]: ks_wait(28, qlev[k])
        if k == 0: ST(20)
        for l in qloads(48 + 16 * k, "s57"): I(l)
    for k in range(ns):
        I(f"s_waitcnt vmcnt({4*(ns-1-k)})")
        tagcheck(list(range(48 + 16 * k, 64 + 16 * k)), "15", 27)
        nx = lab("qn")
        I(f"s_cbranch_vccnz {nx}")
        qsum(48 + 16 * k)
        I("s_branch L_q_ok")
        a.label(nx)
    gpoll(qloads(32), list(range(32, 48)), "15", 27)
    qsum(32)
    a.label("L_q_ok")
    I("v_pk_add_f32 v[32:33], v[32:33], v[40:41]")
    I("v_pk_add_f32 v[34:35], v[34:35], v[42:43]")
    I("v_and_b32 v28, 31, v28")
    I("v_cmp_ne_u32 vcc, 0, v28")
    I("v_permlane32_swap_b32 v32, v34")
    I("v_permlane32_swap_b32 v33, v35")
    I("v_add_f32 v32, v32, v34")
    I("v_add_f32 v33, v33, v35")
    I("v_cvt_pk_bf16_f32 v32, v32, v33")
    I("s_cmp_eq_u64 vcc, 0")
    I(f"s_cselect_b32 s58, {1 if fast else 0}, 0")
    I(f"ds_write_b32 v9, v32 offset:{L_Q}")
    I("v_mov_b32 v33, s58")
    I(f"ds_write_b32 v4, v33 offset:{L_FQ}")
    ST(6)
    I("v_and_b32 v6, 7, v1")
    I("v_lshlrev_b32 v9, 2, v6")
    I("v_lshlrev_b32 v6, 7, v6")
    I("s_lshl_b32 s56, s35, 7")
    I(f"s_add_u32 s56, s56, {H1S}")
    I("s_lshl_b32 s57, s28, 10")
    I(f"s_add_u32 s57, s57, {H1S}")
    I("v_lshlrev_b32 v7, 4, v1")
    lds_spin(L_L, 4, 32, sleep=1)
    I(f"ds_read_b128 v[40:43], v4 offset:{L_M}")
    I("v_add_f32 v33, v32, v33")
    I("v_add_f32 v34, v34, v35")
    I("v_add_f32 v33, v33, v34")
    I("s_waitcnt lgkmcnt(0)")
    I("v_max3_f32 v32, v40, v41, v42")
    I("v_max_f32 v32, v32, v43")
    I("v_bfi_b32 v32, v5, s31, v32")
    I("v_bfi_b32 v33, v5, s31, v33")
    I("v_mov_b32 v34, v32")
    I("v_mov_b32 v35, v33")
    EX("0xff")
    I("s_cmp_eq_u32 s58, 1")
    I("s_cbranch_scc1 L_st_fast")
    I("buffer_store_dwordx4 v[32:35], v7, s[36:39], s56 offen sc1")
    I("s_branch L_st_pub")
    a.label("L_st_fast")
    I("buffer_store_dwordx4 v[32:35], v7, s[36:39], s56 offen")
    a.label("L_st_pub")
    EX(-1)
    ST(19)
    gpoll(["buffer_load_dwordx4 v[36:39], v6, s[36:39], s57 offen sc1"], [36, 37, 38, 39], "v5", 27)
    I("v_and_b32 v36, 0xffffff00, v36")
    I(f"v_max_f32_dpp v40, v36, v36 quad_perm:[1,0,3,2] {DPP}")
    I(f"v_max_f32_dpp v40, v40, v40 quad_perm:[2,3,0,1] {DPP}")
    I("v_sub_f32 v36, v36, v40")
    I(f"v_mul_f32 v36, {hex(f2u(1.4426950408889634))}, v36")
    I("v_exp_f32 v36, v36")
    I("v_mul_f32 v37, v36, v37")
    I(f"v_add_f32_dpp v37, v37, v37 quad_perm:[1,0,3,2] {DPP}")
    I(f"v_add_f32_dpp v37, v37, v37 quad_perm:[2,3,0,1] {DPP}")
    I("v_rcp_f32 v37, v37")
    I("v_mul_f32 v36, v36, v37")
    I(f"ds_write_b32 v9, v36 offset:{L_W}")
    dry_next("L_S_tail")
    ST(7)
    flush_stamps()
    I("s_endpgm")

    lg = {1: 0, 2: 1, 4: 2, 8: 3}
    def my_piece(sp, spc):
        I(f"s_lshr_b32 {sp}, s29, {lg[ncg]}")
        I(f"s_lshl_b32 {spc}, s28, {lg[nrb]}")
        I(f"s_add_u32 {sp}, {sp}, {spc}")
        I(f"s_and_b32 {spc}, s29, {ncg-1}")
        I(f"s_lshl_b32 {spc}, {spc}, {lg[nch]+6}")
        I(f"s_add_u32 {spc}, {spc}, {sp}")
    def out_off(dst, spc, tmp):
        I(f"s_lshr_b32 {dst}, {spc}, 6"); I(f"s_lshl_b32 {dst}, {dst}, 8")
        I(f"s_bfe_u32 {tmp}, {spc}, 0x10005"); I(f"s_lshl_b32 {tmp}, {tmp}, 10"); I(f"s_add_u32 {dst}, {dst}, {tmp}")
        I(f"s_and_b32 {tmp}, {spc}, 15"); I(f"s_lshl_b32 {tmp}, {tmp}, 4"); I(f"s_add_u32 {dst}, {dst}, {tmp}")
        I(f"s_bfe_u32 {tmp}, {spc}, 0x10004"); I(f"s_lshl_b32 {tmp}, {tmp}, 3"); I(f"s_add_u32 {dst}, {dst}, {tmp}")

    MK = 56 + 6
    PB = 4096 // ncons; LP = PB // 16; lgPB = PB.bit_length() - 1
    def fin_setup(vx, vo, vl, sb, so):
        I(f"s_and_b32 s63, s2, {ncons - 1}")
        I(f"s_lshl_b32 {sb}, s63, {6 + lgPB}")
        I(f"s_add_u32 {sb}, {sb}, {H2A}")
        I(f"s_lshr_b32 {so}, s63, {10 - lgPB}")
        I(f"s_lshl_b32 {so}, {so}, 8")
        I(f"s_lshl_b32 s63, s63, {lgPB}")
        I("s_bfe_u32 s62, s63, 0x10009"); I("s_lshl_b32 s62, s62, 10"); I(f"s_add_u32 {so}, {so}, s62")
        I("s_and_b32 s63, s63, 511"); I("s_lshr_b32 s63, s63, 1"); I(f"s_add_u32 {so}, {so}, s63")
        I(f"v_and_b32 {vo}, {LP - 1}, v1")
        I(f"v_lshlrev_b32 {vo}, 3, {vo}")
        I(f"v_lshl_add_u32 {vo}, v3, 1, {vo}")
        I(f"v_lshlrev_b32 {vl}, 4, v1")
    def fin_run(vx, vo, vl, sb, sb2, so, B0):
        I(f"s_add_u32 {sb2}, {sb}, 0x1000")
        if not ring:
            gpoll([f"buffer_load_dwordx4 v[{B0+4*k}:{B0+3+4*k}], {vl}, s[36:39], {sb if k < 4 else sb2} offen offset:{1024*(k%4)} {ldf}" for k in range(LP)],
                  list(range(B0, B0 + 4 * LP)), "v5", 27)
        else:
            S0 = B0 + 32
            L = lab("ring")
            a.label(L)
            for k in range(LP):
                sk = lab("rs"); M = f"s[{MK+2*k}:{MK+2*k+1}]"; G = B0 + 4 * k; S = S0 + 4 * k
                I(f"s_mov_b64 exec, {M}")
                I(f"s_cbranch_execz {sk}")
                I(f"v_mov_b64 v[{G}:{G+1}], v[{S}:{S+1}]")
                I(f"v_mov_b64 v[{G+2}:{G+3}], v[{S+2}:{S+3}]")
                I(f"v_xor_b32 v27, s31, v{G}")
                for w in range(1, 4): I(f"v_bitop3_b32 v27, v27, v{G+w}, s31 bitop3:0xf6")
                I("v_and_b32 v27, v5, v27")
                I(f"v_cmpx_ne_u32_e64 {M}, 0, v27")
                I(f"s_cbranch_execz {sk}")
                I(f"buffer_load_dwordx4 v[{S}:{S+3}], {vl}, s[36:39], {sb if k < 4 else sb2} offen offset:{1024*(k%4)} {ldf}")
                a.label(sk)
            I(f"s_sub_u32 {SC}, {SC}, 8")
            I("s_cbranch_scc1 L_end")
            I(f"s_or_b64 s[{MK+16}:{MK+17}], s[{MK}:{MK+1}], s[{MK+2*(LP-1)}:{MK+2*(LP-1)+1}]")
            for k in range(1, LP - 1):
                I(f"s_or_b64 s[{MK+16}:{MK+17}], s[{MK+16}:{MK+17}], s[{MK+2*k}:{MK+2*k+1}]")
            d = lab("rd")
            I(f"s_cbranch_scc0 {d}")
            I(f"s_waitcnt vmcnt({ring})")
            I(f"s_branch {L}")
            a.label(d)
            EX(-1)
        ST(11)
        n = LP
        while n > 1:
            n //= 2
            for k in range(n):
                for hh in (0, 2):
                    I(f"v_pk_add_f32 v[{B0+4*k+hh}:{B0+4*k+hh+1}], v[{B0+4*k+hh}:{B0+4*k+hh+1}], v[{B0+4*(k+n)+hh}:{B0+4*(k+n)+hh+1}]")
        V = B0
        I(f"v_permlane32_swap_b32 v{V}, v{V+2}")
        I(f"v_permlane32_swap_b32 v{V+1}, v{V+3}")
        I(f"v_add_f32 v{V}, v{V}, v{V+2}")
        I(f"v_add_f32 v{V+1}, v{V+1}, v{V+3}")
        I(f"v_permlane16_swap_b32 v{V}, v{V+1}")
        I(f"v_add_f32 v{V}, v{V}, v{V+1}")
        for r in (8, 4, 2, 1):
            if r >= LP: I(f"v_add_f32_dpp v{V}, v{V}, v{V} row_ror:{r} {DPP}")
        I(f"v_add_f32 v{V}, {vx}, v{V}")
        I(f"v_cvt_pk_bf16_f32 v{V}, v{V}, v{V}")
        m = ((1 << LP) - 1) * 0x10001
        I(f"s_mov_b32 exec_lo, {hex(m)}"); I(f"s_mov_b32 exec_hi, {hex(m)}")
        I(f"buffer_store_short v{V}, {vo}, s[48:51], {so} offen")
        e = lab("fe")
        I("s_cmp_eq_u32 s2, 0")
        I(f"s_cbranch_scc0 {e}")
        EX(1)
        I("v_mov_b32 v33, s31")
        I("buffer_store_dword v33, v4, s[36:39], 0 offen sc1")
        a.label(e)
        ST(12)

    a.label("L_PG")
    stamps.clear(); sreg[0] = 80
    I(f"buffer_store_dwordx4 v[{D}:{D+3}], v7, s[36:39], s56 offen sc1")
    srd(40, 20, 1376 * 1024)
    I("s_lshl_b32 s58, s90, 11")
    I("v_mul_lo_u32 v6, v3, s58")
    I("v_lshl_add_u32 v6, v2, 4, v6")
    I("s_and_b32 s57, s28, 1")
    I("s_lshl_b32 s57, s57, 1")
    I("s_add_u32 s57, s57, s32")
    I("s_mul_i32 s57, s57, s90")
    I("s_lshl_b32 s52, s91, 2")
    I("s_add_u32 s52, s52, s57")
    I("s_lshl_b32 s52, s52, 13")
    I("s_lshl_b32 s53, s33, 8")
    I("s_add_u32 s52, s52, s53")
    I("s_add_u32 s53, s52, 0x1000")
    def wdloads():
        e = lab("wde")
        for t in range(8):
            if t and t % 2 == 0:
                I(f"s_cmp_le_u32 s90, {t//2}")
                I(f"s_cbranch_scc1 {e}")
            I(f"buffer_load_dwordx4 v[{BB+4*t}:{BB+4*t+3}], v6, s[40:43], s{52+t//4} offen offset:{(t%4)*1024} {wflag}")
        a.label(e)
    if not wdlate: wdloads()
    fin_setup("v164", "v165", "v9", "s54", "s55")
    I("buffer_load_ushort v164, v165, s[44:47], s55 offen")
    srd(48, 22, 2048)
    I("v_lshrrev_b32 v7, 3, v2")
    I("v_lshlrev_b32 v7, 9, v7")
    I("v_and_b32 v27, 7, v2")
    I("s_sub_u32 s56, s90, 1")
    I("v_min_u32 v27, s56, v27")
    I("v_lshl_add_u32 v7, v27, 3, v7")
    I("s_lshl_b32 s56, s90, 3")
    I("v_mad_u32_u24 v7, v3, s56, v7")
    I("s_and_b32 s56, s28, 30")
    I("s_lshl_b32 s56, s56, 13")
    I("s_lshl_b32 s57, s57, 5")
    I("s_add_u32 s56, s56, s57")
    for k in range(4):
        I(f"s_add_u32 s{60+k}, s56, {P1 + 0x1000*k}")
    G0 = 128
    a.label("L_PG_tail")
    if abl or noffn == 1:
        I("s_waitcnt vmcnt(0)"); ST(13)
        flush_stamps()
        I("s_endpgm")
    if qrel:
        ks_cur(28, "s56")
        I(f"s_add_u32 s56, s56, {glev}")
        I(f"s_min_u32 s56, s56, {16 // gran}")
        ks_wait(28, "s56")
    else: ks_wait(28, glev)
    gpoll([f"buffer_load_dwordx2 v[{G0+2*k}:{G0+1+2*k}], v7, s[36:39], s{60+k//4} offen offset:{1024*(k%4)} sc1" for k in range(16)],
          list(range(G0, G0 + 32)), "15", 27)
    ST(13)
    for base in (G0, G0 + 16):
        for k in range(4):
            I(f"v_pk_add_f32 v[{base+2*k}:{base+2*k+1}], v[{base+2*k}:{base+2*k+1}], v[{base+8+2*k}:{base+9+2*k}]")
        for k in range(2):
            I(f"v_pk_add_f32 v[{base+2*k}:{base+2*k+1}], v[{base+2*k}:{base+2*k+1}], v[{base+4+2*k}:{base+5+2*k}]")
        I(f"v_pk_add_f32 v[{base}:{base+1}], v[{base}:{base+1}], v[{base+2}:{base+3}]")
    I(f"v_cvt_pk_bf16_f32 v28, v{G0}, v{G0+1}")
    I(f"v_cvt_pk_bf16_f32 v29, v{G0+16}, v{G0+17}")
    I("v_lshlrev_b32 v30, 16, v28")
    I("v_and_b32 v31, 0xffff0000, v28")
    I(f"v_mul_f32 v30, {hex(f2u(-1.4426950408889634))}, v30")
    I(f"v_mul_f32 v31, {hex(f2u(-1.4426950408889634))}, v31")
    I("v_exp_f32 v30, v30")
    I("v_exp_f32 v31, v31")
    I("v_add_f32 v30, 1.0, v30")
    I("v_add_f32 v31, 1.0, v31")
    I("v_rcp_f32 v30, v30")
    I("v_rcp_f32 v31, v31")
    I("v_lshlrev_b32 v32, 16, v29")
    I("v_and_b32 v33, 0xffff0000, v29")
    I("v_cvt_pk_bf16_f32 v28, v30, v31")
    I("v_lshlrev_b32 v30, 16, v28")
    I("v_and_b32 v31, 0xffff0000, v28")
    I("v_mul_f32 v30, v30, v32")
    I("v_mul_f32 v31, v31, v33")
    I("v_cvt_pk_bf16_f32 v26, v30, v31")
    if wdlate:
        trig_wait(27, 1)
        wdloads()
        I("s_waitcnt vmcnt(0)")
    for u in range(4):
        I(f"v_mov_b32_dpp v{18+u}, v26 row_newbcast:{u} row_mask:0xf bank_mask:0x3")
        I(f"v_mov_b32_dpp v{18+u}, v26 row_newbcast:{8+u} row_mask:0xf bank_mask:0xc")
    for u in range(4):
        if u:
            I(f"s_cmp_le_u32 s90, {u}")
            I("s_cbranch_scc1 L_wd_done")
        for t in (2*u, 2*u+1):
            for i in range(4):
                I(f"v_perm_b32 v{AB+4*t+i}, v{18+u}, v{18+u}, v{SEL+4*(t%2)+i}")
        for t in (2*u, 2*u+1):
            c = "0" if t == 0 else f"v[{D}:{D+3}]"
            I(f"v_mfma_f32_16x16x32_bf16 v[{D}:{D+3}], v[{AB+4*t}:{AB+4*t+3}], v[{BB+4*t}:{BB+4*t+3}], {c}")
    a.label("L_wd_done")
    I("s_nop 7")
    I("v_lshlrev_b32 v164, 16, v164")
    I(f"ds_write_b128 v9, v[{D}:{D+3}] offset:{L_YF}")
    I(f"ds_write_b32 v4, v4 offset:{L_FX}")
    ST(14)
    if stamp:
        for q in (0, 2): I(f"s_memrealtime s[{sreg[0]+q}:{sreg[0]+q+1}]")
        I("s_waitcnt lgkmcnt(0)")
    I(f"s_cmp_lt_u32 s2, {ncons}")
    I("s_cbranch_scc0 L_end" if stamp == "dbg" else "s_cbranch_scc0 L_f_end")
    if ring:
        I("s_not_b32 s56, s31")
        for k in range(LP):
            I(f"s_mov_b64 s[{MK+2*k}:{MK+2*k+1}], -1")
            I(f"v_mov_b32 v{64+4*k}, s56")
    if 'f' in w2: walk("L_Ffin", "L_f_end")
    a.label("L_Ffin")
    if fwait == 1: lds_spin(L_OPUB, 1, 27, sleep=1)
    if fwait == 2: lds_spin(L_YPUB, 1, 27, sleep=1)
    fin_run("v164", "v165", "v9", "s54", "s53", "s55", 32)
    a.label("L_f_end")
    flush_stamps()
    I("s_endpgm")

    a.raw("@@PEND@@")
    a.label("L_T")
    stamps.clear(); sreg[0] = 66
    tmode[0] = True
    if prio: I("s_setprio 3")
    DT = 80 if nch > 1 else D
    I("v_lshlrev_b32 v6, 2, v1")
    for r in range(4): I(f"v_mov_b32 v{12+r}, -1")
    I("v_lshlrev_b32 v7, 4, v1")
    I(f"ds_write_b32 v6, v12 offset:{L_M}")
    I(f"ds_write_b128 v7, v[12:15] offset:{L_P2}")
    I("s_waitcnt lgkmcnt(0)")
    I("s_barrier")
    I(f"v_lshlrev_b32 v6, {10 + lg[nch == 4 and 4 or 1] * 0 + {16:4, 8:3, 4:2}[nt]}, v3")
    I("v_lshl_add_u32 v6, v2, 4, v6")
    my_piece("s58", "s59")
    I(f"s_lshl_b32 s52, s58, {10 + {64:6, 32:5, 16:4}[R]}")
    I(f"s_and_b32 s53, s29, {ncg-1}")
    I(f"s_lshl_b32 s53, s53, {8 + lg[nch]}")
    I("s_add_u32 s52, s52, s53")
    I("s_add_u32 s53, s52, 0x1000")
    I("s_add_u32 s54, s52, 0x2000")
    I("s_add_u32 s55, s52, 0x3000")
    I("s_mov_b32 s42, 0x400000"); I("s_mov_b32 s43, 0x20000")
    I("s_mov_b32 s40, s12"); I("s_mov_b32 s41, s13")
    def woload(k):
        t, cb = k // nch, k % nch
        I(f"buffer_load_dwordx4 v[{BB+4*k}:{BB+4*k+3}], v6, s[40:43], s{52+t//4} offen offset:{(t%4)*1024 + cb*256} {wflag}")
    for k in range(wopre): woload(k)
    srd(36, 26, WSN)
    if dense:
        I("s_mov_b32 s86, 0x05040100"); I("s_mov_b32 s87, 0x07060302")
        I("s_mov_b32 s88, 0xffff0000"); I("s_mov_b32 s89, 0xffff0000")
    else: make_sel(SEL, 27)
    assert nch == 1
    I("v_and_b32 v8, 1, v3")
    I("v_lshlrev_b32 v8, 4, v8")
    I("v_lshl_add_u32 v8, v2, 5, v8")
    I("v_lshrrev_b32 v9, 1, v3")
    I("v_lshl_add_u32 v8, v9, 9, v8")
    I(f"v_lshrrev_b32 v9, {lgPB}, v8")
    I(f"v_and_b32 v8, {PB - 1}, v8")
    I(f"v_lshl_add_u32 v8, v9, {6 + lgPB}, v8")
    I("s_lshl_b32 s60, s33, 16")
    I(f"s_lshl_b32 s61, s58, {lgPB}")
    I("s_add_u32 s60, s60, s61")
    I(f"s_add_u32 s60, s60, {H2A}")
    I("v_lshlrev_b32 v167, 4, v1")
    I("v_lshrrev_b32 v27, 3, v2")
    I("v_lshlrev_b32 v166, 4, v27")
    I("v_lshlrev_b32 v7, 11, v27")
    I(f"v_lshl_add_u32 v7, v3, {2 + {16:4, 8:3, 4:2}[nt]}, v7")
    I("v_and_b32 v27, 7, v2")
    if nt < 16: I(f"v_min_u32 v27, {nt//2 - 1}, v27")
    I("v_lshl_add_u32 v7, v27, 3, v7")
    I("s_lshl_b32 s56, s28, 12")
    I(f"s_lshr_b32 s57, s29, {lg[ncg]}")
    I(f"s_lshl_b32 s57, s57, {2 + {64:6, 32:5, 16:4}[R]}")
    I("s_add_u32 s56, s56, s57")
    I(f"s_add_u32 s56, s56, {H1O}")
    if 't' in w2: walk("L_T_tail", "L_end")
    a.label("L_T_tail")
    if smtest:
        ks_wait(28, smtest)
        I("s_lshl_b32 s44, s28, 13")
        I(f"s_add_u32 s44, s44, {PX}")
        ST(29); I("s_waitcnt lgkmcnt(0)")
        I("s_load_dwordx16 s[80:95], s[26:27], s44 glc"); I("s_waitcnt lgkmcnt(0)")
        ST(30); I("s_waitcnt lgkmcnt(0)")
        I("s_load_dwordx16 s[80:95], s[26:27], s44 glc"); I("s_waitcnt lgkmcnt(0)")
        ST(31); I("s_waitcnt lgkmcnt(0)")
        I("s_load_dwordx16 s[80:95], s[26:27], s44"); I("s_waitcnt lgkmcnt(0)")
        ST(23); I("s_waitcnt lgkmcnt(0)")
    trig_wait(27, 1)
    ST(24)
    for k in range(wopre, 16): woload(k)
    ST(8)
    if abl:
        I("s_waitcnt vmcnt(0)"); ST(9)
        flush_stamps()
        I("s_endpgm")
    lds_spin(L_FX, 1, 44, sleep=1)
    I(f"ds_read_b128 v[{DT}:{DT+3}], v167 offset:{L_YF}")
    ST(15)
    lds_spin(L_OPUB, 1, 27)
    I("v_readfirstlane_b32 s31, v27")
    ST(28)
    if dense:
        ol = [f"buffer_load_dwordx2 v[{10+2*s}:{11+2*s}], v7, s[36:39], s56 offen offset:{512*s} sc1" for s in range(4)]
        for l in ol: I(l)
        TB, DA = 32, 96
        for kb in range(2):
            for i in range(4):
                I(f"s_waitcnt vmcnt({4 + 14 - 8*kb - 2*i})")
                for cb in range(8):
                    I(f"v_perm_b32 v{TB+32*kb+4*cb+i}, v{BB+4*(8*kb+2*i+1)+cb//2}, v{BB+4*(8*kb+2*i)+cb//2}, s{86+cb%2}")
            if kb == 0:
                for cb in range(8): I(f"v_mov_b32 v{DA+4*cb}, v{DT+cb%4}")
        lds_spin(L_W, 4, 26, addr="v166")
        I("s_waitcnt vmcnt(0)")
        tagcheck(list(range(10, 18)), "v5", 31)
        I("s_cbranch_vccz L_o_ok")
        gpoll(ol, list(range(10, 18)), "v5", 31)
        a.label("L_o_ok")
        ST(9)
        I("v_mul_f32 v10, v10, v26")
        I("v_mul_f32 v11, v11, v26")
        for s_ in range(1, 4):
            I(f"v_fmac_f32 v10, v{10+2*s_}, v{26+s_}")
            I(f"v_fmac_f32 v11, v{11+2*s_}, v{26+s_}")
        I("v_cvt_pk_bf16_f32 v9, v10, v11")
        def amov(k):
            u, hi = k // 2, k % 2
            I(f"v_mov_b32_dpp v{18+u}, v9 row_newbcast:{8*hi+u} row_mask:0xf bank_mask:{'0xc' if hi else '0x3'}")
        for k in range(8): amov(k)
        for kb in range(2):
            for cb in range(8):
                d = DA + 4 * cb
                I(f"v_mfma_f32_16x16x32_bf16 v[{d}:{d+3}], v[{18+4*kb}:{21+4*kb}], v[{TB+32*kb+4*cb}:{TB+32*kb+4*cb+3}], v[{d}:{d+3}]")
                if kb == 0 and cb < 4: amov(8 + 2 * cb); amov(9 + 2 * cb)
        for r in range(4):
            I(f"v_cndmask_b32 v{DT+r}, v{DA+4*r}, v{DA+16+4*r}, s[88:89]")
        for r in range(4):
            I(f"v_bfi_b32 v{DT+r}, v5, s31, v{DT+r}")
    else:
        gpoll([f"buffer_load_dwordx2 v[{32+2*s}:{33+2*s}], v7, s[36:39], s56 offen offset:{512*s} sc1" for s in range(4)],
              list(range(32, 40)), "v5", 27)
        ST(9)
        lds_spin(L_W, 4, 40, addr="v166")
        I("v_mul_f32 v32, v32, v40")
        I("v_mul_f32 v33, v33, v40")
        for s in range(1, 4):
            I(f"v_fmac_f32 v32, v{32+2*s}, v{40+s}")
            I(f"v_fmac_f32 v33, v{33+2*s}, v{40+s}")
        I("v_cvt_pk_bf16_f32 v26, v32, v33")
        build_mfma(26, SEL, 18, AB, BB, DT, nt // 2, nch, cinit=True)
        for r in range(4):
            I(f"v_bfi_b32 v{DT+r}, v5, s31, v{DT+r}")
    I(f"buffer_store_dwordx4 v[{DT}:{DT+3}], v8, s[36:39], s60 offen {stf}")
    if fwait == 2: I(f"ds_write_b32 v4, v4 offset:{L_YPUB}")
    ST(10)
    flush_stamps()
    I("s_endpgm")
    a.label("L_end")
    I("s_endpgm")

    nv = a.maxv + 1
    head = HDR + f"""; @launch grid=(256,1,1) block=(704,1,1) lds={LDS_BYTES}
.amdgcn_target "amdgcn-amd-amdhsa--gfx950"
.text
.globl {KN}_kernel
.p2align 8
.type {KN}_kernel,@function
{KN}_kernel:
"""
    foot = f""".section .rodata,"a"
.p2align 6
.amdhsa_kernel {KN}_kernel
  .amdhsa_next_free_vgpr {nv}
  .amdhsa_next_free_sgpr {max(a.maxs + 1, 16)}
  .amdhsa_accum_offset {(nv + 3) // 4 * 4}
  .amdhsa_group_segment_fixed_size 0
  .amdhsa_kernarg_size 96
  .amdhsa_user_sgpr_count 2
  .amdhsa_user_sgpr_kernarg_segment_ptr 1
  .amdhsa_system_sgpr_workgroup_id_x 1
  .amdhsa_float_denorm_mode_32 3
.end_amdhsa_kernel
"""
    txt = a.text()
    i0 = txt.index("@@PBEG@@\n"); i1 = txt.index("@@PEND@@\n")
    P = txt[i0 + 9:i1]
    txt = txt[:i0] + txt[i1 + 9:]
    txt = txt.replace("@@P@@\n", P)
    if warm: txt = add_pads(head, txt, foot, pad, s1lab)
    return head + txt + foot

def add_pads(head, txt, foot, pad, s1lab):
    import re, subprocess
    lines = txt.rstrip("\n").split("\n")
    def isins(l):
        t = l.strip(); return t and not t.endswith(":") and not t.startswith((";", "@@"))
    tmp = re.sub(r"@@(W1SH)@@", "7", txt)
    tmp = re.sub(r"@@OFFH[^@]*@@", "0", tmp)
    tmp = re.sub(r"@@CNT[^@]*@@", "5", tmp)
    tmp = re.sub(r"(?m)^\s*@@[A-Z]*@@\n", "", tmp)
    tmp = re.sub(r"@@[^@]*@@", "0x12345", tmp)
    open("_pad.s", "w").write(head + tmp + foot)
    subprocess.check_call(["clang", "-x", "assembler", "-target", "amdgcn-amd-amdhsa", "-mcpu=gfx950", "-c", "_pad.s", "-o", "_pad.o"])
    d = subprocess.check_output(["llvm-objdump", "-d", "_pad.o"], text=True)
    sizes = [4 * len(m.group(1).split()) for m in re.finditer(r"// [0-9A-F]{12}: ([0-9A-F ]+)", d)]
    assert len(sizes) == sum(isins(l) for l in lines), (len(sizes), sum(isins(l) for l in lines))
    out = []; pos = 0; k = 0; on = False; labels = {}; pads = []
    i = 0
    while i < len(lines):
        l = lines[i]; t = l.strip()
        if t == "@@PADSTART@@": on = True; i += 1; continue
        if t == "@@PADOK@@": i += 1; continue
        if t == "@@NOPAD@@":
            j = i + 1; n = 0; kk = k
            while lines[j].strip() != "@@PADOK@@":
                if isins(lines[j]): n += sizes[kk]; kk += 1
                j += 1
            assert n + 4 <= pad
            if on and (pos % pad == 0 or (pos % pad) + n > pad):
                while pos % pad: out.append("  s_nop 0"); pos += 4
                pads.append(pos); out.append("  s_cbranch_execz L_wret"); pos += 4
            i += 1; continue
        if isins(l):
            sz = sizes[k]; k += 1
            if on:
                if pos % pad == pad - 4 and sz == 8: out.append("  s_nop 0"); pos += 4
                if pos % pad == 0:
                    tail = []
                    while out and out[-1].strip().endswith(":"): tail.insert(0, out.pop())
                    pads.append(pos); out.append("  s_cbranch_execz L_wret"); pos += 4
                    for x in tail:
                        out.append(x)
                        if not x.strip().startswith('L_wpc'): labels[x.strip()[:-1]] = pos
            out.append(l); pos += sz
        else:
            if t.endswith(":"): labels[t[:-1]] = pos
            out.append(l)
        i += 1
    assert pads == list(range(pads[0], pads[-1] + 1, pad)), "pad gap"
    txt = "\n".join(out) + "\n"
    up = lambda x: min((x + pad - 1) // pad * pad, pads[-1] + pad)
    def st(l0, g):
        x = up(labels[l0])
        while -16 <= x - labels[g] <= 64: x += pad
        return x
    txt = re.sub(r"@@OFF:([^:@]*):([^@]*)@@", lambda m: hex((st(m.group(1), m.group(2)) - labels[m.group(2)]) & 0xffffffff), txt)
    txt = re.sub(r"@@OFFH:([^:@]*):([^@]*)@@", lambda m: "-1" if st(m.group(1), m.group(2)) < labels[m.group(2)] else "0", txt)
    def f_cnt(m):
        c = (up(labels[m.group(2)]) - st(m.group(1), m.group(3))) // pad
        assert 1 <= c <= 64
        return str(c)
    txt = re.sub(r"@@CNT:([^:@]*):([^:@]*):([^@]*)@@", f_cnt, txt)
    if s1lab:
        n = (pads[-1] - st("L_P", s1lab[0])) // 128 + 1
        assert 64 < n <= 128
        txt = txt.replace("@@W1LIM@@", str(n))
    return txt

if __name__ == "__main__":
    import json
    name = sys.argv[1]; kw = {}
    for x in sys.argv[2:]:
        k, v = x.split("="); kw[k] = eval(v)
    open(name, "w").write(gen(**kw))
```
